```python
import torch

def _softmax(x, axis=-1):
    return torch.softmax(x, dim=axis)
def _gelu(x):
    return torch.nn.functional.gelu(x, approximate="tanh")
def _silu(x):
    return torch.nn.functional.silu(x)
def _sigmoid(x):
    return torch.sigmoid(x)
def _layernorm(x, axis=-1, eps=1e-5):
    m = x.mean(dim=axis, keepdim=True)
    v = x.var(dim=axis, keepdim=True, unbiased=False)
    return (x - m) / torch.sqrt(v + eps)
def _scatter_add(tgt, idx, src, axis=0):
    return tgt.clone().index_add_(axis, idx, src)
def _segment_sum(src, seg, n):
    out = torch.zeros((n,) + src.shape[1:], dtype=src.dtype)
    return out.index_add_(0, seg, src)
def _pad(x, pw):
    flat = tuple(v for pair in reversed(pw) for v in pair)
    return torch.nn.functional.pad(x, flat)

kernel_name = 'interleave_layers__ssm_conv_h3__glu_gated_geglu__prompt'

def setup_inputs():

    _w = (lambda a: (lambda t: t.to(torch.bfloat16) if t.is_floating_point() else t)(torch.as_tensor(a)))
    def _A_setup():
        B, S, D = 1, 2048, 640
        ks = 4
        return {
            "q": _w((lambda *s: torch.randn(*s, dtype=torch.bfloat16) * 0.05)(B, S, D)),
            "k": _w((lambda *s: torch.randn(*s, dtype=torch.bfloat16) * 0.2)(B, S, D)),
            "v": _w((lambda *s: torch.randn(*s, dtype=torch.bfloat16) * 0.2)(B, S, D)),
            "shift_k": _w((lambda *s: torch.randn(*s, dtype=torch.bfloat16) * 0.2)(D, ks) * 0.5),
            "ssm_k": _w((lambda *s: torch.randn(*s, dtype=torch.bfloat16) * 0.4)(D, S) * (1.0 / S ** 0.5)),
            "ssm_D": _w((lambda *s: torch.randn(*s, dtype=torch.bfloat16) * 0.2)(D)),
        }
    _A_in = _A_setup()

    def _B_setup():
        B, S, Dm, Df = 1, 2048, 640, 1536
        return {
            "x": _w((lambda *s: torch.randn(*s, dtype=torch.bfloat16) * 0.05)(B, S, Dm)),
            "w_gate": _w((lambda *s: torch.randn(*s, dtype=torch.bfloat16) * 0.4)(Dm, Df) * (Dm ** -0.5)),
            "w_up": _w((lambda *s: torch.randn(*s, dtype=torch.bfloat16) * 0.4)(Dm, Df) * (Dm ** -0.5)),
            "w_down": _w((lambda *s: torch.randn(*s, dtype=torch.bfloat16) * 0.4)(Df, Dm) * (Df ** -0.5)),
        }
    _B_in = _B_setup()

    return {
        "A_q": _A_in["q"],
        "A_k": _A_in["k"],
        "A_v": _A_in["v"],
        "A_shift_k": _A_in["shift_k"],
        "A_ssm_k": _A_in["ssm_k"],
        "A_ssm_D": _A_in["ssm_D"],
        "B_x": _B_in["x"],
        "B_w_gate": _B_in["w_gate"],
        "B_w_up": _B_in["w_up"],
        "B_w_down": _B_in["w_down"],
    }

def reference(A_q, A_k, A_v, A_shift_k, A_ssm_k, A_ssm_D, B_x, B_w_gate, B_w_up, B_w_down):
    def _A_ref(q, k, v, shift_k, ssm_k, ssm_D):
        B, S, D = q.shape
        ks = shift_k.shape[-1]
        k_pad = _pad(k, ((0, 0), (ks - 1, 0), (0, 0)))
        k_shift = torch.zeros_like(k)
        for t in range(ks):
            k_shift = k_shift + k_pad[:, t:t + S, :] * shift_k[:, ks - 1 - t][None, None, :]
        kv = k_shift * v
        L = 2 * S
        kv_pad = _pad(kv, ((0, 0), (0, S), (0, 0)))
        kf_pad = _pad(ssm_k, ((0, 0), (0, S)))
        kv_f = (lambda x, axes=(-2,-1): torch.fft.rfft2(x.float(), dim=axes))(kv_pad[:, None, :, :], axes=(1, 2))
        kf_f = (lambda x, axes=(-2,-1): torch.fft.rfft2(x.float(), dim=axes))(kf_pad[:, None, :], axes=(1, 2))
        kf_f = (lambda x, *d: x.permute(*d))(kf_f, 1, 2, 0)
        y_f = kv_f * kf_f[None, :, :, :]
        y = (lambda x, s, axes=(-2,-1): torch.fft.irfft2(x, s=s, dim=axes).to(torch.bfloat16))(y_f, (1, L), axes=(1, 2))[:, 0, :S, :]
        y = y + kv * ssm_D[None, None, :]
        return q * y

    def _B_ref(x, w_gate, w_up, w_down):
        g = torch.einsum("bsd,df->bsf", x, w_gate)
        u = torch.einsum("bsd,df->bsf", x, w_up)
        h = _gelu(g) * u
        return torch.einsum("bsf,fd->bsd", h, w_down)

    x = A_q
    x = x + _A_ref(_layernorm(x, axis=-1), A_k, A_v, A_shift_k, A_ssm_k, A_ssm_D)
    x = x + _B_ref(_layernorm(x, axis=-1), B_w_gate, B_w_up, B_w_down)
    x = x + _A_ref(_layernorm(x, axis=-1), A_k, A_v, A_shift_k, A_ssm_k, A_ssm_D)
    x = x + _B_ref(_layernorm(x, axis=-1), B_w_gate, B_w_up, B_w_down)
    return x
```

```python
import re

TRANS = ("v_exp_f32", "v_log_f32", "v_rcp_f32", "v_rsq_f32", "v_sqrt_f32", "v_sin_f32", "v_cos_f32", "v_rcp_iflag_f32")

def regs_of(tok):
    tok = tok.strip()
    tok = re.sub(r"^-|^abs\(|\)$|^\|", "", tok).strip("|")
    m = re.fullmatch(r"([vas])\[(\d+):(\d+)\]", tok)
    if m:
        return {f"{m.group(1)}{i}" for i in range(int(m.group(2)), int(m.group(3)) + 1)}
    m = re.fullmatch(r"([vas])(\d+)", tok)
    if m:
        return {tok}
    if tok in ("vcc", "vcc_lo", "vcc_hi"):
        return {"vcc"}
    if tok in ("exec", "exec_lo", "exec_hi"):
        return {"exec"}
    if tok == "m0":
        return {"m0"}
    return set()

def split_ops(s):
    out, depth, cur = [], 0, ""
    for ch in s:
        if ch in "[(":
            depth += 1
        if ch in "])":
            depth -= 1
        if ch == "," and depth == 0:
            out.append(cur.strip()); cur = ""
        else:
            cur += ch
    if cur.strip():
        out.append(cur.strip())
    return out

class Ins:
    def __init__(self, text):
        self.text = text
        t = text.split(";")[0].strip()
        self.op = t.split()[0] if t else ""
        rest = t[len(self.op):].strip()
        ops = split_ops(rest)
        mods = ""
        if ops:
            parts = ops[-1].split()
            ops[-1] = parts[0] if parts else ""
            mods = " ".join(parts[1:])
        self.ops = ops
        self.mods = mods
        op = self.op
        self.is_mfma = op.startswith("v_mfma")
        self.is_valu = op.startswith("v_") and not self.is_mfma
        self.is_salu = op.startswith("s_") and not op.startswith(("s_load", "s_buffer_load", "s_waitcnt", "s_nop", "s_barrier", "s_memtime", "s_memrealtime"))
        self.is_vmem = op.startswith(("buffer_", "global_", "flat_"))
        self.is_ds = op.startswith("ds_")
        self.is_trans = op.startswith(TRANS)
        self.is_dpp = "_dpp" in op or "row_" in mods or "quad_perm" in mods
        self.is_perm = op.startswith("v_permlane")
        self.is_rl = op.startswith(("v_readfirstlane", "v_readlane"))
        self.is_dot = op.startswith("v_dot")
        self.lds_dma = self.is_vmem and re.search(r"\blds\b", mods) is not None
        R = [regs_of(o) for o in ops]
        w, r = set(), set()
        if self.is_mfma:
            w = R[0]; self.A, self.B, self.C = R[1], R[2], R[3]; r = R[1] | R[2] | R[3]
            self.passes = 8 if "32x32x16" in op else 4 if "16x16x32" in op else None
            assert self.passes, op
        elif self.is_valu:
            if op.startswith(("v_swap", "v_permlane16_swap", "v_permlane32_swap")):
                w = R[0] | R[1]; r = R[0] | R[1]
            elif op.startswith("v_cmp"):
                w = R[0]; r = set().union(*R[1:])
            elif op.startswith(("v_add_co", "v_sub_co", "v_addc_co", "v_subb_co", "v_subrev_co", "v_mad_u64")):
                w = R[0] | R[1]; r = set().union(*R[2:])
            else:
                w = R[0]; r = set().union(*R[1:]) if len(R) > 1 else set()
                if op.startswith(("v_fmac", "v_dot2c", "v_pk_fmac")) or self.is_dpp or "sdwa" in op or op.startswith("v_writelane"):
                    r |= R[0]
                if op.startswith("v_cndmask") and len(R) == 3:
                    r |= {"vcc"}
        elif self.is_vmem:
            st = "store" in op or ("atomic" in op)
            if self.lds_dma:
                r = set().union(*R) | {"m0"}
            elif st:
                r = set().union(*R)
                self.data = R[0] if op.startswith("buffer_") else R[1]
                if "atomic" in op and "sc0" in mods:
                    w = self.data
            else:
                w = R[0]; r = set().union(*R[1:])
        elif self.is_ds:
            if op.startswith(("ds_write", "ds_add", "ds_or")):
                r = set().union(*R)
            else:
                w = R[0]; r = set().union(*R[1:]) if len(R) > 1 else set()
        elif op.startswith(("s_load", "s_buffer_load", "s_memtime", "s_memrealtime")):
            w = R[0]; r = set().union(*R[1:]) if len(R) > 1 else set()
        elif self.is_salu:
            if op.startswith(("s_cmp", "s_cbranch", "s_branch", "s_setprio", "s_sleep", "s_endpgm", "s_bitcmp")):
                r = set().union(*R) if R else set()
            else:
                w = R[0] if R else set(); r = set().union(*R[1:]) if len(R) > 1 else set()
                if "saveexec" in op:
                    w = w | {"exec"}; r = r | {"exec"}
        self.w, self.r = w, r
        self.wide_store = self.is_vmem and not self.lds_dma and "store" in op and op.endswith(("x3", "x4"))
        self.states = 1
        if op == "s_nop":
            self.states = int(ops[0], 0) + 1

def need(prod, cons):
    n = 0
    pw = prod.w
    if prod.is_valu:
        vw = {x for x in pw if x[0] in "va" and x != "vcc"}
        sw = {x for x in pw if x[0] == "s" or x == "vcc"}
        if cons.is_mfma and vw & cons.r: n = max(n, 2)
        if cons.is_rl and vw & cons.r: n = max(n, 1)
        if cons.is_valu and cons.is_dpp and vw & cons.r: n = max(n, 2)
        if cons.is_perm and vw & cons.r: n = max(n, 2)
        if prod.is_trans and cons.is_valu and not cons.is_trans and vw & cons.r: n = max(n, 1)
        if prod.is_trans and (cons.is_vmem or cons.is_ds) and vw & cons.r: n = max(n, 1)
        if ("sdwa" in prod.op or ("op_sel:" in prod.mods and not prod.op.startswith("v_pk_"))) and cons.is_valu and vw & (cons.r | cons.w): n = max(n, 1)
        if prod.is_dot and (cons.is_valu or cons.is_mfma or cons.is_vmem or cons.is_ds) and vw & (cons.r | cons.w):
            same_acc = cons.op == prod.op and vw == cons.w and not (vw & set().union(*[regs_of(o) for o in cons.ops[1:3]]))
            if not same_acc: n = max(n, 3)
        if sw:
            if cons.is_vmem and sw & cons.r: n = max(n, 5)
            if cons.is_valu and sw & cons.r: n = max(n, 4 if cons.op.startswith(("v_readlane", "v_writelane")) else 2)
            if cons.is_salu and sw & cons.r and not cons.op.startswith("s_cbranch"): n = max(n, 1)
        if "exec" in pw:
            n = max(n, 5)
    if prod.is_mfma:
        p = prod.passes
        big = {4: 8, 8: 12}[p]
        if cons.is_mfma:
            if pw & (cons.A | cons.B): n = max(n, big)
            if pw & cons.C:
                if not (pw == cons.C and cons.passes == p): n = max(n, {4: 6, 8: 10}[p])
            if pw & cons.w and not (pw & cons.C): n = max(n, big)
        elif (cons.is_valu or cons.is_vmem or cons.is_ds) and pw & (cons.r | cons.w):
            n = max(n, big)
        if cons.is_valu and prod.C & cons.w: n = max(n, {4: 3, 8: 7}[p])
    if prod.is_salu and "m0" in pw and (cons.lds_dma or "addtid" in cons.op): n = max(n, 1)
    if prod.wide_store:
        if cons.is_valu and prod.data & cons.w: n = max(n, 2)
        elif prod.data & cons.w: n = max(n, 1)
    if prod.is_ds and prod.op.startswith(("ds_write_b128", "ds_write_b96")) and cons.is_valu:
        d = set().union(*[regs_of(o) for o in prod.ops[1:]])
        if d & cons.w: n = max(n, 2)
    return n

class Asm:
    def __init__(self):
        self.lines = []
        self.uid = 0
    def __call__(self, text):
        for ln in text.split("\n"):
            s = ln.strip()
            if not s:
                continue
            if s.startswith(";"):
                self.lines.append(("c", s))
            elif s.endswith(":") or s.startswith("."):
                self.lines.append(("l", s))
            else:
                self.lines.append(("i", s))
    def label(self, base):
        self.uid += 1
        return f"L_{base}_{self.uid}"
    def render(self):
        out = []
        hist = []
        nnop = 0
        for kind, s in self.lines:
            if kind != "i":
                out.append(s if kind == "l" else "    " + s)
                continue
            ins = Ins(s)
            dist = 0
            req = 0
            for p in reversed(hist):
                if dist >= 20: break
                n = need(p, ins)
                if n - dist > req: req = n - dist
                dist += p.states
            while req > 0:
                k = min(req, 16)
                nop = Ins(f"s_nop {k-1}")
                out.append(f"    s_nop {k-1}")
                hist.append(nop); req -= k; nnop += 1
            out.append("    " + s)
            hist.append(ins)
            if len(hist) > 40: hist = hist[-40:]
        return "\n".join(out) + "\n"

def kernel_text(name, asm):
    return f".globl {name}\n.p2align 8\n.type {name},@function\n{name}:\n{asm.render()}"

def descriptor(name, vgpr, sgpr=102, accum=None):
    if accum is None: accum = min(256, (vgpr + 3) // 4 * 4)
    return f""".p2align 6
.amdhsa_kernel {name}
  .amdhsa_next_free_vgpr {vgpr}
  .amdhsa_next_free_sgpr {sgpr}
  .amdhsa_accum_offset {accum}
  .amdhsa_group_segment_fixed_size 0
  .amdhsa_kernarg_size 104
  .amdhsa_user_sgpr_count 2
  .amdhsa_user_sgpr_kernarg_segment_ptr 1
  .amdhsa_system_sgpr_workgroup_id_x 1
  .amdhsa_float_denorm_mode_32 3
.end_amdhsa_kernel
"""
```

```python
from asm import Asm

S, D, F = 2048, 640, 1536
def _al(x, a=4096): return (x + a - 1) // a * a
XT_CH = 8448
XT_CP = 4224
off = 0
XT = off;  off = _al(off + D * XT_CH)
QN = off;  off = _al(off + 160 * 32768)
X1 = off;  off = _al(off + S * D * 2)
Y  = off;  off = _al(off + S * D * 2)
X3 = off;  off = _al(off + S * D * 2)
H1 = off;  off = _al(off + S * F * 2)
H2 = off;  off = _al(off + S * F * 2)
W1L = off; off = _al(off + 2 * D * F * 2)
WDL = off; off = _al(off + D * F * 2)
CS = off;  off = _al(off + 10 * 3072 * 4)
ST1 = off; ST2 = ST1 + 131072; ST3 = ST2 + 131072; off = ST3 + 131072
FL = off;  off = _al(off + 65536)
WS_USED = off
TB = 160 * 512
ACT_BYTES = S * D * 2

class Cnt:
    def __init__(self, a, kind, maxn):
        self.a, self.kind, self.q, self.maxn = a, kind, [], maxn
    def issue(self, tag):
        self.q.append(tag)
        assert len(self.q) <= self.maxn, (self.kind, len(self.q))
    def wait(self, tag):
        idx = [i for i, t in enumerate(self.q) if t == tag]
        if not idx: return
        n = len(self.q) - 1 - idx[-1]
        self.a(f"s_waitcnt {self.kind}({n})")
        self.q = self.q[idx[-1] + 1:]
    def waitall(self):
        self.a(f"s_waitcnt {self.kind}(0)")
        self.q = []

def srd(a, d, lo, size):
    a(f"s_mov_b32 s{d}, s{lo}")
    a(f"s_and_b32 s{d+1}, s{lo+1}, 0xffff")
    a(f"s_mov_b32 s{d+2}, {size}")
    a(f"s_mov_b32 s{d+3}, 0x20000")

def rnd_bf16(a, v):
    a(f"v_cvt_pk_bf16_f32 v{v}, v{v}, v{v}")
    a(f"v_lshlrev_b32 v{v}, 16, v{v}")

def ln_stats(a, vs, vq, vm, vr):
    a(f"v_mul_f32 v{vm}, 0x3acccccd, v{vs}")
    a(f"v_mul_f32 v{vr}, 0x3acccccd, v{vq}")
    a(f"v_fma_f32 v{vr}, -v{vm}, v{vm}, v{vr}")
    a(f"v_max_f32 v{vr}, 0, v{vr}")
    rnd_bf16(a, vm)
    rnd_bf16(a, vr)
    a(f"v_add_f32 v{vr}, 0x3727c5ac, v{vr}")
    rnd_bf16(a, vr)
    a(f"v_sqrt_f32 v{vr}, v{vr}")
    rnd_bf16(a, vr)
    a(f"v_rcp_f32 v{vr}, v{vr}")
```

```python
from common import *

HL = 4608
YT0 = 4 * HL
YTS = 4160
CONV_LDS = YT0 + 4 * YTS

def conv_kernel():
    a = Asm()
    vm = Cnt(a, "vmcnt", 63)
    lg = Cnt(a, "lgkmcnt", 15)
    a(f"""
    s_cmp_ge_u32 s2, 256
    s_cbranch_scc1 L_conv_end
    s_load_dwordx4 s[4:7], s[0:1], 32
    s_load_dwordx2 s[16:17], s[0:1], 96     ; ws
    s_load_dwordx4 s[12:15], s[0:1], 56
    s_load_dwordx2 s[18:19], s[0:1], 72     ; w_down
    v_lshrrev_b32 v2, 6, v0
    v_and_b32 v1, 63, v0                    ; lane
    v_readfirstlane_b32 s3, v2              ; wave
    s_lshr_b32 s20, s2, 3                   ; slot
    s_and_b32 s21, s2, 7                    ; xcd-ish
    s_cmp_ge_u32 s20, 20
    s_cbranch_scc1 L_relay
    s_mul_i32 s22, s21, 20
    s_add_u32 s22, s22, s20
    s_lshl_b32 s23, s22, 2
    s_add_u32 s23, s23, s3                  ; d (channel)
    v_and_b32 v3, 15, v1                    ; b / a
    v_lshrrev_b32 v4, 4, v1                 ; q
    v_and_b32 v5, 7, v3
    v_lshlrev_b32 v5, 2, v5
    v_lshlrev_b32 v6, 4, v4
    v_sub_u32 v5, v6, v5
    v_add_u32 v5, 28, v5
    v_lshrrev_b32 v7, 3, v3
    v_xor_b32 v7, 1, v7
    v_mul_u32_u24 v7, {XT_CP}, v7
    v_add_u32 v5, v5, v7
    v_lshlrev_b32 v8, 4, v1                 ; lane*16
    s_mul_i32 s24, s23, {XT_CH}
    s_add_u32 s24, s24, {XT}
    s_lshl_b32 s25, s23, 12
    s_mul_i32 s26, s3, {HL}
    s_add_u32 s27, s26, 512
    s_mov_b32 m0, s27
    s_waitcnt lgkmcnt(0)
    """)
    srd(a, 8, 16, WS_USED)
    srd(a, 28, 4, D * S * 2)
    a(f"""
    s_add_u32 s4, s4, s25
    s_addc_u32 s5, s5, 0
    s_load_dword s32, s[4:5], 0
    s_lshr_b32 s33, s23, 1
    s_lshl_b32 s33, s33, 2
    s_add_u32 s6, s6, s33
    s_addc_u32 s7, s7, 0
    s_load_dword s33, s[6:7], 0
    """)
    for i in range(4):
        a(f"buffer_load_dwordx4 v8, s[28:31], s25 offen offset:{1024*i} lds"); vm.issue("h")
    def fload(rho):
        for sg in range(8):
            s = 8 * sg + rho
            r = (rho * 8 + sg) * 4
            a(f"buffer_load_dwordx4 a[{r}:{r+3}], v5, s[8:11], s24 offen offset:{4032 - 64*s}"); vm.issue(f"F{rho}")
    for rho in range(7): fload(rho)
    a(f"""
    v_mov_b32 v12, 0
    v_mov_b32 v13, 0
    v_lshlrev_b32 v9, 3, v1
    v_add_u32 v9, s26, v9
    ds_write_b64 v9, v[12:13]
    v_lshlrev_b32 v9, 5, v3
    v_lshl_add_u32 v9, v4, 4, v9
    v_add_u32 v9, s26, v9
    s_mul_i32 s34, s3, {YTS}
    s_add_u32 s34, s34, {YT0}
    v_lshrrev_b32 v10, 1, v4
    v_lshlrev_b32 v10, 11, v10
    v_lshl_add_u32 v10, v3, 4, v10
    v_and_b32 v11, 1, v4
    v_lshl_add_u32 v10, v11, 3, v10
    v_add_u32 v10, s34, v10
    v_lshrrev_b32 v11, 2, v3
    v_mul_u32_u24 v11, {YTS}, v11
    v_and_b32 v14, 3, v3
    v_lshl_add_u32 v11, v14, 3, v11
    v_lshl_add_u32 v11, v4, 5, v11
    s_lshl_b32 s35, s3, 7
    s_add_u32 s35, s35, {YT0}
    v_add_u32 v11, s35, v11
    s_lshl_b32 s36, s22, 15
    s_lshl_b32 s35, s3, 10
    s_add_u32 s36, s36, s35
    s_add_u32 s36, s36, {QN}
    v_lshrrev_b32 v14, 5, v1
    v_mul_u32_u24 v14, {TB}, v14
    v_and_b32 v15, 31, v1
    v_lshl_add_u32 v14, v15, 4, v14
    s_mul_i32 s37, s3, {2*TB}
    s_lshl_b32 s35, s22, 9
    s_add_u32 s37, s37, s35
    s_waitcnt lgkmcnt(0)
    ; h'[0] = bf16(h[0] + D[d])
    s_lshl_b32 s32, s32, 16
    s_and_b32 s35, s33, 0xffff0000
    s_lshl_b32 s33, s33, 16
    s_bitcmp1_b32 s23, 0
    s_cselect_b32 s33, s35, s33
    v_mov_b32 v16, s32
    v_add_f32 v16, s33, v16
    v_cvt_pk_bf16_f32 v16, v16, v16
    v_mov_b32 v17, s27
    """)
    vm.wait("h")
    a("""
    s_mov_b64 exec, 1
    ds_write_b16 v17, v16
    s_mov_b64 exec, -1
    """)
    lg.issue("p")
    def gread(rho):
        buf = 64 + (rho & 1) * 32
        for k in range(8):
            t = rho - 8 * k
            a(f"ds_read_b128 v[{buf+4*k}:{buf+4*k+3}], v9 offset:{480 - 64*t}"); lg.issue(f"G{rho}")
    gread(0)
    first = [True] * 8
    for rho in range(8):
        vm.wait(f"F{rho}")
        if rho == 0: fload(7)
        if rho == 1:
            for j in range(4):
                for par in range(2):
                    r = 128 + (j * 2 + par) * 4
                    a(f"s_add_u32 s38, s36, {j*4096 + par*16384}")
                    a(f"buffer_load_dwordx4 v[{r}:{r+3}], v8, s[8:11], s38 offen"); vm.issue("qn")
        lg.wait(f"G{rho}")
        buf = 64 + (rho & 1) * 32
        n = 0
        for sg in range(8):
            for k in range(0, 8 - sg):
                T = sg + k
                acc = f"v[{32+4*T}:{35+4*T}]"
                fr = (rho * 8 + sg) * 4
                c = "0" if first[T] else acc
                first[T] = False
                a(f"v_mfma_f32_16x16x32_bf16 {acc}, a[{fr}:{fr+3}], v[{buf+4*k}:{buf+4*k+3}], {c}")
                n += 1
                if n == 1 and rho < 7: gread(rho + 1)
    for T in range(8):
        a(f"v_cvt_pk_bf16_f32 v{64+2*T}, v{32+4*T}, v{33+4*T}")
        a(f"v_cvt_pk_bf16_f32 v{65+2*T}, v{34+4*T}, v{35+4*T}")
        a(f"ds_write_b64 v10, v[{64+2*T}:{65+2*T}] offset:{256*T}")
    a("s_waitcnt lgkmcnt(0)\ns_barrier")
    lg.q = []
    for j in range(4):
        for par in range(2):
            r = 32 + 4 * j + 2 * par
            a(f"ds_read_b64_tr_b16 v[{r}:{r+1}], v11 offset:{512*j + 2048*par}"); lg.issue(f"y{j}")
    a("s_mov_b32 s39, 0xffff0000")
    vm.wait("qn")
    for j in range(4):
        lg.wait(f"y{j}")
        a(f"s_add_u32 s38, s37, {Y + j*8*TB}")
        a(f"buffer_store_dwordx4 v[{32+4*j}:{35+4*j}], v14, s[8:11], s38 offen")
        o = 48 + 4 * j
        for par in range(2):
            r = 128 + (j * 2 + par) * 4
            y = 32 + 4 * j + 2 * par
            for h in range(2):
                a(f"v_lshlrev_b32 v64, 16, v{r+h}")
                a(f"v_and_b32 v65, s39, v{r+h}")
                a(f"v_lshlrev_b32 v66, 16, v{r+2+h}")
                a(f"v_and_b32 v67, s39, v{r+2+h}")
                a(f"v_lshlrev_b32 v68, 16, v{y+h}")
                a(f"v_and_b32 v69, s39, v{y+h}")
                a("v_pk_fma_f32 v[64:65], v[66:67], v[68:69], v[64:65]")
                a(f"v_cvt_pk_bf16_f32 v{o+2*par+h}, v64, v65")
        a(f"s_add_u32 s38, s37, {X1 + j*8*TB}")
        a(f"buffer_store_dwordx4 v[{o}:{o+3}], v14, s[8:11], s38 offen")
    a("s_endpgm")

    a(f"""
L_relay:
    s_sub_u32 s20, s20, 20
    s_lshl_b32 s20, s20, 3
    s_add_u32 s20, s20, s21
    s_lshl_b32 s20, s20, 2
    s_add_u32 s20, s20, s3                  ; task
    s_cmp_ge_u32 s20, 360
    s_cbranch_scc1 L_conv_end
    s_waitcnt lgkmcnt(0)
    """)
    srd(a, 8, 16, WS_USED)
    a(f"""
    s_cmp_ge_u32 s20, 240
    s_cbranch_scc1 L_relay_d
    s_cmp_ge_u32 s20, 120
    s_cselect_b32 s22, 1, 0                 ; mat
    s_cselect_b32 s12, s14, s12
    s_cselect_b32 s13, s15, s13
    s_mul_i32 s23, s22, 120
    s_sub_u32 s23, s20, s23                 ; rem
    s_mul_i32 s24, s23, 205
    s_lshr_b32 s24, s24, 11
    s_mul_i32 s25, s24, 10
    s_sub_u32 s25, s23, s25                 ; chunk
    s_mov_b32 s26, 3072
    s_mov_b32 s27, {8*3072}
    s_mov_b32 s40, 43
    s_mov_b32 s41, 3
    s_mov_b32 s42, 122880
    s_mov_b32 s43, 512
    s_lshl_b32 s44, s22, 8
    s_add_u32 s44, s44, {W1L}
    s_mul_i32 s45, s25, {4*3072}
    s_add_u32 s44, s44, s45
    s_add_u32 s45, s44, 3072
    s_add_u32 s46, s44, {2*3072}
    s_add_u32 s47, s44, {3*3072}
    """)
    for e in range(8): a(f"s_mov_b32 s{48+e}, {e*3072}")
    a(f"""
    s_branch L_relay_go
L_relay_d:
    s_mov_b32 s22, 2
    s_mov_b32 s12, s18
    s_mov_b32 s13, s19
    s_sub_u32 s23, s20, 240
    s_mul_i32 s24, s23, 171
    s_lshr_b32 s24, s24, 12
    s_mul_i32 s25, s24, 24
    s_sub_u32 s25, s23, s25                 ; chunk
    s_mov_b32 s26, 1280
    s_mov_b32 s27, {4*1280}
    s_mov_b32 s40, 26
    s_mov_b32 s41, 5
    s_mov_b32 s42, 245760
    s_mov_b32 s43, 256
    s_mul_i32 s44, s25, {2*5120}
    s_add_u32 s44, s44, {WDL}
    s_add_u32 s45, s44, 512
    s_add_u32 s46, s44, 5120
    s_add_u32 s47, s44, 5632
    """)
    for e in range(8): a(f"s_mov_b32 s{48+e}, {((e&3) + 8*(e>>2))*1280}")
    a("L_relay_go:")
    srd(a, 28, 12, D * F * 2)
    a(f"""
    v_and_b32 v3, 31, v1
    v_lshrrev_b32 v4, 5, v1                 ; half
    s_lshl_b32 s34, s24, 7
    v_lshl_add_u32 v3, v3, 2, s34           ; c0
    v_mul_lo_u32 v5, v4, s27
    v_lshl_add_u32 v5, v3, 1, v5
    s_lshl_b32 s35, s25, 6
    s_mul_i32 s35, s35, s26
    s_lshl_b32 s36, s26, 4                  ; 16 rows
    """)
    for blk in range(4):
        for e in range(8):
            r = 32 + (blk * 8 + e) * 2
            a(f"s_add_u32 s37, s35, s{48+e}")
            a(f"buffer_load_dwordx2 v[{r}:{r+1}], v5, s[28:31], s37 offen")
        if blk < 3: a("s_add_u32 s35, s35, s36")
    a(f"""
    v_lshrrev_b32 v6, 4, v3                 ; x = c0>>4
    v_mul_lo_u32 v7, v6, s40
    v_lshrrev_b32 v7, 7, v7                 ; x / M
    v_mul_lo_u32 v8, v7, s41
    v_sub_u32 v8, v6, v8                    ; mt
    v_mul_lo_u32 v7, v7, s42
    v_lshl_add_u32 v7, v8, 10, v7
    v_and_b32 v8, 15, v3
    v_lshl_add_u32 v7, v8, 4, v7
    v_mul_lo_u32 v8, v4, s43
    v_add_u32 v7, v7, v8
    s_mov_b32 s38, 0x05040100
    s_mov_b32 s39, 0x07060302
    v_mov_b32 v9, 0x3f803f80
    v_mov_b32 v12, 0
    v_mov_b32 v13, 0
    v_mov_b32 v14, 0
    v_mov_b32 v15, 0
    """)
    for blk in range(4):
        a(f"s_waitcnt vmcnt({24 - 8*blk + 4*blk})")
        for c in range(4):
            o = 96 + blk * 16 + c * 4
            sel = "s38" if c % 2 == 0 else "s39"
            for j in range(4):
                lo = 32 + (blk * 8 + 2 * j) * 2 + c // 2
                hi = lo + 2
                a(f"v_perm_b32 v{o+j}, v{hi}, v{lo}, {sel}")
            a(f"buffer_store_dwordx4 v[{o}:{o+3}], v7, s[8:11], s{44+blk} offen offset:{16*c}")
        for j in range(4):
            for c in range(4):
                a(f"v_dot2c_f32_bf16 v{12+c}, v{96 + blk*16 + c*4 + j}, v9")
    a(f"""
    s_cmp_eq_u32 s22, 2
    s_cbranch_scc1 L_conv_end
    v_mov_b32 v16, v12
    v_mov_b32 v17, v13
    v_mov_b32 v18, v14
    v_mov_b32 v19, v15
    v_permlane32_swap_b32 v12, v16
    v_permlane32_swap_b32 v13, v17
    v_permlane32_swap_b32 v14, v18
    v_permlane32_swap_b32 v15, v19
    v_add_f32 v12, v12, v16
    v_add_f32 v13, v13, v17
    v_add_f32 v14, v14, v18
    v_add_f32 v15, v15, v19
    s_mul_i32 s34, s25, {3072*4}
    s_mul_i32 s35, s22, {1536*4}
    s_add_u32 s34, s34, s35
    s_add_u32 s34, s34, {CS}
    v_lshlrev_b32 v3, 2, v3
    s_mov_b32 exec_hi, 0
    buffer_store_dwordx4 v[12:15], v3, s[8:11], s34 offen
L_conv_end:
    s_endpgm
    """)
    return a
```

```python
from common import *
import struct, math

def f2u(x): return struct.unpack("<I", struct.pack("<f", x))[0]
GC0 = -2.0 * math.sqrt(2.0 / math.pi) * math.log2(math.e)
GC1 = GC0 * 0.044715

W1_LDS = 122880
RB = W1_LDS
CSL = RB + 36864
GEMM_LDS = 163840
RING = 14
ACC1 = 48
RING0 = 144

def ids(a):
    a(f"""
    s_load_dwordx2 s[16:17], s[0:1], 96     ; ws
    s_load_dwordx2 s[18:19], s[0:1], 80     ; out
    v_lshrrev_b32 v2, 6, v0
    v_and_b32 v1, 63, v0
    v_readfirstlane_b32 s3, v2
    s_and_b32 s22, s2, 7
    s_lshr_b32 s23, s2, 3
    s_and_b32 s20, s22, 1
    s_lshl_b32 s20, s20, 2
    s_and_b32 s24, s23, 3
    s_add_u32 s20, s20, s24                 ; G
    s_lshr_b32 s21, s22, 1
    s_lshl_b32 s21, s21, 3
    s_lshr_b32 s24, s23, 2
    s_add_u32 s21, s21, s24                 ; m
    v_lshlrev_b32 v2, 4, v1                 ; lane*16
    s_mov_b32 s39, 0xffff0000
    s_waitcnt lgkmcnt(0)
    """)
    srd(a, 8, 16, WS_USED)
    srd(a, 12, 18, ACT_BYTES)

def xlane_sum_q(a, v0, v1, t0, t1):
    a(f"""
    v_mov_b32 v{t0}, v{v0}
    v_mov_b32 v{t1}, v{v1}
    v_permlane16_swap_b32 v{v0}, v{t0}
    v_permlane16_swap_b32 v{v1}, v{t1}
    v_add_f32 v{v0}, v{v0}, v{t0}
    v_add_f32 v{v1}, v{v1}, v{t1}
    v_mov_b32 v{t0}, v{v0}
    v_mov_b32 v{t1}, v{v1}
    v_permlane32_swap_b32 v{v0}, v{t0}
    v_permlane32_swap_b32 v{v1}, v{t1}
    v_add_f32 v{v0}, v{v0}, v{t0}
    v_add_f32 v{v1}, v{v1}, v{t1}
    """)

def gemm1(a, XS, HD, ST, first, loadw, sc=""):
    vm = Cnt(a, "vmcnt", 63)
    lg = Cnt(a, "lgkmcnt", 15)
    a(f"""
    ; ---------------- gemm1
    s_lshl_b32 s24, s20, 2
    s_add_u32 s24, s24, s3                  ; tb
    s_mul_i32 s25, s24, {TB}
    s_add_u32 s25, s25, {XS}
    v_lshrrev_b32 v3, 5, v1                 ; hf
    v_and_b32 v4, 31, v1                    ; c
    v_lshlrev_b32 v5, 4, v4
    v_lshl_add_u32 v5, v3, 10, v5
    """)
    if first:
        a(f"""
    s_lshr_b32 s26, s21, 3
    s_lshl_b32 s27, s20, 2
    s_add_u32 s26, s26, s27
    s_mul_i32 s27, s26, {TB}
    s_and_b32 s28, s21, 7
    s_lshl_b32 s29, s28, 6
    s_add_u32 s27, s27, s29
    s_mul_i32 s29, s3, {40*512}
    s_add_u32 s27, s27, s29
    s_add_u32 s27, s27, {XS}
    v_and_b32 v6, 7, v1
    v_lshlrev_b32 v6, 3, v6
    v_lshrrev_b32 v7, 3, v1
    v_lshl_add_u32 v6, v7, 9, v6
    """)
        for i in range(5):
            a(f"buffer_load_dwordx2 v[{24+2*i}:{25+2*i}], v6, s[8:11], s27 offen {sc}"); vm.issue("st")
            if i < 4: a("s_add_u32 s27, s27, 4096")
    if loadw:
        a(f"""
    ; column-sum partials: thread t<240: quad = t%24, chunk = t/24
    v_mul_u32_u24 v8, 2731, v0
    v_lshrrev_b32 v8, 16, v8                ; chunk
    v_mul_u32_u24 v9, 24, v8
    v_sub_u32 v9, v0, v9                    ; quad
    v_cmp_lt_u32 vcc, 11, v9
    v_mul_u32_u24 v8, {3072*4}, v8
    v_lshl_add_u32 v8, v9, 4, v8
    v_add_u32 v9, {1536*4 - 12*16}, v8
    v_cndmask_b32 v8, v8, v9, vcc
    v_mov_b32 v9, 0x80000000
    v_cmp_gt_u32 vcc, 240, v0
    s_mul_i32 s28, s21, 192
    s_add_u32 s28, s28, {CS}
    v_cndmask_b32 v8, v9, v8, vcc
    buffer_load_dwordx4 v[36:39], v8, s[8:11], s28 offen
    s_mul_i32 s30, s21, {W1_LDS}
    s_mul_i32 s31, s3, 6144
    s_add_u32 s30, s30, s31
    s_add_u32 s30, s30, {W1L}
    """)
        vm.issue("cs")
    def wdma(c):
        for half in range(2):
            a(f"s_add_u32 s32, s31, {c*24576 + half*4096}")
            a(f"s_mov_b32 m0, s32")
            a(f"s_add_u32 s33, s30, {c*24576 + half*4096}")
            for i in range(4 if half == 0 else 2):
                a(f"buffer_load_dwordx4 v2, s[8:11], s33 offen offset:{1024*i} lds"); vm.issue(f"W{c}")
    def tload(ks):
        r = RING0 + (ks % RING) * 8
        a(f"buffer_load_dwordx4 v[{r}:{r+3}], v5, s[8:11], s25 offen {sc}"); vm.issue(f"T{ks}")
        a(f"buffer_load_dwordx4 v[{r+4}:{r+7}], v5, s[8:11], s25 offen offset:512 {sc}"); vm.issue(f"T{ks}")
        a("s_add_u32 s25, s25, 2048")
    if loadw: wdma(0)
    for ks in range(7): tload(ks)
    if loadw: wdma(1)
    for ks in range(7, RING): tload(ks)
    if loadw: wdma(2); wdma(3)
    if first:
        vm.wait("st")
        for i in range(10):
            a(f"v_lshlrev_b32 v{48+2*i}, 16, v{24+i}")
            a(f"v_and_b32 v{49+2*i}, s39, v{24+i}")
        X = lambda i: f"v[{48+2*i}:{49+2*i}]"
        a(f"v_pk_add_f32 v[24:25], {X(0)}, {X(1)}")
        a(f"v_pk_mul_f32 v[26:27], {X(0)}, {X(0)}")
        for i in range(1, 10):
            if i >= 2: a(f"v_pk_add_f32 v[24:25], v[24:25], {X(i)}")
            a(f"v_pk_fma_f32 v[26:27], {X(i)}, {X(i)}, v[26:27]")
        a(f"""
    v_add_f32 v24, v24, v25
    v_add_f32 v25, v26, v27
    v_add_f32_dpp v24, v24, v24 row_ror:8 row_mask:0xf bank_mask:0xf
    v_add_f32_dpp v25, v25, v25 row_ror:8 row_mask:0xf bank_mask:0xf
    v_mov_b32 v26, v24
    v_mov_b32 v27, v25
    v_permlane16_swap_b32 v24, v26
    v_permlane16_swap_b32 v25, v27
    v_add_f32 v24, v24, v26
    v_add_f32 v25, v25, v27
    s_lshl_b32 s26, s26, 3
    s_and_b32 s28, s21, 7
    s_add_u32 s26, s26, s28
    s_lshl_b32 s26, s26, 9
    s_lshl_b32 s28, s3, 4
    s_add_u32 s26, s26, s28
    s_add_u32 s26, s26, {ST}
    v_and_b32 v6, 7, v1
    v_lshlrev_b32 v6, 6, v6
    v_lshl_add_u32 v6, v3, 3, v6
    s_mov_b32 exec_lo, 0xff
    s_mov_b32 exec_hi, 0xff
    buffer_store_dwordx2 v[24:25], v6, s[8:11], s26 offen sc1
    s_mov_b64 exec, -1
    """)
        vm.issue("sts")
    if loadw:
        vm.wait("cs")
        a(f"""
    v_lshlrev_b32 v8, 4, v0
    v_add_u32 v8, {RB}, v8
    ds_write_b128 v8, v[36:39]
    s_waitcnt lgkmcnt(0)
    """)
        wdma(4)
    a(f"""
    s_lshl_b32 s26, s24, 12
    s_add_u32 s26, s26, {ST}
    v_lshlrev_b32 v6, 7, v4
    v_lshl_add_u32 v6, v3, 5, v6            ; (2c)*64 + hf*32
    s_mul_i32 s27, s24, {2*96*1024}
    s_mul_i32 s28, s21, 3072
    s_add_u32 s27, s27, s28
    s_add_u32 s27, s27, {HD}
    v_lshlrev_b32 v7, 4, v3
    """)
    def wread(ks):
        b = 24 + (ks & 1) * 12
        for mt in range(3):
            off = ks * 3072 + mt * 1024
            if off < 65536:
                a(f"ds_read_b128 v[{b+4*mt}:{b+4*mt+3}], v2 offset:{off}")
            else:
                a(f"ds_read_b128 v[{b+4*mt}:{b+4*mt+3}], v10 offset:{off-65536}")
            lg.issue(f"A{ks}")
    a("v_add_u32 v10, 0x10000, v2")
    if loadw:
        vm.wait("W0"); a("s_barrier")
    wread(0)
    for ks in range(40):
        if loadw and ks % 8 == 7 and ks < 39:
            vm.wait(f"W{(ks+1)//8}"); a("s_barrier")
        if loadw and ks == 8:
            L = a.label("cs")
            a(f"s_cmp_lg_u32 s3, 0\ns_cbranch_scc1 {L}")
            a("s_waitcnt lgkmcnt(0)")
            a("s_mov_b64 exec, 0xffffff")
            a(f"ds_read_b128 v[12:15], v8")
            for c in range(1, 10):
                a(f"ds_read_b128 v[16:19], v8 offset:{c*384}")
                a("s_waitcnt lgkmcnt(0)")
                for i in range(4): a(f"v_add_f32 v{12+i}, v{12+i}, v{16+i}")
            a(f"ds_write_b128 v8, v[12:15] offset:{CSL-RB}")
            a("s_waitcnt lgkmcnt(0)")
            a("s_mov_b64 exec, -1")
            a(f"{L}:")
        r = RING0 + (ks % RING) * 8
        vm.wait(f"T{ks}")
        a(f"v_swap_b32 v{r+2}, v{r+4}")
        a(f"v_swap_b32 v{r+3}, v{r+5}")
        lg.wait(f"A{ks}")
        b = 24 + (ks & 1) * 12
        n = 0
        for mt in range(3):
            for par in range(2):
                acc = ACC1 + (mt * 2 + par) * 16
                accs = f"v[{acc}:{acc+15}]"
                a(f"v_mfma_f32_32x32x16_bf16 {accs}, v[{b+4*mt}:{b+4*mt+3}], v[{r+4*par}:{r+4*par+3}], {'0' if ks == 0 else accs}")
                n += 1
                if n == 1 and ks < 39: wread(ks + 1)
        if ks + RING < 40: tload(ks + RING)
        if ks == 29:
            for t in range(2):
                for h in range(2):
                    rr = RING0 + (t * 2 + h) * 4
                    a(f"buffer_load_dwordx4 v[{rr}:{rr+3}], v6, s[8:11], s26 offen offset:{t*64 + h*16} sc1"); vm.issue("stl")
    L0 = a.label("g1poll"); L1 = a.label("g1ok")
    R = RING0
    a(f"s_mov_b32 s34, 0x100000")
    a(f"{L0}:")
    a("s_waitcnt vmcnt(0)")
    vm.q = []
    a(f"v_max_u32 v12, v{R+1}, v{R+3}")
    for i in range(1, 4):
        a(f"v_max3_u32 v12, v12, v{R+4*i+1}, v{R+4*i+3}")
    a(f"""
    v_cmp_eq_u32 vcc, -1, v12
    s_cbranch_vccz {L1}
    s_sub_u32 s34, s34, 1
    s_cbranch_scc1 {L1}
    s_sleep 1
    """)
    for t in range(2):
        for h in range(2):
            rr = RING0 + (t * 2 + h) * 4
            a(f"buffer_load_dwordx4 v[{rr}:{rr+3}], v6, s[8:11], s26 offen offset:{t*64 + h*16} sc1")
    a(f"s_branch {L0}\n{L1}:")
    for t in range(2):
        b = R + 8 * t
        a(f"v_pk_add_f32 v[{b}:{b+1}], v[{b}:{b+1}], v[{b+2}:{b+3}]")
        a(f"v_pk_add_f32 v[{b+4}:{b+5}], v[{b+4}:{b+5}], v[{b+6}:{b+7}]")
        a(f"v_pk_add_f32 v[{b}:{b+1}], v[{b}:{b+1}], v[{b+4}:{b+5}]")
        a(f"v_mov_b32 v{b+2}, v{b}")
        a(f"v_mov_b32 v{b+3}, v{b+1}")
        a(f"v_permlane32_swap_b32 v{b}, v{b+2}")
        a(f"v_permlane32_swap_b32 v{b+1}, v{b+3}")
        a(f"v_pk_add_f32 v[{b}:{b+1}], v[{b}:{b+1}], v[{b+2}:{b+3}]")
    for t in range(2):
        ln_stats(a, R + 8 * t, R + 8 * t + 1, 12 + 2 * t, 16 + 2 * t)
        a(f"v_mul_f32 v{12+2*t}, v{12+2*t}, v{16+2*t}")
        a(f"v_sub_f32 v{12+2*t}, 0, v{12+2*t}")
    a(f"""
    s_mov_b32 s36, {hex(f2u(GC1))}
    s_mov_b32 s37, {hex(f2u(GC1))}
    v_mov_b32 v20, {hex(f2u(GC0))}
    v_add_u32 v7, {CSL}, v7
    """)
    T0 = R + 16
    for mt in range(3):
        for up in range(2):
            for j in range(2):
                a(f"ds_read_b128 v[{24+up*8+j*4}:{27+up*8+j*4}], v7 offset:{up*192 + mt*64 + j*32}")
        a("s_waitcnt lgkmcnt(0)")
        for par in range(2):
            acc = ACC1 + (mt * 2 + par) * 16
            P = lambda i: f"v[{acc+2*i}:{acc+2*i+1}]"
            Tm = lambda i: f"v[{T0+2*i}:{T0+2*i+1}]"
            for i in range(8):
                a(f"v_pk_mul_f32 {Tm(i)}, v[{24+2*i}:{25+2*i}], v[{12+2*par}:{13+2*par}] op_sel_hi:[1,0]")
            for i in range(8):
                a(f"v_pk_fma_f32 {P(i)}, {P(i)}, v[{16+2*par}:{17+2*par}], {Tm(i)} op_sel_hi:[1,0,1]")
            for i in range(4): a(f"v_pk_mul_f32 {Tm(i)}, {P(i)}, {P(i)}")
            for i in range(4): a(f"v_pk_fma_f32 {Tm(i)}, {Tm(i)}, s[36:37], v[20:21] op_sel_hi:[1,1,0]")
            for i in range(4): a(f"v_pk_mul_f32 {Tm(i)}, {Tm(i)}, {P(i)}")
            for i in range(8): a(f"v_exp_f32 v{T0+i}, v{T0+i}")
            for i in range(4): a(f"v_pk_mul_f32 {P(i)}, {P(i)}, {P(i+4)}")
            for i in range(4): a(f"v_pk_add_f32 {Tm(i)}, {Tm(i)}, 1.0 op_sel_hi:[1,0]")
            for i in range(8): a(f"v_rcp_f32 v{T0+i}, v{T0+i}")
            for i in range(4): a(f"v_pk_mul_f32 {P(i)}, {P(i)}, {Tm(i)}")
            for i in range(4): a(f"v_cvt_pk_bf16_f32 v{acc+8+i}, v{acc+2*i}, v{acc+2*i+1}")
            a(f"s_add_u32 s28, s27, {par*96*1024}")
            a(f"buffer_store_dwordx4 v[{acc+8}:{acc+11}], v2, s[8:11], s28 offen offset:{mt*1024} {sc}")

ACC2 = 24
HR0 = 104
HRING = 9

def gemm2(a, HS, XR, last, loadw, sc=""):
    vm = Cnt(a, "vmcnt", 63)
    a(f"""
    ; ---------------- gemm2
    s_lshr_b32 s24, s21, 3
    s_lshl_b32 s25, s20, 2
    s_add_u32 s24, s24, s25                 ; tb
    s_and_b32 s25, s21, 7                   ; cb2
    v_and_b32 v3, 15, v1                    ; c
    v_lshrrev_b32 v4, 4, v1                 ; q
    v_lshlrev_b32 v5, 4, v3
    v_lshl_add_u32 v5, v4, 9, v5
    s_mul_i32 s26, s24, {2*96*1024}
    s_mul_i32 s27, s3, {24*1024}
    s_add_u32 s26, s26, s27
    s_add_u32 s26, s26, {HS}
    """)
    for n in range(4):
        a(f"""
    s_add_u32 s27, s3, {n}
    s_and_b32 s28, s27, 1
    s_mul_i32 s28, s28, {96*1024}
    s_lshl_b32 s27, s27, 7
    s_and_b32 s27, s27, 256
    s_add_u32 s{40+n}, s26, s28
    s_add_u32 s{40+n}, s{40+n}, s27
    """)
    if loadw:
        a(f"""
    s_mul_i32 s30, s25, 245760
    s_mul_i32 s31, s3, 61440
    s_add_u32 s30, s30, s31
    s_add_u32 s30, s30, {WDL}
    """)
    def wload(j):
        for mt in range(5):
            i = j * 5 + mt
            a(f"s_add_u32 s31, s30, {(i//4)*4096}")
            a(f"buffer_load_dwordx4 a[{4*i}:{4*i+3}], v2, s[8:11], s31 offen offset:{(i%4)*1024}"); vm.issue(f"K{j}")
    def hload(j):
        for n in range(4):
            r = HR0 + (j % HRING) * 16 + n * 4
            a(f"s_add_u32 s31, s{40+n}, {(j//2)*4096}")
            a(f"buffer_load_dwordx4 v[{r}:{r+3}], v5, s[8:11], s31 offen offset:{(j%2)*2048} {sc}"); vm.issue(f"K{j}")
    ahead = 6 if loadw else HRING
    def step_loads(j):
        if loadw: wload(j)
        hload(j)
    for j in range(ahead): step_loads(j)
    a(f"""
    s_mul_i32 s32, s24, {TB}
    s_mul_i32 s33, s25, 10240
    s_add_u32 s32, s32, s33
    s_lshr_b32 s33, s3, 1
    s_lshl_b32 s33, s33, 8
    s_add_u32 s32, s32, s33
    s_and_b32 s33, s3, 1
    s_lshl_b32 s33, s33, 3
    s_add_u32 s32, s32, s33
    s_lshl_b32 s33, s24, 6
    s_lshr_b32 s34, s3, 1
    s_lshl_b32 s34, s34, 5
    s_add_u32 s33, s33, s34
    s_and_b32 s34, s3, 1
    s_add_u32 s33, s33, s34
    v_lshl_add_u32 v6, v3, 1, s33           ; token
    s_mul_i32 s34, s3, 9216
    s_add_u32 s34, s34, {RB}
    v_add_u32 v7, s34, v2
    """)
    for n in range(1, 4):
        a(f"""
    s_add_u32 s34, s3, {n}
    s_and_b32 s34, s34, 3
    s_mul_i32 s34, s34, 9216
    s_add_u32 s34, s34, {RB + (n-1)*3072}
    v_add_u32 v{7+n}, s34, v2
    """)
    XRr, Yr = 236, 246
    for j in range(12):
        vm.wait(f"K{j}")
        for n in range(4):
            r = HR0 + (j % HRING) * 16 + n * 4
            for mt in range(5):
                acc = ACC2 + (n * 5 + mt) * 4
                accs = f"v[{acc}:{acc+3}]"
                i = j * 5 + mt
                a(f"v_mfma_f32_16x16x32_bf16 {accs}, a[{4*i}:{4*i+3}], v[{r}:{r+3}], {'0' if j == 0 else accs}")
        if j + ahead < 12: step_loads(j + ahead)
        if j == 8:
            for mt in range(5):
                a(f"s_add_u32 s31, s32, {XR + (mt//2)*4096}")
                a(f"buffer_load_dwordx2 v[{XRr+2*mt}:{XRr+2*mt+1}], v5, s[8:11], s31 offen offset:{(mt%2)*2048} {sc}"); vm.issue("x")
            if not last:
                for mt in range(5):
                    a(f"s_add_u32 s31, s32, {Y + (mt//2)*4096}")
                    a(f"buffer_load_dwordx2 v[{Yr+2*mt}:{Yr+2*mt+1}], v5, s[8:11], s31 offen offset:{(mt%2)*2048}"); vm.issue("x")
    for rnd, mts in enumerate(([0, 1, 2], [3, 4])):
        if rnd == 1: a("s_barrier")
        for n in range(1, 4):
            for k, mt in enumerate(mts):
                acc = ACC2 + (n * 5 + mt) * 4
                a(f"ds_write_b128 v{7+n}, v[{acc}:{acc+3}] offset:{k*1024}")
        a("s_waitcnt lgkmcnt(0)\ns_barrier")
        for n in range(3):
            for k, mt in enumerate(mts):
                r = HR0 + (n * 3 + k) * 4
                a(f"ds_read_b128 v[{r}:{r+3}], v7 offset:{n*3072 + k*1024}")
        a("s_waitcnt lgkmcnt(0)")
        for n in range(3):
            for k, mt in enumerate(mts):
                r = HR0 + (n * 3 + k) * 4
                acc = ACC2 + mt * 4
                a(f"v_pk_add_f32 v[{acc}:{acc+1}], v[{acc}:{acc+1}], v[{r}:{r+1}]")
                a(f"v_pk_add_f32 v[{acc+2}:{acc+3}], v[{acc+2}:{acc+3}], v[{r+2}:{r+3}]")
    vm.wait("x")
    A = lambda i: f"v[{ACC2+2*i}:{ACC2+2*i+1}]"
    U = 104
    Pk = 124
    for i in range(10):
        a(f"v_lshlrev_b32 v{U+2*i}, 16, v{XRr+i}")
        a(f"v_and_b32 v{U+2*i+1}, s39, v{XRr+i}")
    for i in range(10):
        a(f"v_pk_add_f32 {A(i)}, {A(i)}, v[{U+2*i}:{U+2*i+1}]")
    for i in range(10):
        a(f"v_cvt_pk_bf16_f32 v{Pk+i}, v{ACC2+2*i}, v{ACC2+2*i+1}")
    if last:
        a(f"""
    v_mul_u32_u24 v11, 1280, v6
    v_lshl_add_u32 v11, v4, 3, v11
    s_mul_i32 s31, s25, 160
    """)
        for mt in range(5):
            a(f"buffer_store_dwordx2 v[{Pk+2*mt}:{Pk+2*mt+1}], v11, s[12:15], s31 offen offset:{32*mt}")
        return
    def stats_partial(dst):
        a(f"v_pk_add_f32 v[12:13], {A(0)}, {A(1)}")
        a(f"v_pk_mul_f32 v[14:15], {A(0)}, {A(0)}")
        for i in range(1, 10):
            if i >= 2: a(f"v_pk_add_f32 v[12:13], v[12:13], {A(i)}")
            a(f"v_pk_fma_f32 v[14:15], {A(i)}, {A(i)}, v[14:15]")
        a("v_add_f32 v12, v12, v13\nv_add_f32 v13, v14, v15")
        xlane_sum_q(a, 12, 13, 14, 15)
        a(f"""
    s_lshl_b32 s31, s25, 3
    s_add_u32 s31, s31, {dst}
    s_mov_b64 exec, 0xffff
    buffer_store_dwordx2 v[12:13], v11, s[8:11], s31 offen sc1
    s_mov_b64 exec, -1
    """)
    def unpack_A():
        for i in range(10):
            a(f"v_lshlrev_b32 v{ACC2+2*i}, 16, v{Pk+i}")
            a(f"v_and_b32 v{ACC2+2*i+1}, s39, v{Pk+i}")
    a("v_lshlrev_b32 v11, 6, v6               ; token*64")
    unpack_A()
    stats_partial(ST2)
    a(f"""
    v_lshl_add_u32 v16, v4, 4, v11
    s_mov_b32 s31, {ST2}
    s_mov_b32 s34, 0x100000
    """)
    for i in range(10):
        a(f"v_lshlrev_b32 v{U+2*i}, 16, v{Yr+i}")
        a(f"v_and_b32 v{U+2*i+1}, s39, v{Yr+i}")
    L0 = a.label("g2poll"); L1 = a.label("g2ok")
    a(f"""
{L0}:
    buffer_load_dwordx4 v[12:15], v16, s[8:11], s31 offen sc1
    s_waitcnt vmcnt(0)
    v_max_u32 v17, v13, v15
    v_cmp_eq_u32 vcc, -1, v17
    s_cbranch_vccz {L1}
    s_sub_u32 s34, s34, 1
    s_cbranch_scc0 {L0}
{L1}:
    v_pk_add_f32 v[12:13], v[12:13], v[14:15]
    """)
    xlane_sum_q(a, 12, 13, 14, 15)
    ln_stats(a, 12, 13, 16, 18)
    T = 136
    for i in range(10):
        a(f"v_pk_add_f32 v[{T+2*i}:{T+2*i+1}], {A(i)}, v[16:17] op_sel_hi:[1,0] neg_lo:[0,1] neg_hi:[0,1]")
    for i in range(10):
        a(f"v_pk_mul_f32 v[{U+2*i}:{U+2*i+1}], v[{U+2*i}:{U+2*i+1}], v[18:19] op_sel_hi:[1,0]")
    for i in range(10):
        a(f"v_pk_fma_f32 {A(i)}, v[{T+2*i}:{T+2*i+1}], v[{U+2*i}:{U+2*i+1}], {A(i)}")
    for i in range(10):
        a(f"v_cvt_pk_bf16_f32 v{Pk+i}, v{ACC2+2*i}, v{ACC2+2*i+1}")
    for mt in range(5):
        a(f"s_add_u32 s31, s32, {X3 + (mt//2)*4096}")
        a(f"buffer_store_dwordx2 v[{Pk+2*mt}:{Pk+2*mt+1}], v5, s[8:11], s31 offen offset:{(mt%2)*2048} {sc}")
    unpack_A()
    stats_partial(ST3)

def wrap(name, body):
    a = Asm()
    a.uid = abs(hash(name)) % 1000 * 100
    a(f"s_cmp_ge_u32 s2, 256\ns_cbranch_scc1 L_{name}_end")
    ids(a)
    body(a)
    a(f"L_{name}_end:\ns_endpgm")
    return a
```

```python
from common import *

def prep_kernel():
    a = Asm()
    vm = Cnt(a, "vmcnt", 63)
    a("""
    s_cmp_ge_u32 s2, 256
    s_cbranch_scc1 L_prep_end
    s_load_dwordx4 s[4:7], s[0:1], 0        ; q, k
    s_load_dwordx4 s[12:15], s[0:1], 16     ; v, shift_k
    s_load_dwordx2 s[16:17], s[0:1], 96     ; ws
    ; ---- part (a) indices: u = t/40, p = t%40
    v_mul_u32_u24 v1, 1639, v0
    v_lshrrev_b32 v1, 16, v1                ; u
    v_mul_u32_u24 v2, 40, v1
    v_sub_u32 v2, v0, v2                    ; p
    s_lshr_b32 s3, s2, 3
    s_and_b32 s18, s2, 7
    s_lshl_b32 s19, s3, 6
    v_lshl_add_u32 v3, v1, 3, s19           ; n0 = 64 i + 8 u
    s_mul_i32 s19, s18, 80
    v_lshl_add_u32 v4, v2, 1, s19           ; ch0 = 80 j + 2 p
    v_mul_u32_u24 v5, 1280, v3
    v_lshl_add_u32 v5, v4, 1, v5
    v_subrev_u32 v6, 5120, v5
    v_cmp_eq_u32 vcc, 0, v3
    v_mov_b32 v7, 0x80000000
    v_cndmask_b32 v6, v6, v7, vcc
    v_lshlrev_b32 v7, 3, v4
    v_and_b32 v8, 3, v0
    v_lshlrev_b32 v8, 1, v8
    v_bfe_u32 v9, v0, 2, 1
    v_or_b32 v8, v8, v9                     ; tk
    v_lshrrev_b32 v10, 3, v0                ; slot
    s_lshl_b32 s19, s2, 3
    v_add_u32 v11, s19, v8                  ; token
    v_mul_u32_u24 v12, 1280, v11
    v_lshl_add_u32 v12, v10, 5, v12         ; q offset
    s_mov_b32 s40, 5120
    s_waitcnt lgkmcnt(0)
    """)
    srd(a, 20, 4, ACT_BYTES); srd(a, 24, 6, ACT_BYTES); srd(a, 28, 12, ACT_BYTES); srd(a, 32, 14, D * 8); srd(a, 36, 16, WS_USED)
    for r in range(4):
        a(f"buffer_load_dword v{16+r}, v6, s[24:27], 0 offen offset:{1280*r}"); vm.issue("a")
    for r in range(8):
        so = "0" if r < 4 else "s40"
        a(f"buffer_load_dword v{20+r}, v5, s[24:27], {so} offen offset:{1280*(r%4)}"); vm.issue("a")
    a("buffer_load_dword v28, v6, s[28:31], 0 offen offset:3840"); vm.issue("a")
    for r in range(8):
        so = "0" if r < 4 else "s40"
        a(f"buffer_load_dword v{29+r}, v5, s[28:31], {so} offen offset:{1280*(r%4)}"); vm.issue("a")
    a("buffer_load_dwordx4 v[40:43], v7, s[32:35], 0 offen"); vm.issue("a")
    a("buffer_load_dwordx4 v[44:47], v12, s[20:23], 0 offen"); vm.issue("b")
    a("buffer_load_dwordx4 v[48:51], v12, s[20:23], 0 offen offset:16"); vm.issue("b")
    a(f"""
    s_mul_i32 s19, s2, 1536
    s_add_u32 s19, s19, {ST1}
    v_lshl_add_u32 v13, v0, 4, s19
    s_lshl_b32 s19, s2, 8
    s_add_u32 s19, s19, {FL - 96*16}
    v_lshl_add_u32 v14, v0, 4, s19
    v_cmp_gt_u32 vcc, 96, v0
    v_mov_b32 v52, 0
    v_cndmask_b32 v13, v14, v13, vcc
    v_cndmask_b32 v52, v52, -1, vcc
    v_mov_b32 v53, v52
    v_mov_b32 v54, v52
    v_mov_b32 v55, v52
    v_cmp_gt_u32 vcc, 112, v0
    s_and_saveexec_b64 s[46:47], vcc
    s_cbranch_execz L_prep_nod
    buffer_store_dwordx4 v[52:55], v13, s[36:39], 0 offen
L_prep_nod:
    s_mov_b64 exec, s[46:47]
    """)
    a(f"""
    s_mov_b32 s41, {XT}
    s_mov_b32 s42, {XT + XT_CP}
    s_mov_b32 s43, {XT + XT_CH}
    s_mov_b32 s44, {XT + XT_CH + XT_CP}
    s_mov_b32 s45, 0xffff0000
    v_mul_u32_u24 v13, {XT_CH}, v4
    v_lshlrev_b32 v14, 1, v3
    v_sub_u32 v13, v13, v14
    v_add_u32 v13, 4080, v13
    v_lshlrev_b32 v14, 17, v10
    v_and_b32 v15, 1, v8
    v_lshl_add_u32 v14, v15, 14, v14
    v_lshrrev_b32 v15, 1, v11
    v_lshl_add_u32 v14, v15, 4, v14
    s_waitcnt vmcnt(0)
    """)
    for r in range(12):
        a(f"v_lshlrev_b32 v{64+2*r}, 16, v{16+r}")
        a(f"v_and_b32 v{65+2*r}, s45, v{16+r}")
    for r in range(9):
        a(f"v_lshlrev_b32 v{88+2*r}, 16, v{28+r}")
        a(f"v_and_b32 v{89+2*r}, s45, v{28+r}")
    a("""
    v_lshlrev_b32 v106, 16, v40
    v_lshlrev_b32 v107, 16, v42
    v_and_b32 v108, s45, v40
    v_and_b32 v109, s45, v42
    v_lshlrev_b32 v110, 16, v41
    v_lshlrev_b32 v111, 16, v43
    v_and_b32 v112, s45, v41
    v_and_b32 v113, s45, v43
    """)
    K = lambda r: f"v[{64+2*r}:{65+2*r}]"
    V = lambda r: f"v[{88+2*r}:{89+2*r}]"
    W = lambda j: f"v[{106+2*j}:{107+2*j}]"
    KV = lambda m: f"v[{16+2*m}:{17+2*m}]"
    for m in range(9):
        a(f"v_pk_mul_f32 {KV(m)}, {K(m)}, {W(3)}")
    for j in (2, 1, 0):
        for m in range(9):
            a(f"v_pk_fma_f32 {KV(m)}, {K(m+3-j)}, {W(j)}, {KV(m)}")
    for m in range(9):
        a(f"v_pk_mul_f32 {KV(m)}, {KV(m)}, {V(m)}")
    for c in range(2):
        for cp in range(2):
            base = 64 + (c * 2 + cp) * 4
            for i in range(4):
                m = 8 - cp - 2 * i
                a(f"v_cvt_pk_bf16_f32 v{base+i}, v{16+2*m+c}, v{16+2*(m-1)+c}")
    for i in range(4):
        a(f"buffer_store_dwordx4 v[{64+4*i}:{67+4*i}], v13, s[36:39], s{41+i} offen")
    a("""
    v_mov_b32 v80, 0
    v_mov_b32 v81, 0
    v_mov_b32 v82, 0
    v_mov_b32 v83, 0
    v_cmp_eq_u32 vcc, 0, v3
    s_and_saveexec_b64 s[46:47], vcc
    s_cbranch_execz L_prep_notail
    """)
    for i in range(4):
        a(f"buffer_store_dwordx4 v[80:83], v13, s[36:39], s{41+i} offen offset:16")
        a(f"buffer_store_dwordx4 v[80:83], v13, s[36:39], s{41+i} offen offset:32")
    a("""
L_prep_notail:
    s_mov_b64 exec, s[46:47]
    """)
    for i in range(8):
        a(f"v_lshlrev_b32 v{88+2*i}, 16, v{44+i}")
        a(f"v_and_b32 v{89+2*i}, s45, v{44+i}")
    X = lambda i: f"v[{88+2*i}:{89+2*i}]"
    a(f"v_pk_add_f32 v[104:105], {X(0)}, {X(1)}")
    a(f"v_pk_mul_f32 v[106:107], {X(0)}, {X(0)}")
    for i in range(1, 8):
        if i >= 2: a(f"v_pk_add_f32 v[104:105], v[104:105], {X(i)}")
        a(f"v_pk_fma_f32 v[106:107], {X(i)}, {X(i)}, v[106:107]")
    a("""
    v_add_f32 v104, v104, v105
    v_add_f32 v105, v106, v107
    v_add_f32_dpp v104, v104, v104 row_ror:8 row_mask:0xf bank_mask:0xf
    v_add_f32_dpp v105, v105, v105 row_ror:8 row_mask:0xf bank_mask:0xf
    v_mov_b32 v106, v104
    v_mov_b32 v107, v105
    v_permlane16_swap_b32 v104, v106
    v_permlane16_swap_b32 v105, v107
    v_add_f32 v104, v104, v106
    v_add_f32 v105, v105, v107
    v_mov_b32 v106, v104
    v_mov_b32 v107, v105
    v_permlane32_swap_b32 v104, v106
    v_permlane32_swap_b32 v105, v107
    v_add_f32 v104, v104, v106
    v_add_f32 v105, v105, v107
    v_lshrrev_b32 v108, 6, v0
    v_and_b32 v109, 7, v0
    v_lshlrev_b32 v109, 3, v109
    v_lshl_add_u32 v108, v108, 6, v109
    ds_write_b64 v108, v[104:105]
    s_waitcnt lgkmcnt(0)
    s_barrier
    ds_read_b64 v[104:105], v109
    ds_read_b64 v[106:107], v109 offset:64
    ds_read_b64 v[110:111], v109 offset:128
    ds_read_b64 v[112:113], v109 offset:192
    ds_read_b64 v[114:115], v109 offset:256
    s_waitcnt lgkmcnt(0)
    v_pk_add_f32 v[104:105], v[104:105], v[106:107]
    v_pk_add_f32 v[110:111], v[110:111], v[112:113]
    v_pk_add_f32 v[104:105], v[104:105], v[114:115]
    v_pk_add_f32 v[104:105], v[104:105], v[110:111]
    """)
    ln_stats(a, 104, 105, 106, 108)
    for i in range(8):
        a(f"v_pk_add_f32 {X(i)}, {X(i)}, v[106:107] op_sel_hi:[1,0] neg_lo:[0,1] neg_hi:[0,1]")
    for i in range(8):
        a(f"v_pk_mul_f32 {X(i)}, {X(i)}, v[108:109] op_sel_hi:[1,0]")
    for g in range(4):
        a(f"v_mov_b32 v{16+4*g}, v{44+2*g}")
        a(f"v_mov_b32 v{17+4*g}, v{45+2*g}")
        a(f"v_cvt_pk_bf16_f32 v{18+4*g}, v{88+4*g}, v{89+4*g}")
        a(f"v_cvt_pk_bf16_f32 v{19+4*g}, v{90+4*g}, v{91+4*g}")
        a(f"s_mov_b32 s48, {QN + g*32768}")
        a(f"buffer_store_dwordx4 v[{16+4*g}:{19+4*g}], v14, s[36:39], s48 offen")
    a("""
L_prep_end:
    s_endpgm
    """)
    return a
```

```python
import sys
from asm import *
from common import *
from k_prep import prep_kernel
from k_conv import conv_kernel, CONV_LDS
import k_gemm as G

NAME = "interleave_layers__ssm_conv_h3__glu_gated_geglu__prompt"
ref = open(f"cdna_kernels/{NAME}.s.ref").read()
head = "".join(l + "\n" for l in ref.splitlines() if l.startswith(";") and "@launch" not in l and "Override" not in l and "grid=ceil" not in l)

def build(mode="m1"):
    ks = []
    ks.append(("prep_kernel", prep_kernel(), 120, None, 256, 320, 512))
    ks.append(("conv_kernel", conv_kernel(), 512, 256, 256, 256, CONV_LDS))
    g = lambda n, f: (n, G.wrap(n, f), 512, 256, 256, 256, G.GEMM_LDS)
    ks.append(g("g1a_kernel", lambda a: G.gemm1(a, X1, H1, ST1, True, True)))
    ks.append(g("g2a_kernel", lambda a: G.gemm2(a, H1, X1, False, True)))
    ks.append(g("g1b_kernel", lambda a: G.gemm1(a, X3, H2, ST3, False, True)))
    ks.append(g("g2b_kernel", lambda a: G.gemm2(a, H2, X3, True, True)))
    out = head
    for n, a, v, acc, gr, bl, lds in ks:
        out += f"; @launch kernel={n} grid=({gr},1,1) block=({bl},1,1) lds={lds}\n"
    out += '.amdgcn_target "amdgcn-amd-amdhsa--gfx950"\n.text\n'
    for n, a, *_ in ks:
        out += kernel_text(n, a)
    out += '.section .rodata,"a"\n'
    for n, a, v, acc, *_ in ks:
        out += descriptor(n, v, 102, acc)
    return out

if __name__ == "__main__":
    dst = sys.argv[1] if len(sys.argv) > 1 else f"cdna_kernels/{NAME}.s"
    open(dst, "w").write(build())
    print("wrote", dst)
```

```python
from asm import Asm

S, D, F = 2048, 640, 1536
def _al(x, a=4096): return (x + a - 1) // a * a
XT_CH = 4096
off = 0
XT = off;  off = _al(off + D * XT_CH)
MR = off;  off = _al(off + S * 8)
X1 = off;  off = _al(off + S * D * 2)
Y  = off;  off = _al(off + S * D * 2)
X3 = X1
H1 = off;  off = _al(off + S * F * 2)
H2 = H1
WDL = off; off = _al(off + D * F * 2)
CS = off;  off = _al(off + 32 * 3072)
ST1 = off; ST2 = ST1 + 131072; ST3 = ST2 + 131072; off = ST3 + 131072
FL = off;  off = _al(off + 65536)
STAMP = off; off = _al(off + 8 * 256 * 8 * 256)
WS_USED = off
DIAG = False
TB = 160 * 512
ACT_BYTES = S * D * 2

class Cnt:
    def __init__(self, a, kind, maxn):
        self.a, self.kind, self.q, self.maxn = a, kind, [], maxn
        self.count = {}
    def issue(self, tag):
        self.q.append(tag)
        self.count[tag] = self.count.get(tag, 0) + 1
        assert len(self.q) <= self.maxn, (self.kind, len(self.q))
    def wait(self, tag):
        idx = [i for i, t in enumerate(self.q) if t == tag]
        if not idx: return
        n = len(self.q) - 1 - idx[-1]
        self.a(f"s_waitcnt {self.kind}({n})")
        self.q = self.q[idx[-1] + 1:]
    def waitall(self):
        self.a(f"s_waitcnt {self.kind}(0)")
        self.q = []

def srd(a, d, lo, size):
    a(f"s_mov_b32 s{d}, s{lo}")
    a(f"s_and_b32 s{d+1}, s{lo+1}, 0xffff")
    a(f"s_mov_b32 s{d+2}, {size}")
    a(f"s_mov_b32 s{d+3}, 0x20000")

def rnd_bf16(a, v):
    a(f"v_cvt_pk_bf16_f32 v{v}, v{v}, v{v}")
    a(f"v_lshlrev_b32 v{v}, 16, v{v}")

def ln_stats(a, vs, vq, vm, vr):
    a(f"v_mul_f32 v{vm}, 0x3acccccd, v{vs}")
    a(f"v_mul_f32 v{vr}, 0x3acccccd, v{vq}")
    a(f"v_fma_f32 v{vr}, -v{vm}, v{vm}, v{vr}")
    a(f"v_max_f32 v{vr}, 0, v{vr}")
    rnd_bf16(a, vm)
    rnd_bf16(a, vr)
    a(f"v_add_f32 v{vr}, 0x3727c5ac, v{vr}")
    rnd_bf16(a, vr)
    a(f"v_sqrt_f32 v{vr}, v{vr}")
    rnd_bf16(a, vr)
    a(f"v_rcp_f32 v{vr}, v{vr}")


class Stamps:
    def __init__(self, a, kidx):
        self.a, self.k, self.n = a, kidx, 0
    def __call__(self, name=""):
        import common
        if not common.DIAG: return
        assert self.n < 22
        if self.n == 0: self.a("s_memtime s[92:93]")
        self.a(f"{common.STAMP_OP} s[{48+2*self.n}:{49+2*self.n}]   ; stamp {self.n} {name}")
        common.STAMP_NAMES.setdefault(self.k, []).append(name)
        self.n += 1
    def flush(self, wave_sgpr="s3", srd_="s[8:11]", vb=0):
        import common
        if not common.DIAG: return
        a = self.a
        a("s_memtime s[94:95]")
        a("s_waitcnt vmcnt(0) lgkmcnt(0)")
        a(f"s_lshl_b32 s96, s2, 3\ns_add_u32 s96, s96, {wave_sgpr}\ns_lshl_b32 s96, s96, 8\ns_add_u32 s96, s96, {STAMP + self.k*256*8*256}")
        a(f"s_mov_b64 exec, 1\nv_mov_b32 v{vb}, 0")
        for i in range(12):
            for j in range(4): a(f"v_mov_b32 v{vb+4+j}, s{48+4*i+j}")
            a(f"buffer_store_dwordx4 v[{vb+4}:{vb+7}], v{vb}, {srd_}, s96 offen offset:{16*i}")
            a("s_nop 1")
        a("s_mov_b64 exec, -1")
    def stash(self, ar):
        a = self.a
        a("s_memtime s[94:95]\ns_waitcnt lgkmcnt(0)")
        for i in range(48): a(f"v_writelane_b32 v48, s{48+i}, {i}")
        a(f"v_accvgpr_write_b32 a{ar}, v48")
    def unstash(self, ar):
        a = self.a
        a(f"s_lshl_b32 s96, s2, 3\ns_add_u32 s96, s96, s3\ns_lshl_b32 s96, s96, 8\ns_add_u32 s96, s96, {STAMP + self.k*256*8*256}")
        a(f"v_accvgpr_read_b32 v48, a{ar}\nv_lshlrev_b32 v49, 2, v1\ns_mov_b32 exec_hi, 0xffff")
        a("buffer_store_dword v48, v49, s[8:11], s96 offen\ns_mov_b64 exec, -1")
STAMP_NAMES = {}

def DIAG_ON():
    import common
    return common.DIAG

STAMP_OP = "s_memrealtime"
```

```python
from common import *
from collections import deque
import struct, math

def f2u(x): return struct.unpack("<I", struct.pack("<f", x))[0]
GC0 = -2.0 * math.sqrt(2.0 / math.pi) * math.log2(math.e)
GC1 = GC0 * 0.044715

GA, UA = 0, 61568
CSF = 123136
RB = CSF + 3072
GEMM_LDS = 163840
RING = 12
NMAIN = 40 - RING
ACC1 = 48
TMP = 144
RING0 = 160
ACC2 = 24
F1 = FL
F3 = FL + 32768
XID = FL + 40960
SH = FL + 57344
GO = FL + 58368
SPIN = 0x40000
CA = 110592
CWS = 13312
CONV_W = 15
XSKIP = 2

def cost(s):
    op = s.split()[0]
    if op.startswith(("v_exp", "v_rcp", "v_sqrt", "v_swap", "v_permlane")): return 8
    return 4

def hslot(j): return (RING0 + (j % 9) * 16) if (j % 9) < 6 else (112 + ((j % 9) - 6) * 16)

import os
DETAIL = os.environ.get('DETAIL', '')
class Mega:
    def __init__(self, st):
        self.a = st.a
        self.st = st
        self.vm = Cnt(self.a, "vmcnt", 63)
        self.lg = Cnt(self.a, "lgkmcnt", 15)
        self.tail_blocks = []
        self.vq = deque()
        self.fq = deque()

    def vslot(self, n=1):
        done = 0
        i = 0
        while done < n and i < len(self.vq):
            ok, fn = self.vq[i]
            if ok():
                del self.vq[i]; fn(); done += 1
            else:
                i += 1
        return done
    def ensure(self, tag, n):
        while self.vm.count.get(tag, 0) < n:
            assert self.vslot(1) == 1, tag
    def fill(self, budget):
        while self.fq:
            x = self.fq[0]
            c = 4 if callable(x) else cost(x)
            if c > budget: break
            self.fq.popleft()
            if callable(x): x()
            else: self.a(x)
            budget -= c
    def flush_fill(self):
        self.fill(1 << 30)

    def ids(self):
        a = self.a
        a(f"""
    s_load_dwordx2 s[8:9], s[0:1], 96       ; ws
    s_load_dwordx4 s[4:7], s[0:1], 32
    s_load_dwordx4 s[40:43], s[0:1], 56
    s_load_dwordx2 s[12:13], s[0:1], 80     ; out
    v_lshrrev_b32 v2, 6, v0
    v_and_b32 v1, 63, v0
    v_readfirstlane_b32 s3, v2
    s_and_b32 s20, s2, 7
    s_lshr_b32 s21, s2, 3                   ; m
    v_lshlrev_b32 v2, 4, v1                 ; lane*16
    s_mov_b32 s39, 0xffff0000
    s_lshl_b32 s24, s20, 2
    s_add_u32 s24, s24, s3                  ; tb1 = 4G + w
    v_lshrrev_b32 v3, 5, v1                 ; hf
    v_and_b32 v4, 31, v1                    ; c
    v_lshlrev_b32 v6, 4, v4
    v_lshl_add_u32 v5, v3, 10, v6
    v_lshl_add_u32 v6, v3, 11, v6
    v_bfe_u32 v10, v1, 2, 2
    v_lshl_add_u32 v10, v3, 3, v10
    v_mul_u32_u24 v10, 96, v10
    v_and_b32 v11, 3, v1
    v_lshl_add_u32 v10, v11, 3, v10
    v_bfe_u32 v11, v1, 4, 1
    v_mul_u32_u24 v11, {UA}, v11
    v_add_u32 v10, v10, v11
    v_lshlrev_b32 v11, 2, v4                ; (lane&31)*4
    s_lshr_b32 s44, s21, 3
    s_lshl_b32 s45, s20, 2
    s_add_u32 s44, s44, s45                 ; tb2
    s_and_b32 s45, s21, 7                   ; cb2
    s_mov_b32 s38, 0
    """)

    def wread(self, ks, mt, dst, tag):
        if ks == 40:
            self.a(f"ds_read_b128 v[{dst}:{dst+3}], v7 offset:{mt*1024}"); self.lg.issue(tag)
            return
        for h in range(2):
            self.a(f"ds_read_b64_tr_b16 v[{dst+2*h}:{dst+2*h+1}], v10 offset:{ks*1536 + mt*32 + h*384}"); self.lg.issue(tag)

    def epi_ops(self, mt, par, packed):
        acc = ACC1 + (mt * 2 + par) * 16
        T = TMP + 8 * par
        o = []
        if packed:
            P = lambda i: f"v[{acc+2*i}:{acc+2*i+1}]"
            Tm = lambda i: f"v[{T+2*i}:{T+2*i+1}]"
            p = par
            for i in range(4): o.append(f"v_pk_mul_f32 {Tm(i)}, {P(i)}, {P(i)}")
            for i in range(4): o.append(f"v_pk_fma_f32 {Tm(i)}, {Tm(i)}, v[14:15], v[12:13] op_sel:[0,{p},{p}] op_sel_hi:[1,{p},{p}]")
            for i in range(4): o.append(f"v_pk_mul_f32 {Tm(i)}, {Tm(i)}, {P(i)}")
            for i in range(8): o.append(f"v_exp_f32 v{T+i}, v{T+i}")
            for i in range(4): o.append(f"v_pk_mul_f32 {P(i)}, {P(i)}, {P(i+4)}")
            for i in range(4): o.append(f"v_pk_fma_f32 {Tm(i)}, {Tm(i)}, v[16:17], v[16:17] op_sel:[0,{p},{p}] op_sel_hi:[1,{p},{p}]")
            for i in range(8): o.append(f"v_rcp_f32 v{T+i}, v{T+i}")
            for i in range(4): o.append(f"v_pk_mul_f32 {P(i)}, {P(i)}, {Tm(i)}")
        else:
            for i in range(8): o.append(f"v_mul_f32 v{T+i}, v{acc+i}, v{acc+i}")
            for i in range(8): o.append(f"v_fma_f32 v{T+i}, v{T+i}, v{14+par}, v{12+par}")
            for i in range(8): o.append(f"v_mul_f32 v{T+i}, v{T+i}, v{acc+i}")
            for i in range(8):
                o.append(f"v_exp_f32 v{T+i}, v{T+i}")
                o.append(f"v_mul_f32 v{acc+i}, v{acc+i}, v{acc+8+i}")
            for i in range(8): o.append(f"v_fma_f32 v{T+i}, v{T+i}, v{16+par}, v{16+par}")
            for i in range(8): o.append(f"v_rcp_f32 v{T+i}, v{T+i}")
            for i in range(8): o.append(f"v_mul_f32 v{acc+i}, v{acc+i}, v{T+i}")
        for i in range(4): o.append(f"v_cvt_pk_bf16_f32 v{acc+8+i}, v{acc+2*i}, v{acc+2*i+1}")
        def store():
            ins = f"buffer_store_dwordx4 v[{acc+8}:{acc+11}], v2, s[8:11], s{27+par} offen offset:{mt*1024}"
            if self.layer == 0: self.a(ins + " sc1")
            else: self.dstore([ins])
            self.vm.issue(f"h{mt}")
        o.append(store)
        return o

    def dstore(self, instrs):
        a = self.a
        Ls, Lb = a.label("wt"), a.label("wb")
        a(f"s_cmp_eq_u32 s38, 0\ns_cbranch_scc1 {Ls}")
        for i in instrs: a(i)
        a(f"{Lb}:")
        self.tail_blocks.append(f"{Ls}:\n" + "\n".join(i + (" sc1" if i.startswith("buffer_store") else "") for i in instrs) + f"\ns_nop 1\ns_branch {Lb}\n")

    def flag_store(self, sreg, off):
        self.a("s_mov_b64 exec, 1")
        self.dstore([f"buffer_store_dword v9, v8, s[8:11], {sreg} offen offset:{off}"])
        self.a("s_mov_b64 exec, -1")
        self.vm.issue("flag")

    def poll_issue(self, sreg, dst):
        self.a(f"buffer_load_dword v{dst}, v11, s[8:11], {sreg} offen sc1"); self.vm.issue("poll")
    def poll_check(self, sreg, dst, mask):
        a = self.a
        self.vm.wait("poll")
        Lr, Lb = a.label("spin"), a.label("back")
        a(f"""
    v_cmp_ne_u32 vcc, 0, v{dst}
    s_and_b32 s34, vcc_lo, {hex(mask)}
    s_cmp_lg_u32 s34, {hex(mask)}
    s_cbranch_scc1 {Lr}
{Lb}:
    """)
        self.tail_blocks.append(f"""
{Lr}:
    s_mov_b32 s35, {SPIN}
{Lr}_l:
    buffer_load_dword v{dst}, v11, s[8:11], {sreg} offen sc1
    s_waitcnt vmcnt(0)
    v_cmp_ne_u32 vcc, 0, v{dst}
    s_nop 1
    s_and_b32 s34, vcc_lo, {hex(mask)}
    s_cmp_eq_u32 s34, {hex(mask)}
    s_cbranch_scc1 {Lb}
    s_sub_u32 s35, s35, 1
    s_cbranch_scc0 {Lr}_l
    s_branch {Lb}
""")

    def w1dma(self, i):
        a = self.a
        r, u = i // 3, i % 3
        a(f"s_add_u32 m0, s31, {r*6144 + u*1024}")
        a(f"s_add_u32 s33, s30, {r*64*3072}" if u == 0 else "s_nop 0")
        a(f"buffer_load_dwordx4 v{12+u}, s[16:19], s33 offen lds"); self.vm.issue("W")
    def wdl(self, j, mt):
        a = self.a
        i = j * 5 + mt
        if mt == 0:
            a(f"s_add_u32 s47, s46, s{97 + j%4}")
            if j >= 4: a(f"s_add_u32 s47, s47, {(j//4)*20480}")
        if mt < 4: a(f"buffer_load_dwordx4 a[{4*i}:{4*i+3}], v2, s[8:11], s47 offen offset:{mt*1024}")
        else: a(f"buffer_load_dwordx4 a[{4*i}:{4*i+3}], v0, s[8:11], s47 offen")
        self.vm.issue(f"D{j}")

    def front(self):
        a, vm, lg, st = self.a, self.vm, self.lg, self.st
        a(f"""
    s_lshr_b32 s27, s3, 1
    s_mul_i32 s30, s27, {32*3072}
    s_mul_i32 s31, s21, 96
    s_add_u32 s30, s30, s31
    s_mul_i32 s31, s27, 3072
    s_and_b32 s27, s3, 1
    s_mul_i32 s27, s27, {UA}
    s_add_u32 s31, s31, s27
    s_mul_i32 s46, s45, 245760
    s_mul_i32 s47, s3, 61440
    s_add_u32 s46, s46, s47
    s_add_u32 s46, s46, {WDL}
    v_add_u32 v0, 4096, v2
    """)
        for u in range(3):
            a(f"v_add_u32 v15, {64*u}, v1\nv_mul_u32_u24 v16, 10923, v15\nv_lshrrev_b32 v16, 16, v16\nv_mul_u32_u24 v16, 2976, v16\nv_lshl_add_u32 v{12+u}, v15, 4, v16")
        for jj in range(4):
            a(f"s_lshr_b32 s27, s21, 3\ns_add_u32 s27, s27, {jj}\ns_and_b32 s27, s27, 3\ns_mul_i32 s{97+jj}, s27, 5120")
        a(f"""
    s_getreg_b32 s37, hwreg(HW_REG_XCC_ID)
    s_lshl_b32 s22, s20, 11
    s_and_b32 s37, s37, 15
    s_add_u32 s22, s22, {XID}
    s_add_u32 s37, s37, 1
    s_lshl_b32 s27, s21, 6
    s_lshl_b32 s28, s3, 2
    s_add_u32 s27, s27, s28
    v_mov_b32 v8, s27
    v_mov_b32 v9, s37
    s_waitcnt lgkmcnt(0)
    s_and_b32 s9, s9, 0xffff
    s_mov_b32 s10, {WS_USED}
    s_mov_b32 s11, 0x20000
    s_bitcmp1_b32 s3, 0
    s_cselect_b32 s16, s42, s40
    s_cselect_b32 s17, s43, s41
    s_and_b32 s17, s17, 0xffff
    s_mov_b32 s18, {D*F*2}
    s_mov_b32 s19, 0x20000
    s_and_b32 s13, s13, 0xffff
    s_mov_b32 s14, {ACT_BYTES}
    s_mov_b32 s15, 0x20000
    s_cmp_ge_u32 s21, 20
    s_cbranch_scc1 L_idle
    s_mul_i32 s40, s20, 20
    s_add_u32 s40, s40, s21                 ; g
    s_lshl_b32 s41, s40, 2
    s_add_u32 s41, s41, s3                  ; d
    s_lshl_b32 s42, s41, 13
    s_add_u32 s42, s42, {XT}
    s_lshl_b32 s25, s41, 12
    s_mul_i32 s26, s3, {CWS}
    s_add_u32 s26, s26, {CA}
    """)
        a(f"s_add_u32 m0, s26, 4288")
        srd(a, 32, 4, D * S * 2)
        st("ids")
        for i in range(4): a(f"buffer_load_dwordx4 v2, s[8:11], s42 offen offset:{1024*i} lds"); vm.issue("x")
        a(f"s_mov_b32 m0, s26\ns_add_u32 s43, s42, {XT_CP}")
        for i in range(4): a(f"buffer_load_dwordx4 v2, s[8:11], s43 offen offset:{1024*i} lds"); vm.issue("x")
        a(f"s_add_u32 s27, s26, {8704+512}\ns_mov_b32 m0, s27\ns_add_u32 s4, s4, s25\ns_addc_u32 s5, s5, 0")
        for i in range(4): a(f"buffer_load_dwordx4 v2, s[32:35], s25 offen offset:{1024*i} lds"); vm.issue("x")
        a(f"""
    s_load_dword s28, s[4:5], 0
    s_lshr_b32 s29, s41, 1
    s_lshl_b32 s29, s29, 2
    s_add_u32 s6, s6, s29
    s_addc_u32 s7, s7, 0
    s_load_dword s29, s[6:7], 0
    s_mov_b64 exec, 1
    buffer_store_dword v9, v8, s[8:11], s22 offen sc1
    s_mov_b64 exec, -1
    """)
        vm.issue("xid")
        FB, GB, AC, QR = 64, 128, 32, 192
        a(f"""
    v_and_b32 v28, 15, v1                   ; b / a
    v_lshrrev_b32 v29, 4, v1                ; q
    v_mov_b32 v24, 0
    v_mov_b32 v25, 0
    v_mov_b32 v26, 0
    v_mov_b32 v27, 0
    v_lshl_add_u32 v15, v1, 3, s26
    ds_write_b64 v15, v[24:25] offset:8704
    v_lshrrev_b32 v15, 1, v1
    v_mul_u32_u24 v15, 4288, v15
    v_and_b32 v16, 1, v1
    v_lshl_add_u32 v15, v16, 4, v15
    v_add_u32 v15, s26, v15
    s_mov_b64 exec, 15
    ds_write_b128 v15, v[24:27] offset:4096
    s_mov_b64 exec, -1
    ; F bases: 28 + 16 q - 4 (b&7) + (b>=8 ? 4288 : 0) + 1024 (3 - i)
    v_and_b32 v15, 7, v28
    v_lshlrev_b32 v15, 2, v15
    v_lshlrev_b32 v16, 4, v29
    v_sub_u32 v15, v16, v15
    v_lshrrev_b32 v17, 3, v28
    v_mul_u32_u24 v17, 4288, v17
    v_add3_u32 v15, v15, v17, s26
    v_add_u32 v19, 28, v15
    v_add_u32 v18, {28+1024}, v15
    v_add_u32 v17, {28+2048}, v15
    v_add_u32 v16, {28+3072}, v15
    v_lshlrev_b32 v20, 5, v28
    v_lshl_add_u32 v20, v29, 4, v20
    v_add_u32 v20, s26, v20
    s_lshl_b32 s43, s3, 6
    s_add_u32 s43, s43, s26
    v_lshlrev_b32 v21, 11, v3
    v_lshl_add_u32 v21, v28, 4, v21
    v_and_b32 v22, 1, v29
    v_lshl_add_u32 v21, v22, 3, v21
    v_add_u32 v21, s43, v21
    v_lshrrev_b32 v22, 2, v28
    v_mul_u32_u24 v22, {CWS+64}, v22
    v_and_b32 v23, 3, v28
    v_lshl_add_u32 v22, v23, 3, v22
    v_lshl_add_u32 v22, v29, 5, v22
    s_lshl_b32 s43, s3, 7
    s_add_u32 s43, s43, {CA}
    v_add_u32 v22, s43, v22
    s_lshl_b32 s42, s3, 10
    s_add_u32 s42, s42, {MR}
    v_mul_u32_u24 v23, {TB}, v3
    v_lshl_add_u32 v23, v4, 4, v23
    s_mul_i32 s43, s3, {2*TB}
    s_lshl_b32 s25, s40, 9
    s_add_u32 s43, s43, s25
    s_waitcnt lgkmcnt(0)
    ; h'[0] = bf16(h[0] + D[d])
    s_lshl_b32 s28, s28, 16
    s_and_b32 s25, s29, 0xffff0000
    s_lshl_b32 s29, s29, 16
    s_bitcmp1_b32 s41, 0
    s_cselect_b32 s29, s25, s29
    v_mov_b32 v24, s28
    v_add_f32 v24, s29, v24
    v_cvt_pk_bf16_f32 v24, v24, v24
    v_mov_b32 v25, s27
    """)
        st("issued")
        vm.wait("x")
        st("landed")
        a("s_mov_b64 exec, 1\nds_write_b16 v25, v24\ns_mov_b64 exec, -1")
        def reads(rho):
            l = []
            fb, gb = FB + (rho & 1) * 32, GB + (rho & 1) * 32
            for k in range(8):
                sg = k
                o = (512 * (1 - (sg & 1)) + 448 - 64 * rho) // 4
                for h in range(2):
                    l.append(f"ds_read2_b32 v[{fb+4*sg+2*h}:{fb+4*sg+2*h+1}], v{16 + sg//2} offset0:{o+2*h} offset1:{o+2*h+1}")
                l.append(f"ds_read_b128 v[{gb+4*k}:{gb+4*k+3}], v20 offset:{8704 + 480 - 64*(rho - 8*k)}")
            return l
        for k, x in enumerate(reads(0)):
            if k in (10, 20): a("s_waitcnt lgkmcnt(3)")
            a(x)
        vq = deque()
        def qn(j, k):
            r = QR + 16 * k + 4 * j
            if k == 0:
                a(f"s_add_u32 s25, s43, {X1 + j*8*TB}")
                a(f"buffer_load_dwordx4 v[{r}:{r+3}], v23, s[8:11], s25 offen")
            else:
                a(f"s_add_u32 s25, s42, {j*4096}")
                a(f"buffer_load_dwordx4 v[{r}:{r+3}], v2, s[8:11], s25 offen")
            vm.issue("qn")
        for k in range(2):
            for j in range(4): vq.append(lambda j=j, k=k: qn(j, k))
        for i in range(CONV_W): vq.append(lambda i=i: self.w1dma(i))
        NPER = [5, 5, 3, 3, 3, 2, 2, 0]
        assert sum(NPER) == len(vq)
        first = [True] * 8
        for rho in range(8):
            a("s_waitcnt lgkmcnt(0)")
            if rho == 4: st("class4")
            rd = deque(reads(rho + 1)) if rho < 7 else deque()
            nper = NPER[rho]
            slots = [int(36 * (k + 0.5) / nper) for k in range(nper)]
            n = 0
            for sg in range(8):
                for k in range(0, 8 - sg):
                    T = sg + k
                    acc = f"v[{AC+4*T}:{AC+4*T+3}]"
                    fr, gr = FB + (rho & 1) * 32 + 4 * sg, GB + (rho & 1) * 32 + 4 * k
                    a(f"v_mfma_f32_16x16x32_bf16 {acc}, v[{fr}:{fr+3}], v[{gr}:{gr+3}], {'0' if first[T] else acc}")
                    first[T] = False
                    if n in slots and vq: vq.popleft()()
                    elif rd and n < 32: a(rd.popleft())
                    n += 1
            while rd: a(rd.popleft())
        assert not vq
        st("mfma")
        for T in range(8):
            a(f"v_cvt_pk_bf16_f32 v{FB+2*T}, v{AC+4*T}, v{AC+4*T+1}")
            a(f"v_cvt_pk_bf16_f32 v{FB+2*T+1}, v{AC+4*T+2}, v{AC+4*T+3}")
            a(f"ds_write_b64 v21, v[{FB+2*T}:{FB+2*T+1}] offset:{256*T}")
        a("s_waitcnt lgkmcnt(0)\ns_barrier")
        for j in range(4):
            for par in range(2):
                r = AC + 4 * j + 2 * par
                a(f"ds_read_b64_tr_b16 v[{r}:{r+1}], v22 offset:{512*j + 2048*par}")
        vm.wait("qn")
        for j in range(4):
            a(f"s_waitcnt lgkmcnt({6-2*j})")
            o = AC + 16 + 4 * j
            for par in range(2):
                r = QR + 4 * j + 2 * par
                mr = f"v[{QR+16+4*j+2*par}:{QR+17+4*j+2*par}]"
                y = AC + 4 * j + 2 * par
                for h in range(2):
                    t = FB + 8 * h
                    a(f"v_lshlrev_b32 v{t}, 16, v{r+h}")
                    a(f"v_and_b32 v{t+1}, s39, v{r+h}")
                    a(f"v_lshlrev_b32 v{t+4}, 16, v{y+h}")
                    a(f"v_and_b32 v{t+5}, s39, v{y+h}")
                    a(f"v_pk_add_f32 v[{t+2}:{t+3}], v[{t}:{t+1}], {mr} op_sel_hi:[1,0] neg_lo:[0,1] neg_hi:[0,1]")
                    a(f"v_pk_mul_f32 v[{t+4}:{t+5}], v[{t+4}:{t+5}], {mr} op_sel:[0,1] op_sel_hi:[1,1]")
                    a(f"v_pk_fma_f32 v[{t}:{t+1}], v[{t+2}:{t+3}], v[{t+4}:{t+5}], v[{t}:{t+1}]")
                    a(f"v_cvt_pk_bf16_f32 v{o+2*par+h}, v{t}, v{t+1}")
            a(f"s_add_u32 s25, s43, {X1 + j*8*TB}")
            a(f"buffer_store_dwordx4 v[{o}:{o+3}], v23, s[8:11], s25 offen sc1"); vm.issue("o")
        for j in range(4):
            a(f"s_add_u32 s25, s43, {Y + j*8*TB}")
            a(f"buffer_store_dwordx4 v[{AC+4*j}:{AC+4*j+3}], v23, s[8:11], s25 offen sc1"); vm.issue("o")
        st("stored")
        vm.wait("o")
        a("s_barrier")
        st("drained")
        Lx = a.label("arr")
        a(f"""
    s_cmp_lg_u32 s3, 0
    s_cbranch_scc1 {Lx}
    s_lshl_b32 s25, s20, 7
    s_add_u32 s25, s25, {SH}
    v_mov_b32 v24, 1
    v_mov_b32 v25, 0
    s_mov_b64 exec, 1
    buffer_atomic_add v24, v25, s[8:11], s25 offen sc0 sc1
    s_mov_b64 exec, -1
    s_waitcnt vmcnt(0)
    v_readfirstlane_b32 s25, v24
    s_cmp_lg_u32 s25, 19
    s_cbranch_scc1 {Lx}
    s_lshl_b32 s25, s20, 2
    s_add_u32 s25, s25, {GO}
    v_lshlrev_b32 v25, 7, v1
    v_mov_b32 v24, 1
    s_mov_b64 exec, 0xff
    buffer_store_dword v24, v25, s[8:11], s25 offen sc1
    s_mov_b64 exec, -1
{Lx}:
    """)
        for i in range(CONV_W, 21): self.w1dma(i)
        a("s_branch L_join")
        a("L_idle:")
        a("s_mov_b64 exec, 1\nbuffer_store_dword v9, v8, s[8:11], s22 offen sc1\ns_mov_b64 exec, -1")
        for i in range(21):
            if i >= 3: a("s_waitcnt vmcnt(2)")
            self.w1dma(i)
        a("L_join:")
        vm.q = ["?"] * 10
        a(f"""
    v_lshlrev_b32 v9, 4, v11
    buffer_load_dword v9, v9, s[8:11], s22 offen sc1
    s_min_u32 s26, s3, 2
    s_lshl_b32 s27, s26, 6
    s_mul_i32 s28, s21, 192
    s_add_u32 s27, s27, s28
    s_add_u32 s27, s27, {CS}
    v_and_b32 v7, 15, v1
    v_lshlrev_b32 v7, 2, v7
    v_bfe_u32 v8, v1, 4, 1
    v_mul_u32_u24 v8, 6144, v8
    v_add_u32 v7, v7, v8
    buffer_load_dword v32, v7, s[8:11], s27 offen
    s_add_u32 s27, s27, {3072*4}
    buffer_load_dword v40, v7, s[8:11], s27 offen
    s_add_u32 s27, s27, {3072*4}
    buffer_load_dword v41, v7, s[8:11], s27 offen
    s_add_u32 s27, s27, {3072*4}
    buffer_load_dword v42, v7, s[8:11], s27 offen
    s_add_u32 s27, s27, {3072*4}
    buffer_load_dword v43, v7, s[8:11], s27 offen
    s_lshl_b32 s26, s26, 10
    s_add_u32 s26, s26, {CSF}
    v_add_u32 v8, s26, v2
    s_lshl_b32 s22, s44, 2
    s_add_u32 s22, s22, s3
    s_lshl_b32 s23, s22, 10
    s_add_u32 s23, s23, {ST2 - 8*128}
    v_lshl_add_u32 v23, v1, 7, s23
    s_lshl_b32 s22, s22, 7
    s_add_u32 s22, s22, {F1}
    v_writelane_b32 v23, s22, 2
    s_add_u32 s22, s22, 16384
    v_writelane_b32 v23, s22, 3
    s_lshl_b32 s22, s24, 7
    s_add_u32 s22, s22, {F3}
    v_writelane_b32 v23, s22, 4
    s_lshl_b32 s22, s24, 5
    s_add_u32 s22, s22, s21
    s_lshl_b32 s22, s22, 7
    s_add_u32 s22, s22, {ST1}
    v_writelane_b32 v23, s22, 0
    s_add_u32 s22, s22, {ST3 - ST1}
    v_writelane_b32 v23, s22, 1
    s_mov_b64 exec, 0xff1f
    buffer_load_dword a252, v23, s[8:11], 0 offen
    s_mov_b64 exec, -1
    """)
        for jj in range(4):
            a(f"s_lshr_b32 s22, s21, 3\ns_add_u32 s22, s22, {jj}\ns_and_b32 s22, s22, 3\ns_mul_i32 s{4+jj}, s22, 6144")
        Lw = a.label("go")
        a(f"""
    s_waitcnt vmcnt(1)
    v_cmp_ne_u32 vcc, s37, v9
    s_cmp_eq_u32 vcc_lo, 0
    s_cselect_b32 s38, 1, 0
    v_add_f32 v32, v32, v40
    v_add_f32 v41, v41, v42
    v_add_f32 v32, v32, v43
    v_add_f32 v32, v32, v41
    v_cmp_gt_u32 vcc, 32, v1
    v_mov_b32 v38, 0
    v_mov_b32 v39, 0
    v_cndmask_b32 v32, 0, v32, vcc
    v_cvt_pk_bf16_f32 v36, v32, v32
    v_lshlrev_b32 v33, 16, v36
    v_sub_f32 v33, v32, v33
    v_cvt_pk_bf16_f32 v36, v32, v33
    v_and_b32 v34, s39, v36
    v_sub_f32 v33, v33, v34
    v_cvt_pk_bf16_f32 v37, v33, v38
    ds_write_b128 v8, v[36:39]
    s_waitcnt lgkmcnt(0)
    s_cmp_lg_u32 s3, 0
    s_cbranch_scc1 {Lw}
    s_lshl_b32 s36, s20, 7
    s_add_u32 s36, s36, {GO}
    s_mov_b32 s35, {SPIN}
{Lw}_l:
    buffer_load_dword v18, v11, s[8:11], s36 offen sc1
    s_waitcnt vmcnt(0)
    v_cmp_ne_u32 vcc, 0, v18
    s_and_b32 s34, vcc_lo, 0xff
    s_cmp_eq_u32 s34, 0xff
    s_cbranch_scc1 {Lw}
    s_sleep 2
    s_sub_u32 s35, s35, 1
    s_cbranch_scc0 {Lw}_l
{Lw}:
    s_waitcnt lgkmcnt(0)
    """)
        st("ready")
        a("s_barrier")
        vm.q = ["?"]
        lg.q = []
        st("go")

    def gemm1(self, layer):
        a, vm, lg, st = self.a, self.vm, self.lg, self.st
        first = layer == 0
        self.layer = layer
        vm.count = {}
        if DETAIL:
            DET = list(range(int(DETAIL), int(DETAIL) + 7)); st0 = st
            if first: self.st = st = lambda n: None
        XS, HD, ST = (X1, H1, ST1) if first else (X3, H2, ST3)
        sc = "sc1"
        a(f"""
    s_mul_i32 s25, s24, {TB}
    s_add_u32 s25, s25, {XS}
    """)
        state = dict(tnext=0, done=-1)
        def thalf(ks, h):
            r = RING0 + (ks % RING) * 8 + 4 * h
            o = (ks % 2) * 2048 + 512 * h
            def fn():
                a(f"buffer_load_dwordx4 v[{r}:{r+3}], v5, s[8:11], s25 offen offset:{o} {sc}"); vm.issue(f"T{ks}")
                if ks % 2 == 1 and h == 1: a("s_add_u32 s25, s25, 4096")
            return (lambda: state["done"] >= ks - RING, fn)
        def tload():
            ks = state["tnext"]; state["tnext"] += 1
            thalf(ks, 0)[1](); thalf(ks, 1)[1]()
        def stl(i):
            def fn():
                rr = TMP + i * 4
                a(f"buffer_load_dwordx4 v[{rr}:{rr+3}], v6, s[8:11], s26 offen offset:{i*512} sc1"); vm.issue("stl")
            return (lambda: state["done"] >= 20, fn)

        if first:
            a(f"""
    s_mul_i32 s22, s44, {TB}
    s_lshl_b32 s29, s45, 6
    s_add_u32 s22, s22, s29
    s_mul_i32 s29, s3, {40*512}
    s_add_u32 s22, s22, s29
    s_add_u32 s22, s22, {XS}
    v_and_b32 v7, 7, v1
    v_lshlrev_b32 v7, 3, v7
    v_lshrrev_b32 v8, 3, v1
    v_lshl_add_u32 v8, v8, 9, v7
    """)
            for i in range(5):
                a(f"buffer_load_dwordx2 v[{TMP+2*i}:{TMP+2*i+1}], v8, s[8:11], s22 offen sc1"); vm.issue("st")
                if i < 4: a("s_add_u32 s22, s22, 4096")
        for _ in range(6): tload()
        st("issued")
        self.fq.extend([f"s_lshl_b32 s26, s24, 12", f"s_add_u32 s26, s26, {ST}"])
        if True:
            self.post = [f"v_add_u32 v7, {CSF}, v2"]
            self.fq.extend([f"s_mul_i32 s27, s24, {2*96*1024}", "s_mul_i32 s28, s21, 3072", "s_add_u32 s27, s27, s28", f"s_add_u32 s27, s27, {HD}",
                            f"s_add_u32 s28, s27, {96*1024}"])
        if first:
            S, Q, t, u = TMP + 10, TMP + 11, TMP + 12, TMP + 13
            f = [lambda: vm.wait("st")]
            for i in range(10):
                f += [f"v_lshlrev_b32 v{t}, 16, v{TMP+i}", f"v_and_b32 v{u}, s39, v{TMP+i}"]
                if i == 0: f += [f"v_add_f32 v{S}, v{t}, v{u}", f"v_mul_f32 v{Q}, v{t}, v{t}"]
                else: f += [f"v_add_f32 v{S}, v{S}, v{t}", f"v_fmac_f32 v{Q}, v{t}, v{t}", f"v_add_f32 v{S}, v{S}, v{u}"]
                f.append(f"v_fmac_f32 v{Q}, v{u}, v{u}")
            def sts():
                a("s_mov_b32 exec_lo, 0xff\ns_mov_b32 exec_hi, 0xff")
                self.dstore([f"buffer_store_dwordx2 v[{S}:{Q}], v7, s[8:11], s22 offen"])
                a("s_mov_b64 exec, -1"); vm.issue("sts")
            f += ["s_lshl_b32 s22, s44, 12", "s_lshl_b32 s23, s3, 10",
                  f"v_add_f32_dpp v{S}, v{S}, v{S} row_ror:8 row_mask:0xf bank_mask:0xf",
                  f"v_add_f32_dpp v{Q}, v{Q}, v{Q} row_ror:8 row_mask:0xf bank_mask:0xf",
                  "s_add_u32 s22, s22, s23", f"v_mov_b32 v{t}, v{S}", f"v_mov_b32 v{u}, v{Q}", "s_lshl_b32 s23, s45, 6", "s_add_u32 s22, s22, s23",
                  f"v_permlane16_swap_b32 v{S}, v{t}", f"v_permlane16_swap_b32 v{Q}, v{u}",
                  f"s_add_u32 s22, s22, {ST}", "v_lshl_add_u32 v7, v3, 9, v7",
                  f"v_add_f32 v{S}, v{S}, v{t}", f"v_add_f32 v{Q}, v{Q}, v{u}", sts]
            self.fq.extend(f)
        self.fq.extend(self.post)
        tq = [thalf(ks, h) for ks in range(state["tnext"], 40) for h in range(2)]
        k = 2 * (35 - state["tnext"])
        tq = tq[:k] + [stl(i) for i in range(4)] + tq[k:]
        if first:
            xq = [(lambda: True, lambda i=i: self.w1dma(i)) for i in range(21, 30)]
            xq += [(lambda: True, lambda j=j, mt=mt: self.wdl(j, mt)) for j in range(12) for mt in range(5)]
            order = []
            n = 0
            while tq:
                order += tq[:2]; tq = tq[2:]
                n += 1
                if n > XSKIP and n % 2 == 0 and n <= XSKIP + 24: order.append(xq.pop(0))
            tq = order + xq
        self.vq = deque(tq)
        def swaps(ks):
            r = RING0 + (ks % RING) * 8
            self.ensure(f"T{ks}", 2)
            if DETAIL and first and ks in DET: st0(f"bT{ks}")
            vm.wait(f"T{ks}")
            if DETAIL and first and ks in DET: st0(f"aT{ks}")
            a(f"v_swap_b32 v{r+2}, v{r+4}")
            a(f"v_swap_b32 v{r+3}, v{r+5}")
        def mfma(mt, par, A, B, zero=False):
            acc = ACC1 + (mt * 2 + par) * 16
            accs = f"v[{acc}:{acc+15}]"
            a(f"v_mfma_f32_32x32x16_bf16 {accs}, v[{A}:{A+3}], v[{B}:{B+3}], {'0' if zero else accs}")
        for mt in range(3): self.wread(0, mt, 24 + 4 * mt, "A0")
        swaps(0)
        st("T0")
        for ks in range(NMAIN):
            if ks in (8, 16, 24): st(f"ks{ks}")
            r = RING0 + (ks % RING) * 8
            b = 24 + (ks & 1) * 12
            nb = 24 + ((ks + 1) & 1) * 12
            if ks == 20: self.flush_fill()
            lg.wait(f"A{ks}")
            n = 0
            for mt in range(3):
                for par in range(2):
                    mfma(mt, par, b + 4 * mt, r + 4 * par, ks == 0)
                    n += 1
                    if n == 1:
                        if ks + 1 < NMAIN:
                            for m2 in range(3): self.wread(ks + 1, m2, nb + 4 * m2, f"A{ks+1}")
                        if ks + 1 >= NMAIN: self.fill(20)
                    if n == 6: state["done"] = ks
                    if n in (2, 4, 6):
                        did = self.vslot(1)
                        self.fill((8 if did else 20) - (4 if n == 6 else 0))
                    if n == 3: swaps(ks + 1)
                    if n == 5: self.fill(24)
        self.flush_fill()
        st("main")
        NB = 4
        seq = [(mt, ks) for mt in range(3) for ks in list(range(NMAIN, 40)) + [40]]
        def aread(i):
            mt, ks = seq[i]
            self.wread(ks, mt, 24 + (i % NB) * 4, f"B{i}")
        if first:
            vm.wait("W"); a("s_barrier")
        for i in range(NB - 1): aread(i)
        self.ensure("stl", 4)
        R = TMP
        Ls, Lb = a.label("stspin"), a.label("stback")
        f = [lambda: vm.wait("stl"), f"v_max_u32 v18, v{R+1}, v{R+3}"]
        for i in range(1, 4): f.append(f"v_max3_u32 v18, v18, v{R+4*i+1}, v{R+4*i+3}")
        f += [lambda: a(f"v_cmp_eq_u32 vcc, -1, v18\ns_cbranch_vccnz {Ls}\n{Lb}:")]
        rl = "\n".join(f"    buffer_load_dwordx4 v[{TMP+i*4}:{TMP+i*4+3}], v6, s[8:11], s26 offen offset:{i*512} sc1" for i in range(4))
        mx = "\n".join(f"    v_max3_u32 v18, v18, v{R+4*i+1}, v{R+4*i+3}" for i in range(1, 4))
        self.tail_blocks.append(f"""
{Ls}:
    s_mov_b32 s35, {SPIN}
{Ls}_l:
{rl}
    s_waitcnt vmcnt(0)
    v_max_u32 v18, v{R+1}, v{R+3}
{mx}
    v_cmp_eq_u32 vcc, -1, v18
    s_cbranch_vccz {Lb}
    s_sub_u32 s35, s35, 1
    s_cbranch_scc0 {Ls}_l
    s_branch {Lb}
""")
        for k in range(4): f += [f"v_add_f32 v{R+k}, v{R+k}, v{R+4+k}", f"v_add_f32 v{R+8+k}, v{R+8+k}, v{R+12+k}"]
        for k in range(4): f.append(f"v_add_f32 v{R+k}, v{R+k}, v{R+8+k}")
        for k in range(4): f.append(f"v_mov_b32 v{R+4+k}, v{R+k}")
        for k in range(4): f.append(f"v_permlane32_swap_b32 v{R+k}, v{R+4+k}")
        for k in range(4): f.append(f"v_add_f32 v{R+k}, v{R+k}, v{R+4+k}")
        recs = []
        for t in range(2):
            l = []; rr = l.append
            b = R + 2 * t
            vmn, vr = R + 4 + 2 * t, R + 5 + 2 * t
            rr(f"v_mul_f32 v{vmn}, 0x3acccccd, v{b}")
            rr(f"v_mul_f32 v{vr}, 0x3acccccd, v{b+1}")
            rr(f"v_fma_f32 v{vr}, -v{vmn}, v{vmn}, v{vr}")
            rr(f"v_max_f32 v{vr}, 0, v{vr}")
            rr(f"v_cvt_pk_bf16_f32 v{40+4*t}, -v{vmn}, -v{vmn}")
            rnd_bf16(rr, vr)
            rr(f"v_and_b32 v{41+4*t}, 0xffff, v{40+4*t}")
            rr(f"v_add_f32 v{vr}, 0x3727c5ac, v{vr}")
            rnd_bf16(rr, vr)
            rr(f"v_sqrt_f32 v{vr}, v{vr}")
            rr(f"v_mov_b32 v{42+4*t}, 0")
            rnd_bf16(rr, vr)
            rr(f"v_mul_f32 v{16+t}, v{vr}, v{vr}")
            rr(f"v_rcp_f32 v{vr}, v{vr}")
            rr(f"v_mov_b32 v{43+4*t}, 0")
            rr(f"v_mul_f32 v{12+t}, {hex(f2u(GC0))}, v{vr}")
            rr(f"v_mul_f32 v{14+t}, v{vr}, v{vr}")
            rr(f"v_mul_f32 v{vr}, {hex(f2u(GC1))}, v{vr}")
            rr(f"v_mul_f32 v{14+t}, v{14+t}, v{vr}")
            recs.append(l)
        for x, y in zip(*recs): f += [x, y]
        f += [f"s_lshl_b32 s29, s24, 2", "s_lshr_b32 s34, s21, 3", "s_add_u32 s29, s29, s34", "s_lshl_b32 s29, s29, 7",
              f"s_add_u32 s29, s29, {F1 + layer*16384}", "s_lshl_b32 s34, s45, 2", "v_mov_b32 v8, s34", "v_mov_b32 v9, 1",
              "s_lshl_b32 s36, s44, 2", "s_add_u32 s36, s36, s3", "s_lshl_b32 s36, s36, 7", f"s_add_u32 s36, s36, {F1 + layer*16384}"]
        self.fq.extend(f)
        for i, (mt, ks) in enumerate(seq):
            if ks == 40 and mt == 0: self.flush_fill()
            lg.wait(f"B{i}")
            A = 24 + (i % NB) * 4
            for par in range(2):
                B = RING0 + (ks % RING) * 8 + 4 * par if ks < 40 else 40 + 4 * par
                mfma(mt, par, A, B)
                if par == 0:
                    if i + NB - 1 < len(seq): aread(i + NB - 1)
                    if mt == 0 and ks + 1 < 40: swaps(ks + 1)
                    else:
                        did = self.vslot(1) if ks % 2 else 0
                        self.fill(20 - 8 * did)
                else:
                    did = self.vslot(1)
                    self.fill(20 - 8 * did)
            if ks == 40:
                self.flush_fill()
                st(f"pass{mt}")
                if mt == 2: break
                pre = self.g2_setup(layer) if mt == 0 else []
                e = self.epi_ops(mt, 0, False) + self.epi_ops(mt, 1, False)
                k = min(len(pre), 10)
                self.fq.extend(pre[:k] + e + pre[k:])
                if mt == 1:
                    self.fq.insert(len(self.fq) // 4, lambda: (vm.wait("h0"), self.flag_store("s29", 0)))
                    self.fq.insert(len(self.fq) - 24, lambda: self.poll_issue("s36", 18))

    def g2_setup(self, layer):
        HS = H1 if layer == 0 else H2
        f = ["v_and_b32 v19, 15, v1", "v_lshrrev_b32 v20, 4, v1", "v_lshlrev_b32 v21, 4, v19",
             "v_lshl_add_u32 v21, v20, 9, v21",
             "v_lshl_add_u32 v22, v3, 11, v21",
             f"s_mul_i32 s26, s44, {2*96*1024}", f"s_mul_i32 s34, s3, {24*1024}", "s_add_u32 s26, s26, s34", f"s_add_u32 s26, s26, {HS}"]
        for n in range(4):
            f += [f"s_add_u32 s34, s3, {n}", "s_and_b32 s35, s34, 1", f"s_mul_i32 s35, s35, {96*1024}", "s_lshl_b32 s34, s34, 7",
                  "s_and_b32 s34, s34, 256", f"s_add_u32 s{40+n}, s26, s35", f"s_add_u32 s{40+n}, s{40+n}, s34"]
        return f

    def gemm2(self, layer):
        a, vm, lg, st = self.a, self.vm, self.lg, self.st
        last = layer == 1
        state = dict(done=-1, parts=1, free=False)
        def hl(j, n):
            P, jj = j // 4, j % 4
            r = hslot(j) + n * 4
            def fn():
                a(f"s_add_u32 s31, s{40+n}, s{4+jj}")
                a(f"buffer_load_dwordx4 v[{r}:{r+3}], v22, s[8:11], s31 offen offset:{P*1024} sc1")
                vm.issue(f"K{j}")
            return (lambda: state["done"] >= j - 9 and j // 4 < state["parts"] and (j % 9 < 6 or state["free"]), fn)
        rest = list(self.vq)
        hq = [hl(j, n) for j in range(12) for n in range(4)]
        self.poll_check("s36", 18, 0xff)
        st("p0ok")
        self.vq = deque(hq[:12] + rest + hq[12:])
        e = self.epi_ops(2, 0, True) + [lambda: (vm.wait("h1"), self.flag_store("s29", 32))] + self.epi_ops(2, 1, True)
        for k, x in enumerate(e):
            x() if callable(x) else a(x)
            if k % 5 == 0: self.vslot(1)
        self.poll_issue("s36", 18)
        st("epi2")
        XRr, Yr = hslot(3), hslot(4)
        def xl(base, reg, mt):
            def fn():
                a(f"s_add_u32 s31, s32, {base + (mt//2)*4096}")
                a(f"buffer_load_dwordx2 v[{reg+2*mt}:{reg+2*mt+1}], v21, s[8:11], s31 offen offset:{(mt%2)*2048} sc1"); vm.issue("x")
            return (lambda: state["done"] >= 4, fn)
        if not last:
            for mt in range(5): self.vq.append(xl(X1, XRr, mt))
            for mt in range(5): self.vq.append(xl(Y, Yr, mt))
        f = [f"s_mul_i32 s32, s44, {TB}", "s_mul_i32 s33, s45, 10240", "s_add_u32 s32, s32, s33", "s_lshr_b32 s33, s3, 1", "s_lshl_b32 s33, s33, 8",
             "s_and_b32 s34, s3, 1", "s_lshl_b32 s34, s34, 3", "s_add_u32 s33, s33, s34",
             "s_add_u32 s32, s32, s33",
             "s_mul_i32 s34, s3, 9216", f"s_add_u32 s34, s34, {RB}", "v_add_u32 v104, s34, v2"]
        for n in range(1, 4):
            f += [f"s_add_u32 s34, s3, {n}", "s_and_b32 s34, s34, 3", "s_mul_i32 s34, s34, 9216", f"s_add_u32 s34, s34, {RB + (n-1)*3072}",
                  f"v_add_u32 v{104+n}, s34, v2"]
        for j in range(12):
            if j == 1:
                self.poll_check("s36", 18, 0xff00); state["parts"] = 2
                self.fq.extend(f)
            if j == 3: self.poll_issue("s36", 18)
            if j == 4:
                self.flush_fill()
                self.poll_check("s36", 18, 0xff0000); state["parts"] = 3
            self.ensure(f"K{j}", 4)
            if not last: self.ensure(f"D{j}", 5)
            vm.wait(f"D{j}")
            vm.wait(f"K{j}")
            if j in (0, 4, 8): st(f"K{j}")
            k = 0
            for n in range(4):
                r = hslot(j) + n * 4
                for mt in range(5):
                    acc = ACC2 + (n * 5 + mt) * 4
                    accs = f"v[{acc}:{acc+3}]"
                    i = j * 5 + mt
                    a(f"v_mfma_f32_16x16x32_bf16 {accs}, a[{4*i}:{4*i+3}], v[{r}:{r+3}], {'0' if j == 0 else accs}")
                    k += 1
                    if k == 20: state["done"] = j
                    if j == 0 and k == 14:
                        vm.wait("h2"); self.flag_store("s29", 64); state["free"] = True
                    elif k % 4 == 1 or k % 8 == 3: self.vslot(1)
                    else: self.fill(4)
        self.vslot(100)
        assert not self.vq
        st("kloop")
        HR0 = RING0
        for rnd, mts in enumerate(([0, 1, 2], [3, 4])):
            if rnd == 1: a("s_barrier")
            for n in range(1, 4):
                for k, mt in enumerate(mts):
                    acc = ACC2 + (n * 5 + mt) * 4
                    a(f"ds_write_b128 v{104+n}, v[{acc}:{acc+3}] offset:{k*1024}")
            a("s_waitcnt lgkmcnt(0)\ns_barrier")
            for n in range(3):
                for k, mt in enumerate(mts):
                    r = HR0 + (n * 3 + k) * 4
                    a(f"ds_read_b128 v[{r}:{r+3}], v104 offset:{n*3072 + k*1024}")
            a("s_waitcnt lgkmcnt(0)")
            for n in range(3):
                for k, mt in enumerate(mts):
                    r = HR0 + (n * 3 + k) * 4
                    acc = ACC2 + mt * 4
                    a(f"v_pk_add_f32 v[{acc}:{acc+1}], v[{acc}:{acc+1}], v[{r}:{r+1}]")
                    a(f"v_pk_add_f32 v[{acc+2}:{acc+3}], v[{acc+2}:{acc+3}], v[{r+2}:{r+3}]")
        lg.q = []
        if last:
            for i in range(10): a(f"v_accvgpr_read_b32 v{XRr+i}, a{240+i}")
        vm.wait("x")
        st("reduced")
        A = lambda i: f"v[{ACC2+2*i}:{ACC2+2*i+1}]"
        U, Pk, T = 48, 68, 80
        for i in range(10):
            a(f"v_lshlrev_b32 v{U+2*i}, 16, v{XRr+i}")
            a(f"v_and_b32 v{U+2*i+1}, s39, v{XRr+i}")
        for i in range(10): a(f"v_pk_add_f32 {A(i)}, {A(i)}, v[{U+2*i}:{U+2*i+1}]")
        for i in range(10): a(f"v_cvt_pk_bf16_f32 v{Pk+i}, v{ACC2+2*i}, v{ACC2+2*i+1}")
        if last:
            a(f"""
    v_mul_u32_u24 v23, 2560, v19
    v_lshl_add_u32 v23, v20, 3, v23
    s_mul_i32 s31, s44, {64*1280}
    s_mul_i32 s33, s33, 160
    s_add_u32 s31, s31, s33
    s_mul_i32 s33, s45, 160
    s_add_u32 s31, s31, s33
    """)
            for mt in range(5):
                a(f"buffer_store_dwordx2 v[{Pk+2*mt}:{Pk+2*mt+1}], v23, s[12:15], s31 offen offset:{32*mt}")
            return
        def xsum(v0, v1, t0, t1):
            a(f"""
    v_mov_b32 v{t0}, v{v0}
    v_mov_b32 v{t1}, v{v1}
    v_permlane16_swap_b32 v{v0}, v{t0}
    v_permlane16_swap_b32 v{v1}, v{t1}
    v_pk_add_f32 v[{v0}:{v1}], v[{v0}:{v1}], v[{t0}:{t1}]
    v_mov_b32 v{t0}, v{v0}
    v_mov_b32 v{t1}, v{v1}
    v_permlane32_swap_b32 v{v0}, v{t0}
    v_permlane32_swap_b32 v{v1}, v{t1}
    v_pk_add_f32 v[{v0}:{v1}], v[{v0}:{v1}], v[{t0}:{t1}]
    """)
        def stats_partial(sreg):
            a(f"v_pk_add_f32 v[12:13], {A(0)}, {A(1)}")
            a(f"v_pk_mul_f32 v[14:15], {A(0)}, {A(0)}")
            for i in range(1, 10):
                if i >= 2: a(f"v_pk_add_f32 v[12:13], v[12:13], {A(i)}")
                a(f"v_pk_fma_f32 v[14:15], {A(i)}, {A(i)}, v[14:15]")
            a("v_add_f32 v12, v12, v13\nv_add_f32 v13, v14, v15")
            xsum(12, 13, 14, 15)
            a("s_mov_b64 exec, 0xffff")
            self.dstore([f"buffer_store_dwordx2 v[12:13], v2, s[8:11], {sreg} offen"])
            a("s_mov_b64 exec, -1")
        def unpack_A():
            for i in range(10):
                a(f"v_lshlrev_b32 v{ACC2+2*i}, 16, v{Pk+i}")
                a(f"v_and_b32 v{ACC2+2*i+1}, s39, v{Pk+i}")
        a(f"""
    s_lshl_b32 s30, s44, 12
    s_lshl_b32 s31, s3, 10
    s_add_u32 s31, s31, s30
    s_add_u32 s31, s31, {ST2}
    s_lshr_b32 s34, s45, 1
    s_lshl_b32 s34, s34, 8
    s_and_b32 s35, s45, 1
    s_lshl_b32 s35, s35, 3
    s_add_u32 s34, s34, s35
    s_add_u32 s36, s31, s34
    """)
        unpack_A()
        stats_partial("s36")
        a(f"s_mov_b32 s35, {SPIN}")
        for i in range(10):
            a(f"v_lshlrev_b32 v{U+2*i}, 16, v{Yr+i}")
            a(f"v_and_b32 v{U+2*i+1}, s39, v{Yr+i}")
        L0 = a.label("g2poll"); L1 = a.label("g2ok")
        a(f"""
{L0}:
    buffer_load_dwordx4 v[12:15], v2, s[8:11], s31 offen sc1
    s_waitcnt vmcnt(0)
    v_max_u32 v17, v13, v15
    v_cmp_eq_u32 vcc, -1, v17
    s_cbranch_vccz {L1}
    s_sub_u32 s35, s35, 1
    s_cbranch_scc0 {L0}
{L1}:
    v_pk_add_f32 v[12:13], v[12:13], v[14:15]
    """)
        vm.q = []
        st("polled")
        xsum(12, 13, 14, 15)
        ln_stats(a, 12, 13, 16, 18)
        for i in range(10):
            a(f"v_pk_add_f32 v[{T+2*i}:{T+2*i+1}], {A(i)}, v[16:17] op_sel_hi:[1,0] neg_lo:[0,1] neg_hi:[0,1]")
        for i in range(10):
            a(f"v_pk_mul_f32 v[{U+2*i}:{U+2*i+1}], v[{U+2*i}:{U+2*i+1}], v[18:19] op_sel_hi:[1,0]")
        for i in range(10):
            a(f"v_pk_fma_f32 {A(i)}, v[{T+2*i}:{T+2*i+1}], v[{U+2*i}:{U+2*i+1}], {A(i)}")
        for i in range(10):
            a(f"v_cvt_pk_bf16_f32 v{Pk+i}, v{ACC2+2*i}, v{ACC2+2*i+1}")
        l = []
        for mt in range(5):
            if mt % 2 == 0: l.append(f"s_add_u32 s31, s32, {X3 + (mt//2)*4096}")
            l.append(f"buffer_store_dwordx2 v[{Pk+2*mt}:{Pk+2*mt+1}], v21, s[8:11], s31 offen offset:{(mt%2)*2048}"); vm.issue("x3")
        self.dstore(l)
        a(f"""
    s_lshl_b32 s29, s44, 7
    s_add_u32 s29, s29, {F3}
    s_lshl_b32 s34, s45, 4
    s_lshl_b32 s35, s3, 2
    s_add_u32 s34, s34, s35
    v_mov_b32 v8, s34
    s_lshl_b32 s36, s24, 7
    s_add_u32 s36, s36, {F3}
    s_lshl_b32 s34, s45, 9
    s_add_u32 s30, s30, s34
    s_add_u32 s30, s30, s33
    s_add_u32 s30, s30, {ST3}
    """)
        for i in range(10): a(f"v_accvgpr_write_b32 a{240+i}, v{Pk+i}")
        unpack_A()
        vm.wait("x3")
        st("x3drained")
        self.flag_store("s29", 0)
        stats_partial("s30"); vm.issue("sts")
        self.poll_issue("s36", 18)
        self.poll_check("s36", 18, 0xffffffff)
        st("x3ok")

def mega_kernel(kidx=2):
    a = Asm()
    a.uid = 1000
    st = Stamps(a, kidx)
    m = Mega(st)
    m.vm.maxn = 63
    a("s_cmp_ge_u32 s2, 256\ns_cbranch_scc1 L_mega_end")
    st("start")
    m.ids()
    m.front()
    sts = [st]
    for layer in range(2):
        if DIAG_ON(): sts[-1].stash(253 + layer)
        sts.append(Stamps(a, kidx + 1 + layer))
        m.st = sts[-1]
        m.st("lstart")
        m.gemm1(layer)
        m.gemm2(layer)
    m.st("end")
    if DIAG_ON():
        a("s_waitcnt vmcnt(0)"); m.st("drained"); sts[0].unstash(253); sts[1].unstash(254); m.st.flush()
    a("L_mega_end:\ns_endpgm")
    for b in m.tail_blocks: a(b)
    a("L_mega_last:\ns_endpgm")
    return a
```

```python
from common import *
import os

KT, VT, OUT, STS = 0, 11264, 22528, 22528 + 23040
PREP_LDS = STS + 512
PREP_GRID = 256
NT = os.environ.get('NT', '')

def prep_kernel():
    a = Asm()
    st = Stamps(a, 0)
    a(f"s_cmp_ge_u32 s2, {PREP_GRID}\ns_cbranch_scc1 L_prep_end")
    st("start")
    a(f"""
    v_lshrrev_b32 v2, 6, v0
    v_and_b32 v1, 63, v0                    ; lane
    v_readfirstlane_b32 s3, v2              ; wave
    s_load_dwordx4 s[4:7], s[0:1], 0        ; q, k
    s_load_dwordx4 s[12:15], s[0:1], 16     ; v, shift_k
    s_load_dwordx2 s[16:17], s[0:1], 96     ; ws
    s_lshr_b32 s40, s2, 3
    s_and_b32 s18, s2, 7
    ; ---- tile copy: chunk e = 64 n + lane -> row e/10, 16-byte piece e%10
    s_mul_i32 s19, s40, {64*1280}
    s_mul_i32 s41, s18, 160
    s_add_u32 s19, s19, s41
    s_lshl_b32 s41, s3, 6
    """)
    for r, add in enumerate((0, 320, None)):
        v = 16 + r
        if add is None: a(f"v_add_u32 v{v}, 640, v1")
        else: a(f"v_add_u32 v{v}, s41, v1" + (f"\nv_add_u32 v{v}, {add}, v{v}" if add else ""))
        a(f"""
    v_mul_u32_u24 v3, 6554, v{v}
    v_lshrrev_b32 v3, 16, v3
    v_mul_u32_u24 v4, 1120, v3
    v_lshl_add_u32 v{v}, v{v}, 4, v4
    v_add_u32 v{v}, s19, v{v}
    v_subrev_u32 v{v+4}, {4*1280}, v{v}
    v_subrev_u32 v{v}, 1280, v{v}
    """)
    a(f"""
    ; ---- part (a) indices: u = t/40, p = t%40
    v_mul_u32_u24 v5, 1639, v0
    v_lshrrev_b32 v5, 16, v5                ; u
    v_mul_u32_u24 v6, 40, v5
    v_sub_u32 v6, v0, v6                    ; p
    s_mul_i32 s19, s18, 640
    v_lshl_add_u32 v7, v6, 4, s19
    v_and_b32 v8, 7, v0                     ; tk
    v_lshrrev_b32 v10, 3, v0                ; slot
    s_lshl_b32 s19, s2, 3
    v_add_u32 v11, s19, v8                  ; token
    v_mul_u32_u24 v12, 1280, v11
    v_lshl_add_u32 v12, v10, 5, v12         ; q offset
    s_lshl_b32 s41, s3, 10
    s_waitcnt lgkmcnt(0)
    """)
    srd(a, 24, 6, ACT_BYTES); srd(a, 28, 12, ACT_BYTES)
    st("kernarg")
    a(f"""
    s_add_u32 m0, s41, {KT}
    s_nop 0
    buffer_load_dwordx4 v20, s[24:27], 0 offen {NT} lds
    s_add_u32 m0, s41, {VT}
    s_nop 0
    buffer_load_dwordx4 v16, s[28:31], 0 offen {NT} lds
    s_add_u32 m0, s41, {KT + 5120}
    s_nop 0
    buffer_load_dwordx4 v21, s[24:27], 0 offen {NT} lds
    s_add_u32 m0, s41, {VT + 5120}
    s_nop 0
    buffer_load_dwordx4 v17, s[28:31], 0 offen {NT} lds
    s_cmp_lg_u32 s3, 0
    s_cbranch_scc1 L_prep_k11
    s_mov_b32 m0, {KT + 10240}
    s_nop 0
    buffer_load_dwordx4 v22, s[24:27], 0 offen {NT} lds
L_prep_k11:
    s_cmp_lg_u32 s3, 1
    s_cbranch_scc1 L_prep_v11
    s_mov_b32 m0, {VT + 10240}
    s_mov_b64 exec, 0x3ff
    buffer_load_dwordx4 v18, s[28:31], 0 offen {NT} lds
    s_mov_b64 exec, -1
L_prep_v11:
    """)
    srd(a, 20, 4, ACT_BYTES); srd(a, 32, 14, D * 8); srd(a, 36, 16, WS_USED)
    a(f"""
    s_load_dwordx2 s[4:5], s[0:1], 32       ; ssm_k
    s_load_dwordx4 s[12:15], s[0:1], 56
    s_load_dwordx2 s[6:7], s[0:1], 72       ; w_down
    buffer_load_dwordx4 v[40:43], v7, s[32:35], 0 offen
    buffer_load_dwordx4 v[44:47], v12, s[20:23], 0 offen {NT}
    buffer_load_dwordx4 v[48:51], v12, s[20:23], 0 offen offset:16 {NT}
    s_mul_i32 s19, s2, 1536
    s_add_u32 s19, s19, {ST1}
    v_lshl_add_u32 v13, v0, 4, s19
    s_lshl_b32 s19, s2, 8
    s_add_u32 s19, s19, {FL - 96*16}
    v_lshl_add_u32 v14, v0, 4, s19
    v_cmp_gt_u32 vcc, 96, v0
    v_mov_b32 v52, 0
    v_cndmask_b32 v13, v14, v13, vcc
    v_cndmask_b32 v52, v52, -1, vcc
    v_mov_b32 v53, v52
    v_mov_b32 v54, v52
    v_mov_b32 v55, v52
    v_cmp_gt_u32 vcc, 112, v0
    s_and_saveexec_b64 s[46:47], vcc
    s_cbranch_execz L_prep_nod
    buffer_store_dwordx4 v[52:55], v13, s[36:39], 0 offen sc1
L_prep_nod:
    s_mov_b64 exec, s[46:47]
    s_mov_b32 s45, 0xffff0000
    v_mul_u32_u24 v13, 1280, v5
    v_lshl_add_u32 v13, v6, 2, v13
    v_mul_u32_u24 v15, 144, v6
    v_lshlrev_b32 v3, 4, v5
    v_sub_u32 v15, v15, v3
    v_add_u32 v15, {OUT + 112}, v15
    v_mul_u32_u24 v56, 144, v10
    v_and_b32 v3, 7, v0
    v_lshl_add_u32 v56, v3, 4, v56
    v_lshlrev_b32 v57, 14, v10
    v_lshl_add_u32 v57, v3, 4, v57
    s_mul_i32 s41, s18, {80*XT_CH}
    s_lshl_b32 s42, s40, 7
    s_sub_u32 s41, s41, s42
    s_add_u32 s41, s41, {XT + 3968}
    s_add_u32 s42, s41, {XT_CP}
    s_add_u32 s43, s41, {XT_CH}
    s_add_u32 s44, s41, {XT_CH + XT_CP}
    v_lshlrev_b32 v14, 11, v10
    v_and_b32 v3, 6, v8
    v_lshl_add_u32 v14, v3, 3, v14
    v_and_b32 v3, 1, v8
    v_lshl_add_u32 v14, v3, 10, v14
    s_lshr_b32 s19, s2, 3
    s_mul_i32 s19, s19, {TB}
    s_lshl_b32 s46, s18, 6
    s_add_u32 s19, s19, s46
    s_add_u32 s19, s19, {X1}
    s_waitcnt lgkmcnt(0)
    s_cmp_ge_u32 s3, 2
    s_cbranch_scc1 L_prep_s2b
    s_lshl_b32 s100, s2, 1
    s_add_u32 s100, s100, s3
    s_mul_i32 s96, s100, 13108
    s_lshr_b32 s96, s96, 16
    s_mul_i32 s97, s96, 5
    s_sub_u32 s97, s100, s97                ; strip
    s_mul_i32 s98, s96, {16*1280}
    s_add_u32 s99, s98, {8*1280}
    s_mov_b32 s8, s6
    s_mov_b32 s9, s7
    v_and_b32 v3, 31, v1
    v_lshrrev_b32 v4, 5, v1                 ; half
    s_lshl_b32 s97, s97, 7
    v_lshl_add_u32 v3, v3, 2, s97           ; c0
    v_mul_u32_u24 v58, {4*1280}, v4
    v_lshl_add_u32 v58, v3, 1, v58
    v_lshrrev_b32 v60, 4, v3                ; x = c0>>4
    v_mul_u32_u24 v59, 26, v60
    v_lshrrev_b32 v59, 7, v59               ; cb2 = x / 5
    v_mul_u32_u24 v61, 5, v59
    v_sub_u32 v61, v60, v61                 ; mt
    v_mul_u32_u24 v59, 245760, v59
    v_lshl_add_u32 v59, v61, 10, v59
    v_and_b32 v61, 15, v3
    v_lshl_add_u32 v59, v61, 4, v59
    v_lshl_add_u32 v59, v4, 8, v59
    ; cb = fb/3 ; P = fb%3 ; dest = (12 (cb>>3) + 4 P + ((cb&7)>>1))*5120 + (cb&1)*512
    s_mul_i32 s97, s96, 43
    s_lshr_b32 s97, s97, 7
    s_mul_i32 s4, s97, 3
    s_sub_u32 s4, s96, s4
    s_lshl_b32 s4, s4, 2
    s_lshr_b32 s5, s97, 3
    s_mul_i32 s5, s5, 12
    s_add_u32 s4, s4, s5
    s_bfe_u32 s5, s97, 0x20001
    s_add_u32 s4, s4, s5
    s_mul_i32 s4, s4, 5120
    s_and_b32 s5, s97, 1
    s_lshl_b32 s5, s5, 9
    s_add_u32 s4, s4, s5
    s_add_u32 s96, s4, {WDL}
    s_branch L_prep_s2c
L_prep_s2b:
    s_cmp_eq_u32 s3, 2
    s_cbranch_scc0 L_prep_s2h
    s_mul_i32 s96, s2, 13108
    s_lshr_b32 s96, s96, 16
    s_mul_i32 s97, s96, 5
    s_sub_u32 s97, s2, s97
    s_cmp_ge_u32 s96, 24
    s_cselect_b32 s8, s14, s12
    s_cselect_b32 s9, s15, s13
    s_cselect_b32 s98, 24, 0
    s_sub_u32 s98, s96, s98
    s_lshl_b32 s98, s98, 7
    s_mul_i32 s99, s97, {128*3072}
    s_add_u32 s98, s98, s99
    v_lshrrev_b32 v58, 3, v1
    v_mul_u32_u24 v58, 3072, v58
    v_and_b32 v59, 7, v1
    v_lshl_add_u32 v58, v59, 4, v58
    v_lshlrev_b32 v59, 5, v59
    s_mul_i32 s97, s97, {3072*4}
    s_lshl_b32 s96, s96, 8
    s_add_u32 s96, s96, s97
    s_add_u32 s96, s96, {CS}
    s_mov_b32 s100, s2
    s_branch L_prep_s2c
L_prep_s2h:
    s_mov_b32 s8, s4
    s_mov_b32 s9, s5
    s_mul_i32 s98, s18, {80*4096}
    s_mul_i32 s99, s40, 10240
    s_add_u32 s98, s98, s99
    v_mov_b32 v59, 0
    s_mov_b32 s96, 0
    v_subrev_u32 v58, 192, v0
    v_lshlrev_b32 v58, 7, v58
L_prep_s2c:
    s_and_b32 s9, s9, 0xffff
    s_cmp_ge_u32 s3, 3
    s_mov_b32 s10, {D*F*2}
    s_cselect_b32 s10, {D*S*2}, s10
    s_mov_b32 s11, 0x20000
    s_waitcnt vmcnt(0)
    s_barrier
    """)
    st("loaded")
    a("s_cmp_ge_u32 s3, 2\ns_cbranch_scc1 L_prep_l2b\ns_cmp_ge_u32 s100, 480\ns_cbranch_scc1 L_prep_l2c")
    for e in range(8):
        a(f"buffer_load_dwordx2 v[{120+2*e}:{121+2*e}], v58, s[8:11], s{98 + e//4} offen offset:{1280*(e%4)} {NT}")
    a("s_branch L_prep_l2c\nL_prep_l2b:\ns_cmp_eq_u32 s3, 2\ns_cbranch_scc0 L_prep_l2h\ns_cmp_ge_u32 s100, 240\ns_cbranch_scc1 L_prep_l2c")
    for i in range(16):
        a(f"buffer_load_dwordx4 v[{120+4*i}:{123+4*i}], v58, s[8:11], s98 offen")
        if i < 15: a(f"s_add_u32 s98, s98, {8*3072}")
    a("""
    s_branch L_prep_l2c
L_prep_l2h:
    v_cmp_gt_u32 vcc, 272, v0
    s_and_saveexec_b64 s[46:47], vcc
    buffer_load_dword v120, v58, s[8:11], s98 offen
    s_mov_b64 exec, s[46:47]
L_prep_l2c:
    """)
    for r in range(12): a(f"ds_read_b32 v{16+r}, v13 offset:{KT + 160*r}")
    a("""
    v_lshlrev_b32 v106, 16, v40
    v_lshlrev_b32 v107, 16, v42
    v_and_b32 v108, s45, v40
    v_and_b32 v109, s45, v42
    v_lshlrev_b32 v110, 16, v41
    v_lshlrev_b32 v111, 16, v43
    v_and_b32 v112, s45, v41
    v_and_b32 v113, s45, v43
    s_waitcnt lgkmcnt(6)
    """)
    for r in range(9): a(f"ds_read_b32 v{28+r}, v13 offset:{VT + 160*r}")
    for r in range(12):
        if r == 6: a("s_waitcnt lgkmcnt(9)")
        a(f"v_lshlrev_b32 v{64+2*r}, 16, v{16+r}")
        a(f"v_and_b32 v{65+2*r}, s45, v{16+r}")
    K = lambda r: f"v[{64+2*r}:{65+2*r}]"
    V = lambda r: f"v[{88+2*r}:{89+2*r}]"
    W = lambda j: f"v[{106+2*j}:{107+2*j}]"
    KV = lambda m: f"v[{16+2*m}:{17+2*m}]"
    a("s_waitcnt lgkmcnt(0)")
    for r in range(9):
        a(f"v_lshlrev_b32 v{88+2*r}, 16, v{28+r}")
        a(f"v_and_b32 v{89+2*r}, s45, v{28+r}")
    for m in range(9): a(f"v_pk_mul_f32 {KV(m)}, {K(m)}, {W(3)}")
    for j in (2, 1, 0):
        for m in range(9): a(f"v_pk_fma_f32 {KV(m)}, {K(m+3-j)}, {W(j)}, {KV(m)}")
    for m in range(9): a(f"v_pk_mul_f32 {KV(m)}, {KV(m)}, {V(m)}")
    for c in range(2):
        for cp in range(2):
            base = 64 + (c * 2 + cp) * 4
            for i in range(4):
                m = 8 - cp - 2 * i
                a(f"v_cvt_pk_bf16_f32 v{base+i}, v{16+2*m+c}, v{16+2*(m-1)+c}")
            a(f"ds_write_b128 v15, v[{base}:{base+3}] offset:{(c*2+cp)*40*144}")
    st("a_done")
    for i in range(8):
        a(f"v_lshlrev_b32 v{88+2*i}, 16, v{44+i}")
        a(f"v_and_b32 v{89+2*i}, s45, v{44+i}")
    X = lambda i: f"v[{88+2*i}:{89+2*i}]"
    a(f"v_pk_add_f32 v[104:105], {X(0)}, {X(1)}")
    a(f"v_pk_mul_f32 v[106:107], {X(0)}, {X(0)}")
    for i in range(1, 8):
        if i >= 2: a(f"v_pk_add_f32 v[104:105], v[104:105], {X(i)}")
        a(f"v_pk_fma_f32 v[106:107], {X(i)}, {X(i)}, v[106:107]")
    a(f"""
    v_add_f32 v104, v104, v105
    v_add_f32 v105, v106, v107
    v_add_f32_dpp v104, v104, v104 row_ror:8 row_mask:0xf bank_mask:0xf
    v_add_f32_dpp v105, v105, v105 row_ror:8 row_mask:0xf bank_mask:0xf
    v_mov_b32 v106, v104
    v_mov_b32 v107, v105
    v_permlane16_swap_b32 v104, v106
    v_permlane16_swap_b32 v105, v107
    v_pk_add_f32 v[104:105], v[104:105], v[106:107]
    v_mov_b32 v106, v104
    v_mov_b32 v107, v105
    v_permlane32_swap_b32 v104, v106
    v_permlane32_swap_b32 v105, v107
    v_pk_add_f32 v[104:105], v[104:105], v[106:107]
    v_and_b32 v109, 7, v0
    v_lshlrev_b32 v109, 3, v109
    v_lshl_add_u32 v108, v2, 6, v109
    ds_write_b64 v108, v[104:105] offset:{STS}
    s_waitcnt lgkmcnt(0)
    s_barrier
    """)
    for r in range(4): a(f"ds_read_b128 v[{16+4*r}:{19+4*r}], v56 offset:{OUT + r*40*144}")
    a(f"""
    ds_read_b64 v[104:105], v109 offset:{STS}
    ds_read_b64 v[106:107], v109 offset:{STS+64}
    ds_read_b64 v[110:111], v109 offset:{STS+128}
    ds_read_b64 v[112:113], v109 offset:{STS+192}
    ds_read_b64 v[114:115], v109 offset:{STS+256}
    """)
    for r in range(4):
        a(f"s_waitcnt lgkmcnt({8-r})")
        a(f"buffer_store_dwordx4 v[{16+4*r}:{19+4*r}], v57, s[36:39], s{41+r} offen sc1")
    a("v_and_b32 v3, 1, v0\nv_cmp_eq_u32 vcc, 1, v3")
    for k in range(4): a(f"v_cndmask_b32 v{64+k}, v{48+k}, v{44+k}, vcc")
    for k in range(4): a(f"v_mov_b32_dpp v{68+k}, v{64+k} quad_perm:[1,0,3,2] row_mask:0xf bank_mask:0xf")
    for g in range(2):
        for h in range(2):
            a(f"v_cndmask_b32 v{72+4*g+h}, v{44+2*g+h}, v{68+2*g+h}, vcc")
            a(f"v_cndmask_b32 v{74+4*g+h}, v{68+2*g+h}, v{48+2*g+h}, vcc")
        a(f"buffer_store_dwordx4 v[{72+4*g}:{75+4*g}], v14, s[36:39], s19 offen offset:{512*g} sc1")
    a("""
    s_waitcnt lgkmcnt(0)
    v_pk_add_f32 v[104:105], v[104:105], v[106:107]
    v_pk_add_f32 v[110:111], v[110:111], v[112:113]
    v_pk_add_f32 v[104:105], v[104:105], v[114:115]
    v_pk_add_f32 v[104:105], v[104:105], v[110:111]
    """)
    ln_stats(a, 104, 105, 106, 107)
    a(f"""
    v_lshlrev_b32 v11, 3, v11
    s_mov_b32 s19, {MR}
    v_cmp_gt_u32 vcc, 8, v0
    s_and_saveexec_b64 s[46:47], vcc
    s_cbranch_execz L_prep_nomr
    buffer_store_dwordx2 v[106:107], v11, s[36:39], s19 offen sc1
L_prep_nomr:
    s_mov_b64 exec, s[46:47]
    """)
    st('b_done')
    a("s_cmp_ge_u32 s3, 2\ns_cbranch_scc1 L_prep_p2b\ns_cmp_ge_u32 s100, 480\ns_cbranch_scc1 L_prep_p2c")
    a("s_mov_b32 s4, 0x05040100\ns_mov_b32 s5, 0x07060302\ns_waitcnt vmcnt(6)")
    for c in range(4):
        o = 136 + c * 4
        for j in range(4):
            lo = 120 + 4 * j + c // 2
            a(f"v_perm_b32 v{o+j}, v{lo+2}, v{lo}, {'s4' if c % 2 == 0 else 's5'}")
        a(f"buffer_store_dwordx4 v[{o}:{o+3}], v59, s[36:39], s96 offen offset:{16*c}")
    a("s_branch L_prep_p2c\nL_prep_p2b:\ns_cmp_eq_u32 s3, 2\ns_cbranch_scc0 L_prep_p2c\ns_cmp_ge_u32 s100, 240\ns_cbranch_scc1 L_prep_p2c")
    for i in range(16):
        a(f"s_waitcnt vmcnt({15-i+6})")
        for k in range(4):
            d = 80 if i == 0 else 88
            a(f"v_lshlrev_b32 v{d+2*k}, 16, v{120+4*i+k}")
            a(f"v_and_b32 v{d+2*k+1}, s45, v{120+4*i+k}")
        if i:
            for k in range(4): a(f"v_pk_add_f32 v[{80+2*k}:{81+2*k}], v[{80+2*k}:{81+2*k}], v[{88+2*k}:{89+2*k}]")
    for k in range(8): a(f"v_add_f32_dpp v{80+k}, v{80+k}, v{80+k} row_ror:8 row_mask:0xf bank_mask:0xf")
    for op in ("v_permlane16_swap_b32", "v_permlane32_swap_b32"):
        for k in range(8): a(f"v_mov_b32 v{88+k}, v{80+k}")
        for k in range(8): a(f"{op} v{80+k}, v{88+k}")
        for k in range(4): a(f"v_pk_add_f32 v[{80+2*k}:{81+2*k}], v[{80+2*k}:{81+2*k}], v[{88+2*k}:{89+2*k}]")
    a("""
    s_mov_b64 exec, 0xff
    buffer_store_dwordx4 v[80:83], v59, s[36:39], s96 offen sc1
    buffer_store_dwordx4 v[84:87], v59, s[36:39], s96 offen offset:16 sc1
    s_mov_b64 exec, -1
L_prep_p2c:
    """)
    st('c_done')
    if DIAG_ON():
        a("s_waitcnt vmcnt(0)"); st('drained')
        st.flush("s3", "s[36:39]")
    a("s_endpgm")
    a("L_prep_end:\ns_endpgm")
    return a
```

```python
import sys
from asm import *
from common import *
from k_prep import prep_kernel, PREP_LDS, PREP_GRID
import k_mega as M

NAME = "interleave_layers__ssm_conv_h3__glu_gated_geglu__prompt"
ref = open(f"cdna_kernels/{NAME}.s.ref").read()
head = "".join(l + "\n" for l in ref.splitlines() if l.startswith(";") and "@launch" not in l and "Override" not in l and "grid=ceil" not in l)

def build(mode="m1"):
    ks = []
    ks.append(("prep_kernel", prep_kernel(), 120, None, PREP_GRID, 320, PREP_LDS))
    ks.append(("mega_kernel", M.mega_kernel(), 512, 256, 256, 256, M.GEMM_LDS))
    out = head
    for n, a, v, acc, gr, bl, lds in ks:
        out += f"; @launch kernel={n} grid=({gr},1,1) block=({bl},1,1) lds={lds}\n"
    out += '.amdgcn_target "amdgcn-amd-amdhsa--gfx950"\n.text\n'
    for n, a, *_ in ks:
        out += kernel_text(n, a)
    out += '.section .rodata,"a"\n'
    for n, a, v, acc, *_ in ks:
        out += descriptor(n, v, 102, acc)
    return out

if __name__ == "__main__":
    dst = sys.argv[1] if len(sys.argv) > 1 else f"cdna_kernels/{NAME}.s"
    import common, json
    if len(sys.argv) > 2 and sys.argv[2].startswith("diag"): common.DIAG = True
    if len(sys.argv) > 2 and sys.argv[2] == "diagc": common.STAMP_OP = "s_memtime"
    open(dst, "w").write(build())
    if common.DIAG: json.dump(common.STAMP_NAMES, open(dst + ".json", "w"))
    print("wrote", dst)
```

```python
from common import *
import os

KT, VT, OUT, STS = 0, 11264, 22528, 22528 + 23040
PREP_LDS = STS + 512
PREP_GRID = 256
NT = os.environ.get('NT', '')

def prep_kernel():
    a = Asm()
    st = Stamps(a, 0)
    a(f"s_cmp_ge_u32 s2, {PREP_GRID}\ns_cbranch_scc1 L_prep_end")
    st("start")
    a(f"""
    v_lshrrev_b32 v2, 6, v0
    v_and_b32 v1, 63, v0                    ; lane
    v_readfirstlane_b32 s3, v2              ; wave
    s_load_dwordx4 s[4:7], s[0:1], 0        ; q, k
    s_load_dwordx4 s[12:15], s[0:1], 16     ; v, shift_k
    s_load_dwordx2 s[16:17], s[0:1], 96     ; ws
    s_lshr_b32 s40, s2, 3
    s_and_b32 s18, s2, 7
    ; ---- tile copy: chunk e = 64 n + lane -> row e/10, 16-byte piece e%10
    s_mul_i32 s19, s40, {64*1280}
    s_mul_i32 s41, s18, 160
    s_add_u32 s19, s19, s41
    s_lshl_b32 s41, s3, 6
    """)
    for r, add in enumerate((0, 320, None)):
        v = 16 + r
        if add is None: a(f"v_add_u32 v{v}, 640, v1")
        else: a(f"v_add_u32 v{v}, s41, v1" + (f"\nv_add_u32 v{v}, {add}, v{v}" if add else ""))
        a(f"""
    v_mul_u32_u24 v3, 6554, v{v}
    v_lshrrev_b32 v3, 16, v3
    v_mul_u32_u24 v4, 1120, v3
    v_lshl_add_u32 v{v}, v{v}, 4, v4
    v_add_u32 v{v}, s19, v{v}
    v_subrev_u32 v{v+4}, {4*1280}, v{v}
    v_subrev_u32 v{v}, 1280, v{v}
    """)
    a(f"""
    ; ---- part (a) indices: u = t/40, p = t%40
    v_mul_u32_u24 v5, 1639, v0
    v_lshrrev_b32 v5, 16, v5                ; u
    v_mul_u32_u24 v6, 40, v5
    v_sub_u32 v6, v0, v6                    ; p
    s_mul_i32 s19, s18, 640
    v_lshl_add_u32 v7, v6, 4, s19
    v_and_b32 v8, 7, v0                     ; tk
    v_lshrrev_b32 v10, 3, v0                ; slot
    s_lshl_b32 s19, s2, 3
    v_add_u32 v11, s19, v8                  ; token
    v_mul_u32_u24 v12, 1280, v11
    v_lshl_add_u32 v12, v10, 5, v12         ; q offset
    s_lshl_b32 s41, s3, 10
    s_waitcnt lgkmcnt(0)
    """)
    srd(a, 24, 6, ACT_BYTES); srd(a, 28, 12, ACT_BYTES)
    st("kernarg")
    a(f"""
    s_add_u32 m0, s41, {KT}
    s_nop 0
    buffer_load_dwordx4 v20, s[24:27], 0 offen {NT} lds
    s_add_u32 m0, s41, {VT}
    s_nop 0
    buffer_load_dwordx4 v16, s[28:31], 0 offen {NT} lds
    s_add_u32 m0, s41, {KT + 5120}
    s_nop 0
    buffer_load_dwordx4 v21, s[24:27], 0 offen {NT} lds
    s_add_u32 m0, s41, {VT + 5120}
    s_nop 0
    buffer_load_dwordx4 v17, s[28:31], 0 offen {NT} lds
    s_cmp_lg_u32 s3, 0
    s_cbranch_scc1 L_prep_k11
    s_mov_b32 m0, {KT + 10240}
    s_nop 0
    buffer_load_dwordx4 v22, s[24:27], 0 offen {NT} lds
L_prep_k11:
    s_cmp_lg_u32 s3, 1
    s_cbranch_scc1 L_prep_v11
    s_mov_b32 m0, {VT + 10240}
    s_mov_b64 exec, 0x3ff
    buffer_load_dwordx4 v18, s[28:31], 0 offen {NT} lds
    s_mov_b64 exec, -1
L_prep_v11:
    """)
    srd(a, 20, 4, ACT_BYTES); srd(a, 32, 14, D * 8); srd(a, 36, 16, WS_USED)
    a(f"""
    s_load_dwordx2 s[4:5], s[0:1], 32       ; ssm_k
    s_load_dwordx4 s[12:15], s[0:1], 56
    s_load_dwordx2 s[6:7], s[0:1], 72       ; w_down
    buffer_load_dwordx4 v[40:43], v7, s[32:35], 0 offen
    buffer_load_dwordx4 v[44:47], v12, s[20:23], 0 offen {NT}
    buffer_load_dwordx4 v[48:51], v12, s[20:23], 0 offen offset:16 {NT}
    s_mul_i32 s19, s2, 1536
    s_add_u32 s19, s19, {ST1}
    v_lshl_add_u32 v13, v0, 4, s19
    s_lshl_b32 s19, s2, 8
    s_add_u32 s19, s19, {FL - 96*16}
    v_lshl_add_u32 v14, v0, 4, s19
    v_cmp_gt_u32 vcc, 96, v0
    v_mov_b32 v52, 0
    v_cndmask_b32 v13, v14, v13, vcc
    v_cndmask_b32 v52, v52, -1, vcc
    v_mov_b32 v53, v52
    v_mov_b32 v54, v52
    v_mov_b32 v55, v52
    v_cmp_gt_u32 vcc, 112, v0
    s_and_saveexec_b64 s[46:47], vcc
    s_cbranch_execz L_prep_nod
    buffer_store_dwordx4 v[52:55], v13, s[36:39], 0 offen sc1
L_prep_nod:
    s_mov_b64 exec, s[46:47]
    s_mov_b32 s45, 0xffff0000
    v_mul_u32_u24 v13, 1280, v5
    v_lshl_add_u32 v13, v6, 2, v13
    v_mul_u32_u24 v15, 144, v6
    v_lshlrev_b32 v3, 4, v5
    v_sub_u32 v15, v15, v3
    v_add_u32 v15, {OUT + 112}, v15
    v_mul_u32_u24 v56, 144, v10
    v_and_b32 v3, 7, v0
    v_lshl_add_u32 v56, v3, 4, v56
    v_lshlrev_b32 v57, 14, v10
    v_lshl_add_u32 v57, v3, 4, v57
    s_mul_i32 s41, s18, {80*XT_CH}
    s_lshl_b32 s42, s40, 7
    s_sub_u32 s41, s41, s42
    s_add_u32 s41, s41, {XT + 3968}
    s_add_u32 s42, s41, {XT_CP}
    s_add_u32 s43, s41, {XT_CH}
    s_add_u32 s44, s41, {XT_CH + XT_CP}
    v_lshlrev_b32 v14, 11, v10
    v_and_b32 v3, 6, v8
    v_lshl_add_u32 v14, v3, 3, v14
    v_and_b32 v3, 1, v8
    v_lshl_add_u32 v14, v3, 10, v14
    s_lshr_b32 s19, s2, 3
    s_mul_i32 s19, s19, {TB}
    s_lshl_b32 s46, s18, 6
    s_add_u32 s19, s19, s46
    s_add_u32 s19, s19, {X1}
    s_waitcnt lgkmcnt(0)
    s_cmp_ge_u32 s3, 2
    s_cbranch_scc1 L_prep_s2b
    s_lshl_b32 s100, s2, 1
    s_add_u32 s100, s100, s3
    s_mul_i32 s96, s100, 13108
    s_lshr_b32 s96, s96, 16
    s_mul_i32 s97, s96, 5
    s_sub_u32 s97, s100, s97                ; strip
    s_mul_i32 s98, s96, {16*1280}
    s_add_u32 s99, s98, {8*1280}
    s_mov_b32 s8, s6
    s_mov_b32 s9, s7
    v_and_b32 v3, 31, v1
    v_lshrrev_b32 v4, 5, v1                 ; half
    s_lshl_b32 s97, s97, 7
    v_lshl_add_u32 v3, v3, 2, s97           ; c0
    v_mul_u32_u24 v58, {4*1280}, v4
    v_lshl_add_u32 v58, v3, 1, v58
    v_lshrrev_b32 v60, 4, v3                ; x = c0>>4
    v_mul_u32_u24 v59, 26, v60
    v_lshrrev_b32 v59, 7, v59               ; cb2 = x / 5
    v_mul_u32_u24 v61, 5, v59
    v_sub_u32 v61, v60, v61                 ; mt
    v_mul_u32_u24 v59, 245760, v59
    v_lshl_add_u32 v59, v61, 10, v59
    v_and_b32 v61, 15, v3
    v_lshl_add_u32 v59, v61, 4, v59
    v_lshl_add_u32 v59, v4, 8, v59
    ; cb = fb/3 ; P = fb%3 ; dest = (12 (cb>>3) + 4 P + ((cb&7)>>1))*5120 + (cb&1)*512
    s_mul_i32 s97, s96, 43
    s_lshr_b32 s97, s97, 7
    s_mul_i32 s4, s97, 3
    s_sub_u32 s4, s96, s4
    s_lshl_b32 s4, s4, 2
    s_lshr_b32 s5, s97, 3
    s_mul_i32 s5, s5, 12
    s_add_u32 s4, s4, s5
    s_bfe_u32 s5, s97, 0x20001
    s_add_u32 s4, s4, s5
    s_mul_i32 s4, s4, 5120
    s_and_b32 s5, s97, 1
    s_lshl_b32 s5, s5, 9
    s_add_u32 s4, s4, s5
    s_add_u32 s96, s4, {WDL}
    s_branch L_prep_s2c
L_prep_s2b:
    s_cmp_eq_u32 s3, 2
    s_cbranch_scc0 L_prep_s2h
    s_mul_i32 s96, s2, 13108
    s_lshr_b32 s96, s96, 16
    s_mul_i32 s97, s96, 5
    s_sub_u32 s97, s2, s97
    s_cmp_ge_u32 s96, 24
    s_cselect_b32 s8, s14, s12
    s_cselect_b32 s9, s15, s13
    s_cselect_b32 s98, 24, 0
    s_sub_u32 s98, s96, s98
    s_lshl_b32 s98, s98, 7
    s_mul_i32 s99, s97, {128*3072}
    s_add_u32 s98, s98, s99
    v_lshrrev_b32 v58, 3, v1
    v_mul_u32_u24 v58, 3072, v58
    v_and_b32 v59, 7, v1
    v_lshl_add_u32 v58, v59, 4, v58
    v_lshlrev_b32 v59, 5, v59
    s_mul_i32 s97, s97, {3072*4}
    s_lshl_b32 s96, s96, 8
    s_add_u32 s96, s96, s97
    s_add_u32 s96, s96, {CS}
    s_mov_b32 s100, s2
    s_branch L_prep_s2c
L_prep_s2h:
    s_mov_b32 s8, s4
    s_mov_b32 s9, s5
    s_mul_i32 s98, s18, {80*4096}
    s_mul_i32 s99, s40, 10240
    s_add_u32 s98, s98, s99
    v_mov_b32 v59, 0
    s_mov_b32 s96, 0
    v_subrev_u32 v58, 192, v0
    v_lshlrev_b32 v58, 7, v58
L_prep_s2c:
    s_and_b32 s9, s9, 0xffff
    s_cmp_ge_u32 s3, 3
    s_mov_b32 s10, {D*F*2}
    s_cselect_b32 s10, {D*S*2}, s10
    s_mov_b32 s11, 0x20000
    s_waitcnt vmcnt(0)
    s_barrier
    """)
    st("loaded")
    a("s_cmp_ge_u32 s3, 2\ns_cbranch_scc1 L_prep_l2b\ns_cmp_ge_u32 s100, 480\ns_cbranch_scc1 L_prep_l2c")
    for e in range(8):
        a(f"buffer_load_dwordx2 v[{120+2*e}:{121+2*e}], v58, s[8:11], s{98 + e//4} offen offset:{1280*(e%4)} {NT}")
    a("s_branch L_prep_l2c\nL_prep_l2b:\ns_cmp_eq_u32 s3, 2\ns_cbranch_scc0 L_prep_l2h\ns_cmp_ge_u32 s100, 240\ns_cbranch_scc1 L_prep_l2c")
    for i in range(16):
        a(f"buffer_load_dwordx4 v[{120+4*i}:{123+4*i}], v58, s[8:11], s98 offen")
        if i < 15: a(f"s_add_u32 s98, s98, {8*3072}")
    a("""
    s_branch L_prep_l2c
L_prep_l2h:
    v_cmp_gt_u32 vcc, 272, v0
    s_and_saveexec_b64 s[46:47], vcc
    buffer_load_dword v120, v58, s[8:11], s98 offen
    s_mov_b64 exec, s[46:47]
    s_cmp_lg_u32 s3, 4
    s_cbranch_scc1 L_prep_l2c
    s_getpc_b64 s[4:5]
L_prep_pc:
    s_add_u32 s4, s4, mega_kernel-L_prep_pc
    s_addc_u32 s5, s5, 0
    s_lshl_b32 s6, s40, 11
    v_lshl_add_u32 v121, v1, 7, s6
    v_cmp_gt_u32 vcc, L_mega_last-mega_kernel, v121
    s_and_b32 vcc_lo, vcc_lo, 0xffff
    s_mov_b32 vcc_hi, 0
    s_and_saveexec_b64 s[46:47], vcc
    s_cbranch_execz L_prep_nocode
    global_load_dword v122, v121, s[4:5]
L_prep_nocode:
    s_mov_b64 exec, s[46:47]
L_prep_l2c:
    """)
    for r in range(12): a(f"ds_read_b32 v{16+r}, v13 offset:{KT + 160*r}")
    a("""
    v_lshlrev_b32 v106, 16, v40
    v_lshlrev_b32 v107, 16, v42
    v_and_b32 v108, s45, v40
    v_and_b32 v109, s45, v42
    v_lshlrev_b32 v110, 16, v41
    v_lshlrev_b32 v111, 16, v43
    v_and_b32 v112, s45, v41
    v_and_b32 v113, s45, v43
    s_waitcnt lgkmcnt(6)
    """)
    for r in range(9): a(f"ds_read_b32 v{28+r}, v13 offset:{VT + 160*r}")
    for r in range(12):
        if r == 6: a("s_waitcnt lgkmcnt(9)")
        a(f"v_lshlrev_b32 v{64+2*r}, 16, v{16+r}")
        a(f"v_and_b32 v{65+2*r}, s45, v{16+r}")
    K = lambda r: f"v[{64+2*r}:{65+2*r}]"
    V = lambda r: f"v[{88+2*r}:{89+2*r}]"
    W = lambda j: f"v[{106+2*j}:{107+2*j}]"
    KV = lambda m: f"v[{16+2*m}:{17+2*m}]"
    a("s_waitcnt lgkmcnt(0)")
    for r in range(9):
        a(f"v_lshlrev_b32 v{88+2*r}, 16, v{28+r}")
        a(f"v_and_b32 v{89+2*r}, s45, v{28+r}")
    for m in range(9): a(f"v_pk_mul_f32 {KV(m)}, {K(m)}, {W(3)}")
    for j in (2, 1, 0):
        for m in range(9): a(f"v_pk_fma_f32 {KV(m)}, {K(m+3-j)}, {W(j)}, {KV(m)}")
    for m in range(9): a(f"v_pk_mul_f32 {KV(m)}, {KV(m)}, {V(m)}")
    for c in range(2):
        for cp in range(2):
            base = 64 + (c * 2 + cp) * 4
            for i in range(4):
                m = 8 - cp - 2 * i
                a(f"v_cvt_pk_bf16_f32 v{base+i}, v{16+2*m+c}, v{16+2*(m-1)+c}")
            a(f"ds_write_b128 v15, v[{base}:{base+3}] offset:{(c*2+cp)*40*144}")
    st("a_done")
    for i in range(8):
        a(f"v_lshlrev_b32 v{88+2*i}, 16, v{44+i}")
        a(f"v_and_b32 v{89+2*i}, s45, v{44+i}")
    X = lambda i: f"v[{88+2*i}:{89+2*i}]"
    a(f"v_pk_add_f32 v[104:105], {X(0)}, {X(1)}")
    a(f"v_pk_mul_f32 v[106:107], {X(0)}, {X(0)}")
    for i in range(1, 8):
        if i >= 2: a(f"v_pk_add_f32 v[104:105], v[104:105], {X(i)}")
        a(f"v_pk_fma_f32 v[106:107], {X(i)}, {X(i)}, v[106:107]")
    a(f"""
    v_add_f32 v104, v104, v105
    v_add_f32 v105, v106, v107
    v_add_f32_dpp v104, v104, v104 row_ror:8 row_mask:0xf bank_mask:0xf
    v_add_f32_dpp v105, v105, v105 row_ror:8 row_mask:0xf bank_mask:0xf
    v_mov_b32 v106, v104
    v_mov_b32 v107, v105
    v_permlane16_swap_b32 v104, v106
    v_permlane16_swap_b32 v105, v107
    v_pk_add_f32 v[104:105], v[104:105], v[106:107]
    v_mov_b32 v106, v104
    v_mov_b32 v107, v105
    v_permlane32_swap_b32 v104, v106
    v_permlane32_swap_b32 v105, v107
    v_pk_add_f32 v[104:105], v[104:105], v[106:107]
    v_and_b32 v109, 7, v0
    v_lshlrev_b32 v109, 3, v109
    v_lshl_add_u32 v108, v2, 6, v109
    ds_write_b64 v108, v[104:105] offset:{STS}
    s_waitcnt lgkmcnt(0)
    s_barrier
    """)
    for r in range(4): a(f"ds_read_b128 v[{16+4*r}:{19+4*r}], v56 offset:{OUT + r*40*144}")
    a(f"""
    ds_read_b64 v[104:105], v109 offset:{STS}
    ds_read_b64 v[106:107], v109 offset:{STS+64}
    ds_read_b64 v[110:111], v109 offset:{STS+128}
    ds_read_b64 v[112:113], v109 offset:{STS+192}
    ds_read_b64 v[114:115], v109 offset:{STS+256}
    """)
    for r in range(4):
        a(f"s_waitcnt lgkmcnt({8-r})")
        a(f"buffer_store_dwordx4 v[{16+4*r}:{19+4*r}], v57, s[36:39], s{41+r} offen sc1")
    a("v_and_b32 v3, 1, v0\nv_cmp_eq_u32 vcc, 1, v3")
    for k in range(4): a(f"v_cndmask_b32 v{64+k}, v{48+k}, v{44+k}, vcc")
    for k in range(4): a(f"v_mov_b32_dpp v{68+k}, v{64+k} quad_perm:[1,0,3,2] row_mask:0xf bank_mask:0xf")
    for g in range(2):
        for h in range(2):
            a(f"v_cndmask_b32 v{72+4*g+h}, v{44+2*g+h}, v{68+2*g+h}, vcc")
            a(f"v_cndmask_b32 v{74+4*g+h}, v{68+2*g+h}, v{48+2*g+h}, vcc")
        a(f"buffer_store_dwordx4 v[{72+4*g}:{75+4*g}], v14, s[36:39], s19 offen offset:{512*g} sc1")
    a("""
    s_waitcnt lgkmcnt(0)
    v_pk_add_f32 v[104:105], v[104:105], v[106:107]
    v_pk_add_f32 v[110:111], v[110:111], v[112:113]
    v_pk_add_f32 v[104:105], v[104:105], v[114:115]
    v_pk_add_f32 v[104:105], v[104:105], v[110:111]
    """)
    ln_stats(a, 104, 105, 106, 107)
    a(f"""
    v_lshlrev_b32 v11, 3, v11
    s_mov_b32 s19, {MR}
    v_cmp_gt_u32 vcc, 8, v0
    s_and_saveexec_b64 s[46:47], vcc
    s_cbranch_execz L_prep_nomr
    buffer_store_dwordx2 v[106:107], v11, s[36:39], s19 offen sc1
L_prep_nomr:
    s_mov_b64 exec, s[46:47]
    """)
    st('b_done')
    a("s_cmp_ge_u32 s3, 2\ns_cbranch_scc1 L_prep_p2b\ns_cmp_ge_u32 s100, 480\ns_cbranch_scc1 L_prep_p2c")
    a("s_mov_b32 s4, 0x05040100\ns_mov_b32 s5, 0x07060302\ns_waitcnt vmcnt(6)")
    for c in range(4):
        o = 136 + c * 4
        for j in range(4):
            lo = 120 + 4 * j + c // 2
            a(f"v_perm_b32 v{o+j}, v{lo+2}, v{lo}, {'s4' if c % 2 == 0 else 's5'}")
        a(f"buffer_store_dwordx4 v[{o}:{o+3}], v59, s[36:39], s96 offen offset:{16*c}")
    a("s_branch L_prep_p2c\nL_prep_p2b:\ns_cmp_eq_u32 s3, 2\ns_cbranch_scc0 L_prep_p2c\ns_cmp_ge_u32 s100, 240\ns_cbranch_scc1 L_prep_p2c")
    for i in range(16):
        a(f"s_waitcnt vmcnt({15-i+6})")
        for k in range(4):
            d = 80 if i == 0 else 88
            a(f"v_lshlrev_b32 v{d+2*k}, 16, v{120+4*i+k}")
            a(f"v_and_b32 v{d+2*k+1}, s45, v{120+4*i+k}")
        if i:
            for k in range(4): a(f"v_pk_add_f32 v[{80+2*k}:{81+2*k}], v[{80+2*k}:{81+2*k}], v[{88+2*k}:{89+2*k}]")
    for k in range(8): a(f"v_add_f32_dpp v{80+k}, v{80+k}, v{80+k} row_ror:8 row_mask:0xf bank_mask:0xf")
    for op in ("v_permlane16_swap_b32", "v_permlane32_swap_b32"):
        for k in range(8): a(f"v_mov_b32 v{88+k}, v{80+k}")
        for k in range(8): a(f"{op} v{80+k}, v{88+k}")
        for k in range(4): a(f"v_pk_add_f32 v[{80+2*k}:{81+2*k}], v[{80+2*k}:{81+2*k}], v[{88+2*k}:{89+2*k}]")
    a("""
    s_mov_b64 exec, 0xff
    buffer_store_dwordx4 v[80:83], v59, s[36:39], s96 offen sc1
    buffer_store_dwordx4 v[84:87], v59, s[36:39], s96 offen offset:16 sc1
    s_mov_b64 exec, -1
L_prep_p2c:
    """)
    st('c_done')
    if DIAG_ON():
        a("s_waitcnt vmcnt(0)"); st('drained')
        st.flush("s3", "s[36:39]")
    a("s_endpgm")
    a("L_prep_end:\ns_endpgm")
    return a
```

```python
from common import *
from collections import deque
import struct, math

def f2u(x): return struct.unpack("<I", struct.pack("<f", x))[0]
GC0 = -2.0 * math.sqrt(2.0 / math.pi) * math.log2(math.e)
GC1 = GC0 * 0.044715

GA, UA = 0, 61568
CSF = 123136
RB = CSF + 3072
GEMM_LDS = 163840
RING = 12
NMAIN = 40 - RING
ACC1 = 48
TMP = 144
RING0 = 160
ACC2 = 24
F1 = FL
F3 = FL + 32768
XID = FL + 40960
SH = FL + 57344
GO = FL + 58368
SPIN = 0x40000
CA = 110592
CWS = 13312
CONV_W = 15
XSKIP = 2

def cost(s):
    op = s.split()[0]
    if op.startswith(("v_exp", "v_rcp", "v_sqrt", "v_swap", "v_permlane")): return 8
    return 4

def hslot(j): return (RING0 + (j % 9) * 16) if (j % 9) < 6 else (112 + ((j % 9) - 6) * 16)

import os
DETAIL = os.environ.get('DETAIL', '')
class Mega:
    def __init__(self, st):
        self.a = st.a
        self.st = st
        self.vm = Cnt(self.a, "vmcnt", 63)
        self.lg = Cnt(self.a, "lgkmcnt", 15)
        self.tail_blocks = []
        self.vq = deque()
        self.fq = deque()

    def vslot(self, n=1):
        done = 0
        i = 0
        while done < n and i < len(self.vq):
            ok, fn = self.vq[i]
            if ok():
                del self.vq[i]; fn(); done += 1
            else:
                i += 1
        return done
    def ensure(self, tag, n):
        while self.vm.count.get(tag, 0) < n:
            assert self.vslot(1) == 1, tag
    def fill(self, budget):
        while self.fq:
            x = self.fq[0]
            c = 4 if callable(x) else cost(x)
            if c > budget: break
            self.fq.popleft()
            if callable(x): x()
            else: self.a(x)
            budget -= c
    def flush_fill(self):
        self.fill(1 << 30)

    def ids(self):
        a = self.a
        a(f"""
    s_load_dwordx2 s[8:9], s[0:1], 96       ; ws
    s_load_dwordx4 s[4:7], s[0:1], 32
    s_load_dwordx4 s[40:43], s[0:1], 56
    s_load_dwordx2 s[12:13], s[0:1], 80     ; out
    v_lshrrev_b32 v2, 6, v0
    v_and_b32 v1, 63, v0
    v_readfirstlane_b32 s3, v2
    s_and_b32 s20, s2, 7
    s_lshr_b32 s21, s2, 3                   ; m
    v_lshlrev_b32 v2, 4, v1                 ; lane*16
    s_mov_b32 s39, 0xffff0000
    s_lshl_b32 s24, s20, 2
    s_add_u32 s24, s24, s3                  ; tb1 = 4G + w
    v_lshrrev_b32 v3, 5, v1                 ; hf
    v_and_b32 v4, 31, v1                    ; c
    v_lshlrev_b32 v6, 4, v4
    v_lshl_add_u32 v5, v3, 10, v6
    v_lshl_add_u32 v6, v3, 11, v6
    v_bfe_u32 v10, v1, 2, 2
    v_lshl_add_u32 v10, v3, 3, v10
    v_mul_u32_u24 v10, 96, v10
    v_and_b32 v11, 3, v1
    v_lshl_add_u32 v10, v11, 3, v10
    v_bfe_u32 v11, v1, 4, 1
    v_mul_u32_u24 v11, {UA}, v11
    v_add_u32 v10, v10, v11
    v_lshlrev_b32 v11, 2, v4                ; (lane&31)*4
    s_lshr_b32 s44, s21, 3
    s_lshl_b32 s45, s20, 2
    s_add_u32 s44, s44, s45                 ; tb2
    s_and_b32 s45, s21, 7                   ; cb2
    s_mov_b32 s38, 0
    """)

    def wread(self, ks, mt, dst, tag):
        if ks == 40:
            self.a(f"ds_read_b128 v[{dst}:{dst+3}], v7 offset:{mt*1024}"); self.lg.issue(tag)
            return
        for h in range(2):
            self.a(f"ds_read_b64_tr_b16 v[{dst+2*h}:{dst+2*h+1}], v10 offset:{ks*1536 + mt*32 + h*384}"); self.lg.issue(tag)

    def epi_ops(self, mt, par, packed):
        acc = ACC1 + (mt * 2 + par) * 16
        T = TMP + 8 * par
        o = []
        if packed:
            P = lambda i: f"v[{acc+2*i}:{acc+2*i+1}]"
            Tm = lambda i: f"v[{T+2*i}:{T+2*i+1}]"
            p = par
            for i in range(4): o.append(f"v_pk_mul_f32 {Tm(i)}, {P(i)}, {P(i)}")
            for i in range(4): o.append(f"v_pk_fma_f32 {Tm(i)}, {Tm(i)}, v[14:15], v[12:13] op_sel:[0,{p},{p}] op_sel_hi:[1,{p},{p}]")
            for i in range(4): o.append(f"v_pk_mul_f32 {Tm(i)}, {Tm(i)}, {P(i)}")
            for i in range(8): o.append(f"v_exp_f32 v{T+i}, v{T+i}")
            for i in range(4): o.append(f"v_pk_mul_f32 {P(i)}, {P(i)}, {P(i+4)}")
            for i in range(4): o.append(f"v_pk_fma_f32 {Tm(i)}, {Tm(i)}, v[16:17], v[16:17] op_sel:[0,{p},{p}] op_sel_hi:[1,{p},{p}]")
            for i in range(8): o.append(f"v_rcp_f32 v{T+i}, v{T+i}")
            for i in range(4): o.append(f"v_pk_mul_f32 {P(i)}, {P(i)}, {Tm(i)}")
        else:
            for i in range(8): o.append(f"v_mul_f32 v{T+i}, v{acc+i}, v{acc+i}")
            for i in range(8): o.append(f"v_fma_f32 v{T+i}, v{T+i}, v{14+par}, v{12+par}")
            for i in range(8): o.append(f"v_mul_f32 v{T+i}, v{T+i}, v{acc+i}")
            for i in range(8):
                o.append(f"v_exp_f32 v{T+i}, v{T+i}")
                o.append(f"v_mul_f32 v{acc+i}, v{acc+i}, v{acc+8+i}")
            for i in range(8): o.append(f"v_fma_f32 v{T+i}, v{T+i}, v{16+par}, v{16+par}")
            for i in range(8): o.append(f"v_rcp_f32 v{T+i}, v{T+i}")
            for i in range(8): o.append(f"v_mul_f32 v{acc+i}, v{acc+i}, v{T+i}")
        for i in range(4): o.append(f"v_cvt_pk_bf16_f32 v{acc+8+i}, v{acc+2*i}, v{acc+2*i+1}")
        def store():
            ins = f"buffer_store_dwordx4 v[{acc+8}:{acc+11}], v2, s[8:11], s{27+par} offen offset:{mt*1024}"
            if self.layer == 0: self.a(ins + " sc1")
            else: self.dstore([ins])
            self.vm.issue(f"h{mt}")
        o.append(store)
        return o

    def dstore(self, instrs):
        a = self.a
        Ls, Lb = a.label("wt"), a.label("wb")
        a(f"s_cmp_eq_u32 s38, 0\ns_cbranch_scc1 {Ls}")
        for i in instrs: a(i)
        a(f"{Lb}:")
        self.tail_blocks.append(f"{Ls}:\n" + "\n".join(i + (" sc1" if i.startswith("buffer_store") else "") for i in instrs) + f"\ns_nop 1\ns_branch {Lb}\n")

    def flag_store(self, sreg, off):
        self.a("s_mov_b64 exec, 1")
        self.dstore([f"buffer_store_dword v9, v8, s[8:11], {sreg} offen offset:{off}"])
        self.a("s_mov_b64 exec, -1")
        self.vm.issue("flag")

    def poll_issue(self, sreg, dst):
        self.a(f"buffer_load_dword v{dst}, v11, s[8:11], {sreg} offen sc1"); self.vm.issue("poll")
    def poll_check(self, sreg, dst, mask):
        a = self.a
        self.vm.wait("poll")
        Lr, Lb = a.label("spin"), a.label("back")
        a(f"""
    v_cmp_ne_u32 vcc, 0, v{dst}
    s_and_b32 s34, vcc_lo, {hex(mask)}
    s_cmp_lg_u32 s34, {hex(mask)}
    s_cbranch_scc1 {Lr}
{Lb}:
    """)
        self.tail_blocks.append(f"""
{Lr}:
    s_mov_b32 s35, {SPIN}
{Lr}_l:
    buffer_load_dword v{dst}, v11, s[8:11], {sreg} offen sc1
    s_waitcnt vmcnt(0)
    v_cmp_ne_u32 vcc, 0, v{dst}
    s_nop 1
    s_and_b32 s34, vcc_lo, {hex(mask)}
    s_cmp_eq_u32 s34, {hex(mask)}
    s_cbranch_scc1 {Lb}
    s_sub_u32 s35, s35, 1
    s_cbranch_scc0 {Lr}_l
    s_branch {Lb}
""")

    def w1dma(self, i):
        a = self.a
        r, u = i // 3, i % 3
        a(f"s_add_u32 m0, s31, {r*6144 + u*1024}")
        a(f"s_add_u32 s33, s30, {r*64*3072}" if u == 0 else "s_nop 0")
        a(f"buffer_load_dwordx4 v{12+u}, s[16:19], s33 offen lds"); self.vm.issue("W")
    def wdl(self, j, mt):
        a = self.a
        i = j * 5 + mt
        if mt == 0:
            a(f"s_add_u32 s47, s46, s{97 + j%4}")
            if j >= 4: a(f"s_add_u32 s47, s47, {(j//4)*20480}")
        if mt < 4: a(f"buffer_load_dwordx4 a[{4*i}:{4*i+3}], v2, s[8:11], s47 offen offset:{mt*1024}")
        else: a(f"buffer_load_dwordx4 a[{4*i}:{4*i+3}], v0, s[8:11], s47 offen")
        self.vm.issue(f"D{j}")

    def front(self):
        a, vm, lg, st = self.a, self.vm, self.lg, self.st
        a(f"""
    s_lshr_b32 s27, s3, 1
    s_mul_i32 s30, s27, {32*3072}
    s_mul_i32 s31, s21, 96
    s_add_u32 s30, s30, s31
    s_mul_i32 s31, s27, 3072
    s_and_b32 s27, s3, 1
    s_mul_i32 s27, s27, {UA}
    s_add_u32 s31, s31, s27
    s_mul_i32 s46, s45, 245760
    s_mul_i32 s47, s3, 61440
    s_add_u32 s46, s46, s47
    s_add_u32 s46, s46, {WDL}
    v_add_u32 v0, 4096, v2
    """)
        for u in range(3):
            a(f"v_add_u32 v15, {64*u}, v1\nv_mul_u32_u24 v16, 10923, v15\nv_lshrrev_b32 v16, 16, v16\nv_mul_u32_u24 v16, 2976, v16\nv_lshl_add_u32 v{12+u}, v15, 4, v16")
        for jj in range(4):
            a(f"s_lshr_b32 s27, s21, 3\ns_add_u32 s27, s27, {jj}\ns_and_b32 s27, s27, 3\ns_mul_i32 s{97+jj}, s27, 5120")
        a(f"""
    s_getreg_b32 s37, hwreg(HW_REG_XCC_ID)
    s_lshl_b32 s22, s20, 11
    s_and_b32 s37, s37, 15
    s_add_u32 s22, s22, {XID}
    s_add_u32 s37, s37, 1
    s_lshl_b32 s27, s21, 6
    s_lshl_b32 s28, s3, 2
    s_add_u32 s27, s27, s28
    v_mov_b32 v8, s27
    v_mov_b32 v9, s37
    s_waitcnt lgkmcnt(0)
    s_and_b32 s9, s9, 0xffff
    s_mov_b32 s10, {WS_USED}
    s_mov_b32 s11, 0x20000
    s_bitcmp1_b32 s3, 0
    s_cselect_b32 s16, s42, s40
    s_cselect_b32 s17, s43, s41
    s_and_b32 s17, s17, 0xffff
    s_mov_b32 s18, {D*F*2}
    s_mov_b32 s19, 0x20000
    s_and_b32 s13, s13, 0xffff
    s_mov_b32 s14, {ACT_BYTES}
    s_mov_b32 s15, 0x20000
    s_cmp_ge_u32 s21, 20
    s_cbranch_scc1 L_idle
    s_mul_i32 s40, s20, 20
    s_add_u32 s40, s40, s21                 ; g
    s_lshl_b32 s41, s40, 2
    s_add_u32 s41, s41, s3                  ; d
    s_lshl_b32 s42, s41, 13
    s_add_u32 s42, s42, {XT}
    s_lshl_b32 s25, s41, 12
    s_mul_i32 s26, s3, {CWS}
    s_add_u32 s26, s26, {CA}
    """)
        a(f"s_add_u32 m0, s26, 4288")
        srd(a, 32, 4, D * S * 2)
        st("ids")
        for i in range(4): a(f"buffer_load_dwordx4 v2, s[8:11], s42 offen offset:{1024*i} lds"); vm.issue("x")
        a(f"s_mov_b32 m0, s26\ns_add_u32 s43, s42, {XT_CP}")
        for i in range(4): a(f"buffer_load_dwordx4 v2, s[8:11], s43 offen offset:{1024*i} lds"); vm.issue("x")
        a(f"s_add_u32 s27, s26, {8704+512}\ns_mov_b32 m0, s27\ns_add_u32 s4, s4, s25\ns_addc_u32 s5, s5, 0")
        for i in range(4): a(f"buffer_load_dwordx4 v2, s[32:35], s25 offen offset:{1024*i} lds"); vm.issue("x")
        a(f"""
    s_load_dword s28, s[4:5], 0
    s_lshr_b32 s29, s41, 1
    s_lshl_b32 s29, s29, 2
    s_add_u32 s6, s6, s29
    s_addc_u32 s7, s7, 0
    s_load_dword s29, s[6:7], 0
    s_mov_b64 exec, 1
    buffer_store_dword v9, v8, s[8:11], s22 offen sc1
    s_mov_b64 exec, -1
    """)
        vm.issue("xid")
        FB, GB, AC, QR = 64, 128, 32, 192
        a(f"""
    v_and_b32 v28, 15, v1                   ; b / a
    v_lshrrev_b32 v29, 4, v1                ; q
    v_mov_b32 v24, 0
    v_mov_b32 v25, 0
    v_mov_b32 v26, 0
    v_mov_b32 v27, 0
    v_lshl_add_u32 v15, v1, 3, s26
    ds_write_b64 v15, v[24:25] offset:8704
    v_lshrrev_b32 v15, 1, v1
    v_mul_u32_u24 v15, 4288, v15
    v_and_b32 v16, 1, v1
    v_lshl_add_u32 v15, v16, 4, v15
    v_add_u32 v15, s26, v15
    s_mov_b64 exec, 15
    ds_write_b128 v15, v[24:27] offset:4096
    s_mov_b64 exec, -1
    ; F bases: 28 + 16 q - 4 (b&7) + (b>=8 ? 4288 : 0) + 1024 (3 - i)
    v_and_b32 v15, 7, v28
    v_lshlrev_b32 v15, 2, v15
    v_lshlrev_b32 v16, 4, v29
    v_sub_u32 v15, v16, v15
    v_lshrrev_b32 v17, 3, v28
    v_mul_u32_u24 v17, 4288, v17
    v_add3_u32 v15, v15, v17, s26
    v_add_u32 v19, 28, v15
    v_add_u32 v18, {28+1024}, v15
    v_add_u32 v17, {28+2048}, v15
    v_add_u32 v16, {28+3072}, v15
    v_lshlrev_b32 v20, 5, v28
    v_lshl_add_u32 v20, v29, 4, v20
    v_add_u32 v20, s26, v20
    s_lshl_b32 s43, s3, 6
    s_add_u32 s43, s43, s26
    v_lshlrev_b32 v21, 11, v3
    v_lshl_add_u32 v21, v28, 4, v21
    v_and_b32 v22, 1, v29
    v_lshl_add_u32 v21, v22, 3, v21
    v_add_u32 v21, s43, v21
    v_lshrrev_b32 v22, 2, v28
    v_mul_u32_u24 v22, {CWS+64}, v22
    v_and_b32 v23, 3, v28
    v_lshl_add_u32 v22, v23, 3, v22
    v_lshl_add_u32 v22, v29, 5, v22
    s_lshl_b32 s43, s3, 7
    s_add_u32 s43, s43, {CA}
    v_add_u32 v22, s43, v22
    s_lshl_b32 s42, s3, 10
    s_add_u32 s42, s42, {MR}
    v_mul_u32_u24 v23, {TB}, v3
    v_lshl_add_u32 v23, v4, 4, v23
    s_mul_i32 s43, s3, {2*TB}
    s_lshl_b32 s25, s40, 9
    s_add_u32 s43, s43, s25
    s_waitcnt lgkmcnt(0)
    ; h'[0] = bf16(h[0] + D[d])
    s_lshl_b32 s28, s28, 16
    s_and_b32 s25, s29, 0xffff0000
    s_lshl_b32 s29, s29, 16
    s_bitcmp1_b32 s41, 0
    s_cselect_b32 s29, s25, s29
    v_mov_b32 v24, s28
    v_add_f32 v24, s29, v24
    v_cvt_pk_bf16_f32 v24, v24, v24
    v_mov_b32 v25, s27
    """)
        st("issued")
        vm.wait("x")
        st("landed")
        a("s_mov_b64 exec, 1\nds_write_b16 v25, v24\ns_mov_b64 exec, -1")
        def reads(rho):
            l = []
            fb, gb = FB + (rho & 1) * 32, GB + (rho & 1) * 32
            for k in range(8):
                sg = k
                o = (512 * (1 - (sg & 1)) + 448 - 64 * rho) // 4
                for h in range(2):
                    l.append(f"ds_read2_b32 v[{fb+4*sg+2*h}:{fb+4*sg+2*h+1}], v{16 + sg//2} offset0:{o+2*h} offset1:{o+2*h+1}")
                l.append(f"ds_read_b128 v[{gb+4*k}:{gb+4*k+3}], v20 offset:{8704 + 480 - 64*(rho - 8*k)}")
            return l
        for k, x in enumerate(reads(0)):
            if k in (10, 20): a("s_waitcnt lgkmcnt(3)")
            a(x)
        vq = deque()
        def qn(j, k):
            r = QR + 16 * k + 4 * j
            if k == 0:
                a(f"s_add_u32 s25, s43, {X1 + j*8*TB}")
                a(f"buffer_load_dwordx4 v[{r}:{r+3}], v23, s[8:11], s25 offen")
            else:
                a(f"s_add_u32 s25, s42, {j*4096}")
                a(f"buffer_load_dwordx4 v[{r}:{r+3}], v2, s[8:11], s25 offen")
            vm.issue("qn")
        for k in range(2):
            for j in range(4): vq.append(lambda j=j, k=k: qn(j, k))
        for i in range(CONV_W): vq.append(lambda i=i: self.w1dma(i))
        NPER = [5, 5, 3, 3, 3, 2, 2, 0]
        assert sum(NPER) == len(vq)
        first = [True] * 8
        for rho in range(8):
            a("s_waitcnt lgkmcnt(0)")
            if rho == 4: st("class4")
            rd = deque(reads(rho + 1)) if rho < 7 else deque()
            nper = NPER[rho]
            slots = [int(36 * (k + 0.5) / nper) for k in range(nper)]
            n = 0
            for sg in range(8):
                for k in range(0, 8 - sg):
                    T = sg + k
                    acc = f"v[{AC+4*T}:{AC+4*T+3}]"
                    fr, gr = FB + (rho & 1) * 32 + 4 * sg, GB + (rho & 1) * 32 + 4 * k
                    a(f"v_mfma_f32_16x16x32_bf16 {acc}, v[{fr}:{fr+3}], v[{gr}:{gr+3}], {'0' if first[T] else acc}")
                    first[T] = False
                    if n in slots and vq: vq.popleft()()
                    elif rd and n < 32: a(rd.popleft())
                    n += 1
            while rd: a(rd.popleft())
        assert not vq
        st("mfma")
        for T in range(8):
            a(f"v_cvt_pk_bf16_f32 v{FB+2*T}, v{AC+4*T}, v{AC+4*T+1}")
            a(f"v_cvt_pk_bf16_f32 v{FB+2*T+1}, v{AC+4*T+2}, v{AC+4*T+3}")
            a(f"ds_write_b64 v21, v[{FB+2*T}:{FB+2*T+1}] offset:{256*T}")
        a("s_waitcnt lgkmcnt(0)\ns_barrier")
        for j in range(4):
            for par in range(2):
                r = AC + 4 * j + 2 * par
                a(f"ds_read_b64_tr_b16 v[{r}:{r+1}], v22 offset:{512*j + 2048*par}")
        vm.wait("qn")
        for j in range(4):
            a(f"s_waitcnt lgkmcnt({6-2*j})")
            o = AC + 16 + 4 * j
            for par in range(2):
                r = QR + 4 * j + 2 * par
                mr = f"v[{QR+16+4*j+2*par}:{QR+17+4*j+2*par}]"
                y = AC + 4 * j + 2 * par
                for h in range(2):
                    t = FB + 8 * h
                    a(f"v_lshlrev_b32 v{t}, 16, v{r+h}")
                    a(f"v_and_b32 v{t+1}, s39, v{r+h}")
                    a(f"v_lshlrev_b32 v{t+4}, 16, v{y+h}")
                    a(f"v_and_b32 v{t+5}, s39, v{y+h}")
                    a(f"v_pk_add_f32 v[{t+2}:{t+3}], v[{t}:{t+1}], {mr} op_sel_hi:[1,0] neg_lo:[0,1] neg_hi:[0,1]")
                    a(f"v_pk_mul_f32 v[{t+4}:{t+5}], v[{t+4}:{t+5}], {mr} op_sel:[0,1] op_sel_hi:[1,1]")
                    a(f"v_pk_fma_f32 v[{t}:{t+1}], v[{t+2}:{t+3}], v[{t+4}:{t+5}], v[{t}:{t+1}]")
                    a(f"v_cvt_pk_bf16_f32 v{o+2*par+h}, v{t}, v{t+1}")
            a(f"s_add_u32 s25, s43, {X1 + j*8*TB}")
            a(f"buffer_store_dwordx4 v[{o}:{o+3}], v23, s[8:11], s25 offen sc1"); vm.issue("o")
        for j in range(4):
            a(f"s_add_u32 s25, s43, {Y + j*8*TB}")
            a(f"buffer_store_dwordx4 v[{AC+4*j}:{AC+4*j+3}], v23, s[8:11], s25 offen sc1"); vm.issue("o")
        st("stored")
        vm.wait("o")
        a("s_barrier")
        st("drained")
        Lx = a.label("arr")
        a(f"""
    s_cmp_lg_u32 s3, 0
    s_cbranch_scc1 {Lx}
    s_lshl_b32 s25, s20, 7
    s_add_u32 s25, s25, {SH}
    v_mov_b32 v24, 1
    v_mov_b32 v25, 0
    s_mov_b64 exec, 1
    buffer_atomic_add v24, v25, s[8:11], s25 offen sc0 sc1
    s_mov_b64 exec, -1
    s_waitcnt vmcnt(0)
    v_readfirstlane_b32 s25, v24
    s_cmp_lg_u32 s25, 19
    s_cbranch_scc1 {Lx}
    s_lshl_b32 s25, s20, 2
    s_add_u32 s25, s25, {GO}
    v_lshlrev_b32 v25, 7, v1
    v_mov_b32 v24, 1
    s_mov_b64 exec, 0xff
    buffer_store_dword v24, v25, s[8:11], s25 offen sc1
    s_mov_b64 exec, -1
{Lx}:
    """)
        for i in range(CONV_W, 21): self.w1dma(i)
        a("s_branch L_join")
        a("L_idle:")
        a("s_mov_b64 exec, 1\nbuffer_store_dword v9, v8, s[8:11], s22 offen sc1\ns_mov_b64 exec, -1")
        for i in range(21):
            if i >= 3: a("s_waitcnt vmcnt(2)")
            self.w1dma(i)
        a("L_join:")
        vm.q = ["?"] * 10
        a(f"""
    v_lshlrev_b32 v9, 4, v11
    buffer_load_dword v9, v9, s[8:11], s22 offen sc1
    s_min_u32 s26, s3, 2
    s_lshl_b32 s27, s26, 6
    s_mul_i32 s28, s21, 192
    s_add_u32 s27, s27, s28
    s_add_u32 s27, s27, {CS}
    v_and_b32 v7, 15, v1
    v_lshlrev_b32 v7, 2, v7
    v_bfe_u32 v8, v1, 4, 1
    v_mul_u32_u24 v8, 6144, v8
    v_add_u32 v7, v7, v8
    buffer_load_dword v32, v7, s[8:11], s27 offen
    s_add_u32 s27, s27, {3072*4}
    buffer_load_dword v40, v7, s[8:11], s27 offen
    s_add_u32 s27, s27, {3072*4}
    buffer_load_dword v41, v7, s[8:11], s27 offen
    s_add_u32 s27, s27, {3072*4}
    buffer_load_dword v42, v7, s[8:11], s27 offen
    s_add_u32 s27, s27, {3072*4}
    buffer_load_dword v43, v7, s[8:11], s27 offen
    s_lshl_b32 s26, s26, 10
    s_add_u32 s26, s26, {CSF}
    v_add_u32 v8, s26, v2
    s_lshl_b32 s22, s44, 2
    s_add_u32 s22, s22, s3
    s_lshl_b32 s23, s22, 10
    s_add_u32 s23, s23, {ST2 - 8*128}
    v_lshl_add_u32 v23, v1, 7, s23
    s_lshl_b32 s22, s22, 7
    s_add_u32 s22, s22, {F1}
    v_writelane_b32 v23, s22, 2
    s_add_u32 s22, s22, 16384
    v_writelane_b32 v23, s22, 3
    s_lshl_b32 s22, s24, 7
    s_add_u32 s22, s22, {F3}
    v_writelane_b32 v23, s22, 4
    s_lshl_b32 s22, s24, 5
    s_add_u32 s22, s22, s21
    s_lshl_b32 s22, s22, 7
    s_add_u32 s22, s22, {ST1}
    v_writelane_b32 v23, s22, 0
    s_add_u32 s22, s22, {ST3 - ST1}
    v_writelane_b32 v23, s22, 1
    s_mov_b64 exec, 0xff1f
    buffer_load_dword a252, v23, s[8:11], 0 offen
    s_mov_b64 exec, -1
    """)
        for jj in range(4):
            a(f"s_lshr_b32 s22, s21, 3\ns_add_u32 s22, s22, {jj}\ns_and_b32 s22, s22, 3\ns_mul_i32 s{4+jj}, s22, 6144")
        Lw = a.label("go")
        a(f"""
    s_waitcnt vmcnt(1)
    v_cmp_ne_u32 vcc, s37, v9
    s_cmp_eq_u32 vcc_lo, 0
    s_cselect_b32 s38, 1, 0
    v_add_f32 v32, v32, v40
    v_add_f32 v41, v41, v42
    v_add_f32 v32, v32, v43
    v_add_f32 v32, v32, v41
    v_cmp_gt_u32 vcc, 32, v1
    v_mov_b32 v38, 0
    v_mov_b32 v39, 0
    v_cndmask_b32 v32, 0, v32, vcc
    v_cvt_pk_bf16_f32 v36, v32, v32
    v_lshlrev_b32 v33, 16, v36
    v_sub_f32 v33, v32, v33
    v_cvt_pk_bf16_f32 v36, v32, v33
    v_and_b32 v34, s39, v36
    v_sub_f32 v33, v33, v34
    v_cvt_pk_bf16_f32 v37, v33, v38
    ds_write_b128 v8, v[36:39]
    s_waitcnt lgkmcnt(0)
    s_cmp_lg_u32 s3, 0
    s_cbranch_scc1 {Lw}
    s_lshl_b32 s36, s20, 7
    s_add_u32 s36, s36, {GO}
    s_mov_b32 s35, {SPIN}
{Lw}_l:
    buffer_load_dword v18, v11, s[8:11], s36 offen sc1
    s_waitcnt vmcnt(0)
    v_cmp_ne_u32 vcc, 0, v18
    s_and_b32 s34, vcc_lo, 0xff
    s_cmp_eq_u32 s34, 0xff
    s_cbranch_scc1 {Lw}
    s_sleep 2
    s_sub_u32 s35, s35, 1
    s_cbranch_scc0 {Lw}_l
{Lw}:
    s_waitcnt lgkmcnt(0)
    """)
        st("ready")
        a("s_barrier")
        vm.q = ["?"]
        lg.q = []
        st("go")

    def gemm1(self, layer):
        a, vm, lg, st = self.a, self.vm, self.lg, self.st
        first = layer == 0
        self.layer = layer
        vm.count = {}
        if DETAIL:
            DET = list(range(int(DETAIL), int(DETAIL) + 7)); st0 = st
            if first: self.st = st = lambda n: None
        XS, HD, ST = (X1, H1, ST1) if first else (X3, H2, ST3)
        sc = "sc1"
        a(f"""
    s_mul_i32 s25, s24, {TB}
    s_add_u32 s25, s25, {XS}
    """)
        state = dict(tnext=0, done=-1)
        def thalf(ks, h):
            r = RING0 + (ks % RING) * 8 + 4 * h
            o = (ks % 2) * 2048 + 512 * h
            def fn():
                a(f"buffer_load_dwordx4 v[{r}:{r+3}], v5, s[8:11], s25 offen offset:{o} {sc}"); vm.issue(f"T{ks}")
                if ks % 2 == 1 and h == 1: a("s_add_u32 s25, s25, 4096")
            return (lambda: state["done"] >= ks - RING, fn)
        def tload():
            ks = state["tnext"]; state["tnext"] += 1
            thalf(ks, 0)[1](); thalf(ks, 1)[1]()
        def stl(i):
            def fn():
                rr = TMP + i * 4
                a(f"buffer_load_dwordx4 v[{rr}:{rr+3}], v6, s[8:11], s26 offen offset:{i*512} sc1"); vm.issue("stl")
            return (lambda: state["done"] >= 20, fn)

        if first:
            a(f"""
    s_mul_i32 s22, s44, {TB}
    s_lshl_b32 s29, s45, 6
    s_add_u32 s22, s22, s29
    s_mul_i32 s29, s3, {40*512}
    s_add_u32 s22, s22, s29
    s_add_u32 s22, s22, {XS}
    v_and_b32 v7, 7, v1
    v_lshlrev_b32 v7, 3, v7
    v_lshrrev_b32 v8, 3, v1
    v_lshl_add_u32 v8, v8, 9, v7
    """)
            for i in range(5):
                a(f"buffer_load_dwordx2 v[{TMP+2*i}:{TMP+2*i+1}], v8, s[8:11], s22 offen sc1"); vm.issue("st")
                if i < 4: a("s_add_u32 s22, s22, 4096")
        for _ in range(6): tload()
        st("issued")
        self.fq.extend([f"s_lshl_b32 s26, s24, 12", f"s_add_u32 s26, s26, {ST}"])
        if True:
            self.post = [f"v_add_u32 v7, {CSF}, v2"]
            self.fq.extend([f"s_mul_i32 s27, s24, {2*96*1024}", "s_mul_i32 s28, s21, 3072", "s_add_u32 s27, s27, s28", f"s_add_u32 s27, s27, {HD}",
                            f"s_add_u32 s28, s27, {96*1024}"])
        if first:
            S, Q, t, u = TMP + 10, TMP + 11, TMP + 12, TMP + 13
            f = [lambda: vm.wait("st")]
            for i in range(10):
                f += [f"v_lshlrev_b32 v{t}, 16, v{TMP+i}", f"v_and_b32 v{u}, s39, v{TMP+i}"]
                if i == 0: f += [f"v_add_f32 v{S}, v{t}, v{u}", f"v_mul_f32 v{Q}, v{t}, v{t}"]
                else: f += [f"v_add_f32 v{S}, v{S}, v{t}", f"v_fmac_f32 v{Q}, v{t}, v{t}", f"v_add_f32 v{S}, v{S}, v{u}"]
                f.append(f"v_fmac_f32 v{Q}, v{u}, v{u}")
            def sts():
                a("s_mov_b32 exec_lo, 0xff\ns_mov_b32 exec_hi, 0xff")
                self.dstore([f"buffer_store_dwordx2 v[{S}:{Q}], v7, s[8:11], s22 offen"])
                a("s_mov_b64 exec, -1"); vm.issue("sts")
            f += ["s_lshl_b32 s22, s44, 12", "s_lshl_b32 s23, s3, 10",
                  f"v_add_f32_dpp v{S}, v{S}, v{S} row_ror:8 row_mask:0xf bank_mask:0xf",
                  f"v_add_f32_dpp v{Q}, v{Q}, v{Q} row_ror:8 row_mask:0xf bank_mask:0xf",
                  "s_add_u32 s22, s22, s23", f"v_mov_b32 v{t}, v{S}", f"v_mov_b32 v{u}, v{Q}", "s_lshl_b32 s23, s45, 6", "s_add_u32 s22, s22, s23",
                  f"v_permlane16_swap_b32 v{S}, v{t}", f"v_permlane16_swap_b32 v{Q}, v{u}",
                  f"s_add_u32 s22, s22, {ST}", "v_lshl_add_u32 v7, v3, 9, v7",
                  f"v_add_f32 v{S}, v{S}, v{t}", f"v_add_f32 v{Q}, v{Q}, v{u}", sts]
            self.fq.extend(f)
        self.fq.extend(self.post)
        tq = [thalf(ks, h) for ks in range(state["tnext"], 40) for h in range(2)]
        k = 2 * (35 - state["tnext"])
        tq = tq[:k] + [stl(i) for i in range(4)] + tq[k:]
        if first:
            xq = [(lambda: True, lambda i=i: self.w1dma(i)) for i in range(21, 30)]
            xq += [(lambda: True, lambda j=j, mt=mt: self.wdl(j, mt)) for j in range(12) for mt in range(5)]
            order = []
            n = 0
            while tq:
                order += tq[:2]; tq = tq[2:]
                n += 1
                if n > XSKIP and n % 2 == 0 and n <= XSKIP + 24: order.append(xq.pop(0))
            tq = order + xq
        self.vq = deque(tq)
        def swaps(ks):
            r = RING0 + (ks % RING) * 8
            self.ensure(f"T{ks}", 2)
            if DETAIL and first and ks in DET: st0(f"bT{ks}")
            vm.wait(f"T{ks}")
            if DETAIL and first and ks in DET: st0(f"aT{ks}")
            a(f"v_swap_b32 v{r+2}, v{r+4}")
            a(f"v_swap_b32 v{r+3}, v{r+5}")
        def mfma(mt, par, A, B, zero=False):
            acc = ACC1 + (mt * 2 + par) * 16
            accs = f"v[{acc}:{acc+15}]"
            a(f"v_mfma_f32_32x32x16_bf16 {accs}, v[{A}:{A+3}], v[{B}:{B+3}], {'0' if zero else accs}")
        for mt in range(3): self.wread(0, mt, 24 + 4 * mt, "A0")
        swaps(0)
        st("T0")
        for ks in range(NMAIN):
            if ks in (8, 16, 24): st(f"ks{ks}")
            r = RING0 + (ks % RING) * 8
            b = 24 + (ks & 1) * 12
            nb = 24 + ((ks + 1) & 1) * 12
            if ks == 20: self.flush_fill()
            lg.wait(f"A{ks}")
            n = 0
            for mt in range(3):
                for par in range(2):
                    mfma(mt, par, b + 4 * mt, r + 4 * par, ks == 0)
                    n += 1
                    if n == 1:
                        if ks + 1 < NMAIN:
                            for m2 in range(3): self.wread(ks + 1, m2, nb + 4 * m2, f"A{ks+1}")
                        if ks + 1 >= NMAIN: self.fill(20)
                    if n == 6: state["done"] = ks
                    if n in (2, 4, 6):
                        did = self.vslot(1)
                        self.fill((8 if did else 20) - (4 if n == 6 else 0))
                    if n == 3: swaps(ks + 1)
                    if n == 5: self.fill(24)
        self.flush_fill()
        st("main")
        NB = 4
        seq = [(mt, ks) for mt in range(3) for ks in list(range(NMAIN, 40)) + [40]]
        def aread(i):
            mt, ks = seq[i]
            self.wread(ks, mt, 24 + (i % NB) * 4, f"B{i}")
        if first:
            vm.wait("W"); a("s_barrier")
        for i in range(NB - 1): aread(i)
        self.ensure("stl", 4)
        R = TMP
        Ls, Lb = a.label("stspin"), a.label("stback")
        f = [lambda: vm.wait("stl"), f"v_max_u32 v18, v{R+1}, v{R+3}"]
        for i in range(1, 4): f.append(f"v_max3_u32 v18, v18, v{R+4*i+1}, v{R+4*i+3}")
        f += [lambda: a(f"v_cmp_eq_u32 vcc, -1, v18\ns_cbranch_vccnz {Ls}\n{Lb}:")]
        rl = "\n".join(f"    buffer_load_dwordx4 v[{TMP+i*4}:{TMP+i*4+3}], v6, s[8:11], s26 offen offset:{i*512} sc1" for i in range(4))
        mx = "\n".join(f"    v_max3_u32 v18, v18, v{R+4*i+1}, v{R+4*i+3}" for i in range(1, 4))
        self.tail_blocks.append(f"""
{Ls}:
    s_mov_b32 s35, {SPIN}
{Ls}_l:
{rl}
    s_waitcnt vmcnt(0)
    v_max_u32 v18, v{R+1}, v{R+3}
{mx}
    v_cmp_eq_u32 vcc, -1, v18
    s_cbranch_vccz {Lb}
    s_sub_u32 s35, s35, 1
    s_cbranch_scc0 {Ls}_l
    s_branch {Lb}
""")
        for k in range(4): f += [f"v_add_f32 v{R+k}, v{R+k}, v{R+4+k}", f"v_add_f32 v{R+8+k}, v{R+8+k}, v{R+12+k}"]
        for k in range(4): f.append(f"v_add_f32 v{R+k}, v{R+k}, v{R+8+k}")
        for k in range(4): f.append(f"v_mov_b32 v{R+4+k}, v{R+k}")
        for k in range(4): f.append(f"v_permlane32_swap_b32 v{R+k}, v{R+4+k}")
        for k in range(4): f.append(f"v_add_f32 v{R+k}, v{R+k}, v{R+4+k}")
        recs = []
        for t in range(2):
            l = []; rr = l.append
            b = R + 2 * t
            vmn, vr = R + 4 + 2 * t, R + 5 + 2 * t
            rr(f"v_mul_f32 v{vmn}, 0x3acccccd, v{b}")
            rr(f"v_mul_f32 v{vr}, 0x3acccccd, v{b+1}")
            rr(f"v_fma_f32 v{vr}, -v{vmn}, v{vmn}, v{vr}")
            rr(f"v_max_f32 v{vr}, 0, v{vr}")
            rr(f"v_cvt_pk_bf16_f32 v{40+4*t}, -v{vmn}, -v{vmn}")
            rnd_bf16(rr, vr)
            rr(f"v_and_b32 v{41+4*t}, 0xffff, v{40+4*t}")
            rr(f"v_add_f32 v{vr}, 0x3727c5ac, v{vr}")
            rnd_bf16(rr, vr)
            rr(f"v_sqrt_f32 v{vr}, v{vr}")
            rr(f"v_mov_b32 v{42+4*t}, 0")
            rnd_bf16(rr, vr)
            rr(f"v_mul_f32 v{16+t}, v{vr}, v{vr}")
            rr(f"v_rcp_f32 v{vr}, v{vr}")
            rr(f"v_mov_b32 v{43+4*t}, 0")
            rr(f"v_mul_f32 v{12+t}, {hex(f2u(GC0))}, v{vr}")
            rr(f"v_mul_f32 v{14+t}, v{vr}, v{vr}")
            rr(f"v_mul_f32 v{vr}, {hex(f2u(GC1))}, v{vr}")
            rr(f"v_mul_f32 v{14+t}, v{14+t}, v{vr}")
            recs.append(l)
        for x, y in zip(*recs): f += [x, y]
        f += [f"s_lshl_b32 s29, s24, 2", "s_lshr_b32 s34, s21, 3", "s_add_u32 s29, s29, s34", "s_lshl_b32 s29, s29, 7",
              f"s_add_u32 s29, s29, {F1 + layer*16384}", "s_lshl_b32 s34, s45, 2", "v_mov_b32 v8, s34", "v_mov_b32 v9, 1",
              "s_lshl_b32 s36, s44, 2", "s_add_u32 s36, s36, s3", "s_lshl_b32 s36, s36, 7", f"s_add_u32 s36, s36, {F1 + layer*16384}"]
        self.fq.extend(f)
        for i, (mt, ks) in enumerate(seq):
            if ks == 40 and mt == 0: self.flush_fill()
            lg.wait(f"B{i}")
            A = 24 + (i % NB) * 4
            for par in range(2):
                B = RING0 + (ks % RING) * 8 + 4 * par if ks < 40 else 40 + 4 * par
                mfma(mt, par, A, B)
                if par == 0:
                    if i + NB - 1 < len(seq): aread(i + NB - 1)
                    if mt == 0 and ks + 1 < 40: swaps(ks + 1)
                    else:
                        did = self.vslot(1) if ks % 2 else 0
                        self.fill(20 - 8 * did)
                else:
                    did = self.vslot(1)
                    self.fill(20 - 8 * did)
            if ks == 40:
                self.flush_fill()
                st(f"pass{mt}")
                if mt == 2: break
                pre = self.g2_setup(layer) if mt == 0 else []
                e = self.epi_ops(mt, 0, False) + self.epi_ops(mt, 1, False)
                k = min(len(pre), 10)
                self.fq.extend(pre[:k] + e + pre[k:])
                if mt == 1:
                    self.fq.insert(len(self.fq) // 4, lambda: (vm.wait("h0"), self.flag_store("s29", 0)))
                    self.fq.insert(len(self.fq) - 24, lambda: self.poll_issue("s36", 18))

    def g2_setup(self, layer):
        HS = H1 if layer == 0 else H2
        f = ["v_and_b32 v19, 15, v1", "v_lshrrev_b32 v20, 4, v1", "v_lshlrev_b32 v21, 4, v19",
             "v_lshl_add_u32 v21, v20, 9, v21",
             "v_lshl_add_u32 v22, v3, 11, v21",
             f"s_mul_i32 s26, s44, {2*96*1024}", f"s_mul_i32 s34, s3, {24*1024}", "s_add_u32 s26, s26, s34", f"s_add_u32 s26, s26, {HS}"]
        for n in range(4):
            f += [f"s_add_u32 s34, s3, {n}", "s_and_b32 s35, s34, 1", f"s_mul_i32 s35, s35, {96*1024}", "s_lshl_b32 s34, s34, 7",
                  "s_and_b32 s34, s34, 256", f"s_add_u32 s{40+n}, s26, s35", f"s_add_u32 s{40+n}, s{40+n}, s34"]
        return f

    def gemm2(self, layer):
        a, vm, lg, st = self.a, self.vm, self.lg, self.st
        last = layer == 1
        state = dict(done=-1, parts=1, free=False)
        def hl(j, n):
            P, jj = j // 4, j % 4
            r = hslot(j) + n * 4
            def fn():
                a(f"s_add_u32 s31, s{40+n}, s{4+jj}")
                a(f"buffer_load_dwordx4 v[{r}:{r+3}], v22, s[8:11], s31 offen offset:{P*1024} sc1")
                vm.issue(f"K{j}")
            return (lambda: state["done"] >= j - 9 and j // 4 < state["parts"] and (j % 9 < 6 or state["free"]), fn)
        rest = list(self.vq)
        hq = [hl(j, n) for j in range(12) for n in range(4)]
        self.poll_check("s36", 18, 0xff)
        st("p0ok")
        self.vq = deque(hq[:12] + rest + hq[12:])
        e = self.epi_ops(2, 0, True) + [lambda: (vm.wait("h1"), self.flag_store("s29", 32))] + self.epi_ops(2, 1, True)
        for k, x in enumerate(e):
            x() if callable(x) else a(x)
            if k % 5 == 0: self.vslot(1)
        self.poll_issue("s36", 18)
        st("epi2")
        XRr, Yr = hslot(3), hslot(4)
        def xl(base, reg, mt):
            def fn():
                a(f"s_add_u32 s31, s32, {base + (mt//2)*4096}")
                a(f"buffer_load_dwordx2 v[{reg+2*mt}:{reg+2*mt+1}], v21, s[8:11], s31 offen offset:{(mt%2)*2048} sc1"); vm.issue("x")
            return (lambda: state["done"] >= 4, fn)
        if not last:
            for mt in range(5): self.vq.append(xl(X1, XRr, mt))
            for mt in range(5): self.vq.append(xl(Y, Yr, mt))
        f = [f"s_mul_i32 s32, s44, {TB}", "s_mul_i32 s33, s45, 10240", "s_add_u32 s32, s32, s33", "s_lshr_b32 s33, s3, 1", "s_lshl_b32 s33, s33, 8",
             "s_and_b32 s34, s3, 1", "s_lshl_b32 s34, s34, 3", "s_add_u32 s33, s33, s34",
             "s_add_u32 s32, s32, s33",
             "s_mul_i32 s34, s3, 9216", f"s_add_u32 s34, s34, {RB}", "v_add_u32 v104, s34, v2"]
        for n in range(1, 4):
            f += [f"s_add_u32 s34, s3, {n}", "s_and_b32 s34, s34, 3", "s_mul_i32 s34, s34, 9216", f"s_add_u32 s34, s34, {RB + (n-1)*3072}",
                  f"v_add_u32 v{104+n}, s34, v2"]
        for j in range(12):
            if j == 1:
                self.poll_check("s36", 18, 0xff00); state["parts"] = 2
                self.fq.extend(f)
            if j == 3: self.poll_issue("s36", 18)
            if j == 4:
                self.flush_fill()
                self.poll_check("s36", 18, 0xff0000); state["parts"] = 3
            self.ensure(f"K{j}", 4)
            if not last: self.ensure(f"D{j}", 5)
            vm.wait(f"D{j}")
            vm.wait(f"K{j}")
            if j in (0, 4, 8): st(f"K{j}")
            k = 0
            for n in range(4):
                r = hslot(j) + n * 4
                for mt in range(5):
                    acc = ACC2 + (n * 5 + mt) * 4
                    accs = f"v[{acc}:{acc+3}]"
                    i = j * 5 + mt
                    a(f"v_mfma_f32_16x16x32_bf16 {accs}, a[{4*i}:{4*i+3}], v[{r}:{r+3}], {'0' if j == 0 else accs}")
                    k += 1
                    if k == 20: state["done"] = j
                    if j == 0 and k == 14:
                        vm.wait("h2"); self.flag_store("s29", 64); state["free"] = True
                    elif k % 4 == 1 or k % 8 == 3: self.vslot(1)
                    else: self.fill(4)
        self.vslot(100)
        assert not self.vq
        st("kloop")
        HR0 = RING0
        for rnd, mts in enumerate(([0, 1, 2], [3, 4])):
            if rnd == 1: a("s_barrier")
            for n in range(1, 4):
                for k, mt in enumerate(mts):
                    acc = ACC2 + (n * 5 + mt) * 4
                    a(f"ds_write_b128 v{104+n}, v[{acc}:{acc+3}] offset:{k*1024}")
            a("s_waitcnt lgkmcnt(0)\ns_barrier")
            for n in range(3):
                for k, mt in enumerate(mts):
                    r = HR0 + (n * 3 + k) * 4
                    a(f"ds_read_b128 v[{r}:{r+3}], v104 offset:{n*3072 + k*1024}")
            a("s_waitcnt lgkmcnt(0)")
            for n in range(3):
                for k, mt in enumerate(mts):
                    r = HR0 + (n * 3 + k) * 4
                    acc = ACC2 + mt * 4
                    a(f"v_pk_add_f32 v[{acc}:{acc+1}], v[{acc}:{acc+1}], v[{r}:{r+1}]")
                    a(f"v_pk_add_f32 v[{acc+2}:{acc+3}], v[{acc+2}:{acc+3}], v[{r+2}:{r+3}]")
        lg.q = []
        if last:
            for i in range(10): a(f"v_accvgpr_read_b32 v{XRr+i}, a{240+i}")
        vm.wait("x")
        st("reduced")
        A = lambda i: f"v[{ACC2+2*i}:{ACC2+2*i+1}]"
        U, Pk, T = 48, 68, 80
        for i in range(10):
            a(f"v_lshlrev_b32 v{U+2*i}, 16, v{XRr+i}")
            a(f"v_and_b32 v{U+2*i+1}, s39, v{XRr+i}")
        for i in range(10): a(f"v_pk_add_f32 {A(i)}, {A(i)}, v[{U+2*i}:{U+2*i+1}]")
        for i in range(10): a(f"v_cvt_pk_bf16_f32 v{Pk+i}, v{ACC2+2*i}, v{ACC2+2*i+1}")
        if last:
            a(f"""
    v_mul_u32_u24 v23, 2560, v19
    v_lshl_add_u32 v23, v20, 3, v23
    s_mul_i32 s31, s44, {64*1280}
    s_mul_i32 s33, s33, 160
    s_add_u32 s31, s31, s33
    s_mul_i32 s33, s45, 160
    s_add_u32 s31, s31, s33
    """)
            for mt in range(5):
                a(f"buffer_store_dwordx2 v[{Pk+2*mt}:{Pk+2*mt+1}], v23, s[12:15], s31 offen offset:{32*mt}")
            return
        def xsum(v0, v1, t0, t1):
            a(f"""
    v_mov_b32 v{t0}, v{v0}
    v_mov_b32 v{t1}, v{v1}
    v_permlane16_swap_b32 v{v0}, v{t0}
    v_permlane16_swap_b32 v{v1}, v{t1}
    v_pk_add_f32 v[{v0}:{v1}], v[{v0}:{v1}], v[{t0}:{t1}]
    v_mov_b32 v{t0}, v{v0}
    v_mov_b32 v{t1}, v{v1}
    v_permlane32_swap_b32 v{v0}, v{t0}
    v_permlane32_swap_b32 v{v1}, v{t1}
    v_pk_add_f32 v[{v0}:{v1}], v[{v0}:{v1}], v[{t0}:{t1}]
    """)
        def stats_partial(sreg):
            a(f"v_pk_add_f32 v[12:13], {A(0)}, {A(1)}")
            a(f"v_pk_mul_f32 v[14:15], {A(0)}, {A(0)}")
            for i in range(1, 10):
                if i >= 2: a(f"v_pk_add_f32 v[12:13], v[12:13], {A(i)}")
                a(f"v_pk_fma_f32 v[14:15], {A(i)}, {A(i)}, v[14:15]")
            a("v_add_f32 v12, v12, v13\nv_add_f32 v13, v14, v15")
            xsum(12, 13, 14, 15)
            a("s_mov_b64 exec, 0xffff")
            self.dstore([f"buffer_store_dwordx2 v[12:13], v2, s[8:11], {sreg} offen"])
            a("s_mov_b64 exec, -1")
        def unpack_A():
            for i in range(10):
                a(f"v_lshlrev_b32 v{ACC2+2*i}, 16, v{Pk+i}")
                a(f"v_and_b32 v{ACC2+2*i+1}, s39, v{Pk+i}")
        a(f"""
    s_lshl_b32 s30, s44, 12
    s_lshl_b32 s31, s3, 10
    s_add_u32 s31, s31, s30
    s_add_u32 s31, s31, {ST2}
    s_lshr_b32 s34, s45, 1
    s_lshl_b32 s34, s34, 8
    s_and_b32 s35, s45, 1
    s_lshl_b32 s35, s35, 3
    s_add_u32 s34, s34, s35
    s_add_u32 s36, s31, s34
    """)
        unpack_A()
        stats_partial("s36")
        a(f"s_mov_b32 s35, {SPIN}")
        for i in range(10):
            a(f"v_lshlrev_b32 v{U+2*i}, 16, v{Yr+i}")
            a(f"v_and_b32 v{U+2*i+1}, s39, v{Yr+i}")
        L0 = a.label("g2poll"); L1 = a.label("g2ok")
        a(f"""
{L0}:
    buffer_load_dwordx4 v[12:15], v2, s[8:11], s31 offen sc1
    s_waitcnt vmcnt(0)
    v_max_u32 v17, v13, v15
    v_cmp_eq_u32 vcc, -1, v17
    s_cbranch_vccz {L1}
    s_sub_u32 s35, s35, 1
    s_cbranch_scc0 {L0}
{L1}:
    v_pk_add_f32 v[12:13], v[12:13], v[14:15]
    """)
        vm.q = []
        st("polled")
        xsum(12, 13, 14, 15)
        ln_stats(a, 12, 13, 16, 18)
        for i in range(10):
            a(f"v_pk_add_f32 v[{T+2*i}:{T+2*i+1}], {A(i)}, v[16:17] op_sel_hi:[1,0] neg_lo:[0,1] neg_hi:[0,1]")
        for i in range(10):
            a(f"v_pk_mul_f32 v[{U+2*i}:{U+2*i+1}], v[{U+2*i}:{U+2*i+1}], v[18:19] op_sel_hi:[1,0]")
        for i in range(10):
            a(f"v_pk_fma_f32 {A(i)}, v[{T+2*i}:{T+2*i+1}], v[{U+2*i}:{U+2*i+1}], {A(i)}")
        for i in range(10):
            a(f"v_cvt_pk_bf16_f32 v{Pk+i}, v{ACC2+2*i}, v{ACC2+2*i+1}")
        l = []
        for mt in range(5):
            if mt % 2 == 0: l.append(f"s_add_u32 s31, s32, {X3 + (mt//2)*4096}")
            l.append(f"buffer_store_dwordx2 v[{Pk+2*mt}:{Pk+2*mt+1}], v21, s[8:11], s31 offen offset:{(mt%2)*2048}"); vm.issue("x3")
        self.dstore(l)
        a(f"""
    s_lshl_b32 s29, s44, 7
    s_add_u32 s29, s29, {F3}
    s_lshl_b32 s34, s45, 4
    s_lshl_b32 s35, s3, 2
    s_add_u32 s34, s34, s35
    v_mov_b32 v8, s34
    s_lshl_b32 s36, s24, 7
    s_add_u32 s36, s36, {F3}
    s_lshl_b32 s34, s45, 9
    s_add_u32 s30, s30, s34
    s_add_u32 s30, s30, s33
    s_add_u32 s30, s30, {ST3}
    """)
        for i in range(10): a(f"v_accvgpr_write_b32 a{240+i}, v{Pk+i}")
        unpack_A()
        vm.wait("x3")
        st("x3drained")
        self.flag_store("s29", 0)
        stats_partial("s30"); vm.issue("sts")
        self.poll_issue("s36", 18)
        self.poll_check("s36", 18, 0xffffffff)
        st("x3ok")

def mega_kernel(kidx=2):
    a = Asm()
    a.uid = 1000
    st = Stamps(a, kidx)
    m = Mega(st)
    m.vm.maxn = 63
    a("s_cmp_ge_u32 s2, 256\ns_cbranch_scc1 L_mega_end")
    st("start")
    m.ids()
    m.front()
    sts = [st]
    for layer in range(2):
        if DIAG_ON(): sts[-1].stash(253 + layer)
        sts.append(Stamps(a, kidx + 1 + layer))
        m.st = sts[-1]
        m.st("lstart")
        m.gemm1(layer)
        m.gemm2(layer)
    m.st("end")
    if DIAG_ON():
        a("s_waitcnt vmcnt(0)"); m.st("drained"); sts[0].unstash(253); sts[1].unstash(254); m.st.flush()
        a("""
    s_lshl_b32 s4, s2, 3
    s_add_u32 s4, s4, s3
    s_cmp_lg_u32 s4, 0
    s_cbranch_scc1 L_mega_end
    s_load_dwordx2 s[4:5], s[0:1], 88
    v_accvgpr_read_b32 v20, a253
    v_accvgpr_read_b32 v21, a254
    s_nop 1
    """)
        sel = [(20, 0), (20, 6), (20, 10), (20, 14), (20, 18), (21, 12), (21, 18), (21, 30), (21, 38)]
        for i, (v, l) in enumerate(sel): a(f"v_readlane_b32 s6, v{v}, {l}\ns_nop 1\nv_mov_b32 v{4+i}, s6")
        a("""
    v_mov_b32 v13, s60
    v_mov_b32 v14, s78
    v_mov_b32 v15, s84
    v_mov_b32 v0, 0
    s_waitcnt lgkmcnt(0)
    s_sub_u32 s4, s4, 512
    s_subb_u32 s5, s5, 0
    s_mov_b64 exec, 1
    global_store_dwordx4 v0, v[4:7], s[4:5] offset:16
    global_store_dwordx4 v0, v[8:11], s[4:5] offset:32
    global_store_dwordx4 v0, v[12:15], s[4:5] offset:48
    """)
    a("L_mega_end:\ns_endpgm")
    for b in m.tail_blocks: a(b)
    a("L_mega_last:\ns_endpgm")
    return a
```

```python
from common import *
import os

KT, VT, OUT, STS = 0, 11264, 22528, 22528 + 23040
PREP_LDS = STS + 512
PREP_GRID = 256
NT = os.environ.get('NT', '')

def prep_kernel():
    a = Asm()
    st = Stamps(a, 0)
    a(f"s_cmp_ge_u32 s2, {PREP_GRID}\ns_cbranch_scc1 L_prep_end")
    st("start")
    a(f"""
    v_lshrrev_b32 v2, 6, v0
    v_and_b32 v1, 63, v0                    ; lane
    v_readfirstlane_b32 s3, v2              ; wave
    s_load_dwordx4 s[4:7], s[0:1], 0        ; q, k
    s_load_dwordx4 s[12:15], s[0:1], 16     ; v, shift_k
    s_load_dwordx2 s[16:17], s[0:1], 96     ; ws
    s_lshr_b32 s40, s2, 3
    s_and_b32 s18, s2, 7
    ; ---- tile copy: chunk e = 64 n + lane -> row e/10, 16-byte piece e%10
    s_mul_i32 s19, s40, {64*1280}
    s_mul_i32 s41, s18, 160
    s_add_u32 s19, s19, s41
    s_lshl_b32 s41, s3, 6
    """)
    for r, add in enumerate((0, 320, None)):
        v = 16 + r
        if add is None: a(f"v_add_u32 v{v}, 640, v1")
        else: a(f"v_add_u32 v{v}, s41, v1" + (f"\nv_add_u32 v{v}, {add}, v{v}" if add else ""))
        a(f"""
    v_mul_u32_u24 v3, 6554, v{v}
    v_lshrrev_b32 v3, 16, v3
    v_mul_u32_u24 v4, 1120, v3
    v_lshl_add_u32 v{v}, v{v}, 4, v4
    v_add_u32 v{v}, s19, v{v}
    v_subrev_u32 v{v+4}, {4*1280}, v{v}
    v_subrev_u32 v{v}, 1280, v{v}
    """)
    a(f"""
    ; ---- part (a) indices: u = t/40, p = t%40
    v_mul_u32_u24 v5, 1639, v0
    v_lshrrev_b32 v5, 16, v5                ; u
    v_mul_u32_u24 v6, 40, v5
    v_sub_u32 v6, v0, v6                    ; p
    s_mul_i32 s19, s18, 640
    v_lshl_add_u32 v7, v6, 4, s19
    v_and_b32 v8, 7, v0                     ; tk
    v_lshrrev_b32 v10, 3, v0                ; slot
    s_lshl_b32 s19, s2, 3
    v_add_u32 v11, s19, v8                  ; token
    v_mul_u32_u24 v12, 1280, v11
    v_lshl_add_u32 v12, v10, 5, v12         ; q offset
    s_lshl_b32 s41, s3, 10
    s_waitcnt lgkmcnt(0)
    """)
    srd(a, 24, 6, ACT_BYTES); srd(a, 28, 12, ACT_BYTES)
    st("kernarg")
    a(f"""
    s_add_u32 m0, s41, {KT}
    s_nop 0
    buffer_load_dwordx4 v20, s[24:27], 0 offen {NT} lds
    s_add_u32 m0, s41, {VT}
    s_nop 0
    buffer_load_dwordx4 v16, s[28:31], 0 offen {NT} lds
    s_add_u32 m0, s41, {KT + 5120}
    s_nop 0
    buffer_load_dwordx4 v21, s[24:27], 0 offen {NT} lds
    s_add_u32 m0, s41, {VT + 5120}
    s_nop 0
    buffer_load_dwordx4 v17, s[28:31], 0 offen {NT} lds
    s_cmp_lg_u32 s3, 0
    s_cbranch_scc1 L_prep_k11
    s_mov_b32 m0, {KT + 10240}
    s_nop 0
    buffer_load_dwordx4 v22, s[24:27], 0 offen {NT} lds
L_prep_k11:
    s_cmp_lg_u32 s3, 1
    s_cbranch_scc1 L_prep_v11
    s_mov_b32 m0, {VT + 10240}
    s_mov_b64 exec, 0x3ff
    buffer_load_dwordx4 v18, s[28:31], 0 offen {NT} lds
    s_mov_b64 exec, -1
L_prep_v11:
    """)
    srd(a, 20, 4, ACT_BYTES); srd(a, 32, 14, D * 8); srd(a, 36, 16, WS_USED)
    a(f"""
    s_load_dwordx2 s[4:5], s[0:1], 32       ; ssm_k
    s_load_dwordx4 s[12:15], s[0:1], 56
    s_load_dwordx2 s[6:7], s[0:1], 72       ; w_down
    buffer_load_dwordx4 v[40:43], v7, s[32:35], 0 offen
    buffer_load_dwordx4 v[44:47], v12, s[20:23], 0 offen {NT}
    buffer_load_dwordx4 v[48:51], v12, s[20:23], 0 offen offset:16 {NT}
    s_mul_i32 s19, s2, 1536
    s_add_u32 s19, s19, {ST1}
    v_lshl_add_u32 v13, v0, 4, s19
    s_lshl_b32 s19, s2, 8
    s_add_u32 s19, s19, {FL - 96*16}
    v_lshl_add_u32 v14, v0, 4, s19
    v_cmp_gt_u32 vcc, 96, v0
    v_mov_b32 v52, 0
    v_cndmask_b32 v13, v14, v13, vcc
    v_cndmask_b32 v52, v52, -1, vcc
    v_mov_b32 v53, v52
    v_mov_b32 v54, v52
    v_mov_b32 v55, v52
    v_cmp_gt_u32 vcc, 112, v0
    s_and_saveexec_b64 s[46:47], vcc
    s_cbranch_execz L_prep_nod
    buffer_store_dwordx4 v[52:55], v13, s[36:39], 0 offen sc1
L_prep_nod:
    s_mov_b64 exec, s[46:47]
    s_mov_b32 s45, 0xffff0000
    v_mul_u32_u24 v13, 1280, v5
    v_lshl_add_u32 v13, v6, 2, v13
    v_mul_u32_u24 v15, 144, v6
    v_lshlrev_b32 v3, 4, v5
    v_sub_u32 v15, v15, v3
    v_add_u32 v15, {OUT + 112}, v15
    v_mul_u32_u24 v56, 144, v10
    v_and_b32 v3, 7, v0
    v_lshl_add_u32 v56, v3, 4, v56
    v_lshlrev_b32 v57, 14, v10
    v_lshl_add_u32 v57, v3, 4, v57
    s_mul_i32 s41, s18, {80*XT_CH}
    s_lshl_b32 s42, s40, 7
    s_sub_u32 s41, s41, s42
    s_add_u32 s41, s41, {XT + 3968}
    s_add_u32 s42, s41, {XT_CP}
    s_add_u32 s43, s41, {XT_CH}
    s_add_u32 s44, s41, {XT_CH + XT_CP}
    v_lshlrev_b32 v14, 11, v10
    v_and_b32 v3, 6, v8
    v_lshl_add_u32 v14, v3, 3, v14
    v_and_b32 v3, 1, v8
    v_lshl_add_u32 v14, v3, 10, v14
    s_lshr_b32 s19, s2, 3
    s_mul_i32 s19, s19, {TB}
    s_lshl_b32 s46, s18, 6
    s_add_u32 s19, s19, s46
    s_add_u32 s19, s19, {X1}
    s_waitcnt lgkmcnt(0)
    s_cmp_ge_u32 s3, 2
    s_cbranch_scc1 L_prep_s2b
    s_lshl_b32 s100, s2, 1
    s_add_u32 s100, s100, s3
    s_mul_i32 s96, s100, 13108
    s_lshr_b32 s96, s96, 16
    s_mul_i32 s97, s96, 5
    s_sub_u32 s97, s100, s97                ; strip
    s_mul_i32 s98, s96, {16*1280}
    s_add_u32 s99, s98, {8*1280}
    s_mov_b32 s8, s6
    s_mov_b32 s9, s7
    v_and_b32 v3, 31, v1
    v_lshrrev_b32 v4, 5, v1                 ; half
    s_lshl_b32 s97, s97, 7
    v_lshl_add_u32 v3, v3, 2, s97           ; c0
    v_mul_u32_u24 v58, {4*1280}, v4
    v_lshl_add_u32 v58, v3, 1, v58
    v_lshrrev_b32 v60, 4, v3                ; x = c0>>4
    v_mul_u32_u24 v59, 26, v60
    v_lshrrev_b32 v59, 7, v59               ; cb2 = x / 5
    v_mul_u32_u24 v61, 5, v59
    v_sub_u32 v61, v60, v61                 ; mt
    v_mul_u32_u24 v59, 245760, v59
    v_lshl_add_u32 v59, v61, 10, v59
    v_and_b32 v61, 15, v3
    v_lshl_add_u32 v59, v61, 4, v59
    v_lshl_add_u32 v59, v4, 8, v59
    ; cb = fb/3 ; P = fb%3 ; dest = (12 (cb>>3) + 4 P + ((cb&7)>>1))*5120 + (cb&1)*512
    s_mul_i32 s97, s96, 43
    s_lshr_b32 s97, s97, 7
    s_mul_i32 s4, s97, 3
    s_sub_u32 s4, s96, s4
    s_lshl_b32 s4, s4, 2
    s_lshr_b32 s5, s97, 3
    s_mul_i32 s5, s5, 12
    s_add_u32 s4, s4, s5
    s_bfe_u32 s5, s97, 0x20001
    s_add_u32 s4, s4, s5
    s_mul_i32 s4, s4, 5120
    s_and_b32 s5, s97, 1
    s_lshl_b32 s5, s5, 9
    s_add_u32 s4, s4, s5
    s_add_u32 s96, s4, {WDL}
    s_branch L_prep_s2c
L_prep_s2b:
    s_cmp_eq_u32 s3, 2
    s_cbranch_scc0 L_prep_s2h
    s_mul_i32 s96, s2, 13108
    s_lshr_b32 s96, s96, 16
    s_mul_i32 s97, s96, 5
    s_sub_u32 s97, s2, s97
    s_cmp_ge_u32 s96, 24
    s_cselect_b32 s8, s14, s12
    s_cselect_b32 s9, s15, s13
    s_cselect_b32 s98, 24, 0
    s_sub_u32 s98, s96, s98
    s_lshl_b32 s98, s98, 7
    s_mul_i32 s99, s97, {128*3072}
    s_add_u32 s98, s98, s99
    v_lshrrev_b32 v58, 3, v1
    v_mul_u32_u24 v58, 3072, v58
    v_and_b32 v59, 7, v1
    v_lshl_add_u32 v58, v59, 4, v58
    v_lshlrev_b32 v59, 5, v59
    s_mul_i32 s97, s97, {3072*4}
    s_lshl_b32 s96, s96, 8
    s_add_u32 s96, s96, s97
    s_add_u32 s96, s96, {CS}
    s_mov_b32 s100, s2
    s_branch L_prep_s2c
L_prep_s2h:
    s_mov_b32 s8, s4
    s_mov_b32 s9, s5
    s_mul_i32 s98, s18, {80*4096}
    s_mul_i32 s99, s40, 10240
    s_add_u32 s98, s98, s99
    v_mov_b32 v59, 0
    s_mov_b32 s96, 0
    v_subrev_u32 v58, 192, v0
    v_lshlrev_b32 v58, 7, v58
L_prep_s2c:
    s_and_b32 s9, s9, 0xffff
    s_cmp_ge_u32 s3, 3
    s_mov_b32 s10, {D*F*2}
    s_cselect_b32 s10, {D*S*2}, s10
    s_mov_b32 s11, 0x20000
    s_waitcnt vmcnt(0)
    s_barrier
    """)
    st("loaded")
    a("s_cmp_ge_u32 s3, 2\ns_cbranch_scc1 L_prep_l2b\ns_cmp_ge_u32 s100, 480\ns_cbranch_scc1 L_prep_l2c")
    for e in range(8):
        a(f"buffer_load_dwordx2 v[{120+2*e}:{121+2*e}], v58, s[8:11], s{98 + e//4} offen offset:{1280*(e%4)} {NT}")
    a("s_branch L_prep_l2c\nL_prep_l2b:\ns_cmp_eq_u32 s3, 2\ns_cbranch_scc0 L_prep_l2h\ns_cmp_ge_u32 s100, 240\ns_cbranch_scc1 L_prep_l2c")
    for i in range(16):
        a(f"buffer_load_dwordx4 v[{120+4*i}:{123+4*i}], v58, s[8:11], s98 offen")
        if i < 15: a(f"s_add_u32 s98, s98, {8*3072}")
    a("""
    s_branch L_prep_l2c
L_prep_l2h:
    v_cmp_gt_u32 vcc, 272, v0
    s_and_saveexec_b64 s[46:47], vcc
    buffer_load_dword v120, v58, s[8:11], s98 offen
    s_mov_b64 exec, s[46:47]
    s_cmp_lg_u32 s3, 4
    s_cbranch_scc1 L_prep_l2c
    s_getpc_b64 s[4:5]
L_prep_pc:
    s_add_u32 s4, s4, mega_kernel-L_prep_pc
    s_addc_u32 s5, s5, 0
    s_lshl_b32 s6, s40, 11
    v_lshl_add_u32 v121, v1, 7, s6
    v_cmp_gt_u32 vcc, L_mega_last-mega_kernel, v121
    s_and_b32 vcc_lo, vcc_lo, 0xffff
    s_mov_b32 vcc_hi, 0
    s_and_saveexec_b64 s[46:47], vcc
    s_cbranch_execz L_prep_nocode
    global_load_dword v122, v121, s[4:5]
L_prep_nocode:
    s_mov_b64 exec, s[46:47]
L_prep_l2c:
    """)
    for r in range(12): a(f"ds_read_b32 v{16+r}, v13 offset:{KT + 160*r}")
    a("""
    v_lshlrev_b32 v106, 16, v40
    v_lshlrev_b32 v107, 16, v42
    v_and_b32 v108, s45, v40
    v_and_b32 v109, s45, v42
    v_lshlrev_b32 v110, 16, v41
    v_lshlrev_b32 v111, 16, v43
    v_and_b32 v112, s45, v41
    v_and_b32 v113, s45, v43
    s_waitcnt lgkmcnt(6)
    """)
    for r in range(9): a(f"ds_read_b32 v{28+r}, v13 offset:{VT + 160*r}")
    for r in range(12):
        if r == 6: a("s_waitcnt lgkmcnt(9)")
        a(f"v_lshlrev_b32 v{64+2*r}, 16, v{16+r}")
        a(f"v_and_b32 v{65+2*r}, s45, v{16+r}")
    K = lambda r: f"v[{64+2*r}:{65+2*r}]"
    V = lambda r: f"v[{88+2*r}:{89+2*r}]"
    W = lambda j: f"v[{106+2*j}:{107+2*j}]"
    KV = lambda m: f"v[{16+2*m}:{17+2*m}]"
    a("s_waitcnt lgkmcnt(0)")
    for r in range(9):
        a(f"v_lshlrev_b32 v{88+2*r}, 16, v{28+r}")
        a(f"v_and_b32 v{89+2*r}, s45, v{28+r}")
    for m in range(9): a(f"v_pk_mul_f32 {KV(m)}, {K(m)}, {W(3)}")
    for j in (2, 1, 0):
        for m in range(9): a(f"v_pk_fma_f32 {KV(m)}, {K(m+3-j)}, {W(j)}, {KV(m)}")
    for m in range(9): a(f"v_pk_mul_f32 {KV(m)}, {KV(m)}, {V(m)}")
    for c in range(2):
        for cp in range(2):
            base = 64 + (c * 2 + cp) * 4
            for i in range(4):
                m = 8 - cp - 2 * i
                a(f"v_cvt_pk_bf16_f32 v{base+i}, v{16+2*m+c}, v{16+2*(m-1)+c}")
            a(f"ds_write_b128 v15, v[{base}:{base+3}] offset:{(c*2+cp)*40*144}")
    st("a_done")
    for i in range(8):
        a(f"v_lshlrev_b32 v{88+2*i}, 16, v{44+i}")
        a(f"v_and_b32 v{89+2*i}, s45, v{44+i}")
    X = lambda i: f"v[{88+2*i}:{89+2*i}]"
    a(f"v_pk_add_f32 v[104:105], {X(0)}, {X(1)}")
    a(f"v_pk_mul_f32 v[106:107], {X(0)}, {X(0)}")
    for i in range(1, 8):
        if i >= 2: a(f"v_pk_add_f32 v[104:105], v[104:105], {X(i)}")
        a(f"v_pk_fma_f32 v[106:107], {X(i)}, {X(i)}, v[106:107]")
    a(f"""
    v_add_f32 v104, v104, v105
    v_add_f32 v105, v106, v107
    v_add_f32_dpp v104, v104, v104 row_ror:8 row_mask:0xf bank_mask:0xf
    v_add_f32_dpp v105, v105, v105 row_ror:8 row_mask:0xf bank_mask:0xf
    v_mov_b32 v106, v104
    v_mov_b32 v107, v105
    v_permlane16_swap_b32 v104, v106
    v_permlane16_swap_b32 v105, v107
    v_pk_add_f32 v[104:105], v[104:105], v[106:107]
    v_mov_b32 v106, v104
    v_mov_b32 v107, v105
    v_permlane32_swap_b32 v104, v106
    v_permlane32_swap_b32 v105, v107
    v_pk_add_f32 v[104:105], v[104:105], v[106:107]
    v_and_b32 v109, 7, v0
    v_lshlrev_b32 v109, 3, v109
    v_lshl_add_u32 v108, v2, 6, v109
    ds_write_b64 v108, v[104:105] offset:{STS}
    s_waitcnt lgkmcnt(0)
    s_barrier
    """)
    for r in range(4): a(f"ds_read_b128 v[{16+4*r}:{19+4*r}], v56 offset:{OUT + r*40*144}")
    a(f"""
    ds_read_b64 v[104:105], v109 offset:{STS}
    ds_read_b64 v[106:107], v109 offset:{STS+64}
    ds_read_b64 v[110:111], v109 offset:{STS+128}
    ds_read_b64 v[112:113], v109 offset:{STS+192}
    ds_read_b64 v[114:115], v109 offset:{STS+256}
    """)
    for r in range(4):
        a(f"s_waitcnt lgkmcnt({8-r})")
        a(f"buffer_store_dwordx4 v[{16+4*r}:{19+4*r}], v57, s[36:39], s{41+r} offen sc1")
    a("v_and_b32 v3, 1, v0\nv_cmp_eq_u32 vcc, 1, v3")
    for k in range(4): a(f"v_cndmask_b32 v{64+k}, v{48+k}, v{44+k}, vcc")
    for k in range(4): a(f"v_mov_b32_dpp v{68+k}, v{64+k} quad_perm:[1,0,3,2] row_mask:0xf bank_mask:0xf")
    for g in range(2):
        for h in range(2):
            a(f"v_cndmask_b32 v{72+4*g+h}, v{44+2*g+h}, v{68+2*g+h}, vcc")
            a(f"v_cndmask_b32 v{74+4*g+h}, v{68+2*g+h}, v{48+2*g+h}, vcc")
        a(f"buffer_store_dwordx4 v[{72+4*g}:{75+4*g}], v14, s[36:39], s19 offen offset:{512*g} sc1")
    a("""
    s_waitcnt lgkmcnt(0)
    v_pk_add_f32 v[104:105], v[104:105], v[106:107]
    v_pk_add_f32 v[110:111], v[110:111], v[112:113]
    v_pk_add_f32 v[104:105], v[104:105], v[114:115]
    v_pk_add_f32 v[104:105], v[104:105], v[110:111]
    """)
    ln_stats(a, 104, 105, 106, 107)
    a(f"""
    v_lshlrev_b32 v11, 3, v11
    s_mov_b32 s19, {MR}
    v_cmp_gt_u32 vcc, 8, v0
    s_and_saveexec_b64 s[46:47], vcc
    s_cbranch_execz L_prep_nomr
    buffer_store_dwordx2 v[106:107], v11, s[36:39], s19 offen sc1
L_prep_nomr:
    s_mov_b64 exec, s[46:47]
    """)
    st('b_done')
    a("s_cmp_ge_u32 s3, 2\ns_cbranch_scc1 L_prep_p2b\ns_cmp_ge_u32 s100, 480\ns_cbranch_scc1 L_prep_p2c")
    a("s_mov_b32 s4, 0x05040100\ns_mov_b32 s5, 0x07060302\ns_waitcnt vmcnt(6)")
    for c in range(4):
        o = 136 + c * 4
        for j in range(4):
            lo = 120 + 4 * j + c // 2
            a(f"v_perm_b32 v{o+j}, v{lo+2}, v{lo}, {'s4' if c % 2 == 0 else 's5'}")
        a(f"buffer_store_dwordx4 v[{o}:{o+3}], v59, s[36:39], s96 offen offset:{16*c}")
    a("s_branch L_prep_p2c\nL_prep_p2b:\ns_cmp_eq_u32 s3, 2\ns_cbranch_scc0 L_prep_p2c\ns_cmp_ge_u32 s100, 240\ns_cbranch_scc1 L_prep_p2c")
    for i in range(16):
        a(f"s_waitcnt vmcnt({15-i+6})")
        for k in range(4):
            d = 80 if i == 0 else 88
            a(f"v_lshlrev_b32 v{d+2*k}, 16, v{120+4*i+k}")
            a(f"v_and_b32 v{d+2*k+1}, s45, v{120+4*i+k}")
        if i:
            for k in range(4): a(f"v_pk_add_f32 v[{80+2*k}:{81+2*k}], v[{80+2*k}:{81+2*k}], v[{88+2*k}:{89+2*k}]")
    for k in range(8): a(f"v_add_f32_dpp v{80+k}, v{80+k}, v{80+k} row_ror:8 row_mask:0xf bank_mask:0xf")
    for op in ("v_permlane16_swap_b32", "v_permlane32_swap_b32"):
        for k in range(8): a(f"v_mov_b32 v{88+k}, v{80+k}")
        for k in range(8): a(f"{op} v{80+k}, v{88+k}")
        for k in range(4): a(f"v_pk_add_f32 v[{80+2*k}:{81+2*k}], v[{80+2*k}:{81+2*k}], v[{88+2*k}:{89+2*k}]")
    a("""
    s_mov_b64 exec, 0xff
    buffer_store_dwordx4 v[80:83], v59, s[36:39], s96 offen sc1
    buffer_store_dwordx4 v[84:87], v59, s[36:39], s96 offen offset:16 sc1
    s_mov_b64 exec, -1
L_prep_p2c:
    """)
    st('c_done')
    if DIAG_ON():
        a("s_waitcnt vmcnt(0)"); st('drained')
        st.flush("s3", "s[36:39]")
        a("""
    s_lshl_b32 s4, s2, 3
    s_add_u32 s4, s4, s3
    s_cmp_lg_u32 s4, 0
    s_cbranch_scc1 L_prep_end
    s_load_dwordx2 s[4:5], s[0:1], 88
    v_mov_b32 v4, s48
    v_mov_b32 v5, s52
    v_mov_b32 v6, s56
    v_mov_b32 v7, s60
    v_mov_b32 v0, 0
    s_waitcnt lgkmcnt(0)
    s_mov_b64 exec, 1
    global_store_dwordx4 v0, v[4:7], s[4:5]
    """)
    a("s_endpgm")
    a("L_prep_end:\ns_endpgm")
    return a
```

```python
from common import *
from collections import deque
import struct, math

def f2u(x): return struct.unpack("<I", struct.pack("<f", x))[0]
GC0 = -2.0 * math.sqrt(2.0 / math.pi) * math.log2(math.e)
GC1 = GC0 * 0.044715

GA, UA = 0, 61568
CSF = 123136
RB = CSF + 3072
GEMM_LDS = 163840
RING = 12
NMAIN = 40 - RING
ACC1 = 48
TMP = 144
RING0 = 160
ACC2 = 24
F1 = FL
F3 = FL + 32768
XID = FL + 40960
SH = FL + 57344
GO = FL + 58368
SPIN = 0x40000
CA = 110592
CWS = 13312
CONV_W = 15
XSKIP = 2

def cost(s):
    op = s.split()[0]
    if op.startswith(("v_exp", "v_rcp", "v_sqrt", "v_swap", "v_permlane")): return 8
    return 4

def hslot(j): return (RING0 + (j % 9) * 16) if (j % 9) < 6 else (112 + ((j % 9) - 6) * 16)

import os
DETAIL = os.environ.get('DETAIL', '')
class Mega:
    def __init__(self, st):
        self.a = st.a
        self.st = st
        self.vm = Cnt(self.a, "vmcnt", 63)
        self.lg = Cnt(self.a, "lgkmcnt", 15)
        self.tail_blocks = []
        self.vq = deque()
        self.fq = deque()

    def vslot(self, n=1):
        done = 0
        i = 0
        while done < n and i < len(self.vq):
            ok, fn = self.vq[i]
            if ok():
                del self.vq[i]; fn(); done += 1
            else:
                i += 1
        return done
    def ensure(self, tag, n):
        while self.vm.count.get(tag, 0) < n:
            assert self.vslot(1) == 1, tag
    def fill(self, budget):
        while self.fq:
            x = self.fq[0]
            c = 4 if callable(x) else cost(x)
            if c > budget: break
            self.fq.popleft()
            if callable(x): x()
            else: self.a(x)
            budget -= c
    def flush_fill(self):
        self.fill(1 << 30)

    def ids(self):
        a = self.a
        a(f"""
    s_load_dwordx2 s[8:9], s[0:1], 96       ; ws
    s_load_dwordx4 s[4:7], s[0:1], 32
    s_load_dwordx4 s[40:43], s[0:1], 56
    s_load_dwordx2 s[12:13], s[0:1], 80     ; out
    v_lshrrev_b32 v2, 6, v0
    v_and_b32 v1, 63, v0
    v_readfirstlane_b32 s3, v2
    s_and_b32 s20, s2, 7
    s_lshr_b32 s21, s2, 3                   ; m
    v_lshlrev_b32 v2, 4, v1                 ; lane*16
    s_mov_b32 s39, 0xffff0000
    s_lshl_b32 s24, s20, 2
    s_add_u32 s24, s24, s3                  ; tb1 = 4G + w
    v_lshrrev_b32 v3, 5, v1                 ; hf
    v_and_b32 v4, 31, v1                    ; c
    v_lshlrev_b32 v6, 4, v4
    v_lshl_add_u32 v5, v3, 10, v6
    v_lshl_add_u32 v6, v3, 11, v6
    v_bfe_u32 v10, v1, 2, 2
    v_lshl_add_u32 v10, v3, 3, v10
    v_mul_u32_u24 v10, 96, v10
    v_and_b32 v11, 3, v1
    v_lshl_add_u32 v10, v11, 3, v10
    v_bfe_u32 v11, v1, 4, 1
    v_mul_u32_u24 v11, {UA}, v11
    v_add_u32 v10, v10, v11
    v_lshlrev_b32 v11, 2, v4                ; (lane&31)*4
    s_lshr_b32 s44, s21, 3
    s_lshl_b32 s45, s20, 2
    s_add_u32 s44, s44, s45                 ; tb2
    s_and_b32 s45, s21, 7                   ; cb2
    s_mov_b32 s38, 0
    """)

    def wread(self, ks, mt, dst, tag):
        if ks == 40:
            self.a(f"ds_read_b128 v[{dst}:{dst+3}], v7 offset:{mt*1024}"); self.lg.issue(tag)
            return
        for h in range(2):
            self.a(f"ds_read_b64_tr_b16 v[{dst+2*h}:{dst+2*h+1}], v10 offset:{ks*1536 + mt*32 + h*384}"); self.lg.issue(tag)

    def epi_ops(self, mt, par, packed):
        acc = ACC1 + (mt * 2 + par) * 16
        T = TMP + 8 * par
        o = []
        if packed:
            P = lambda i: f"v[{acc+2*i}:{acc+2*i+1}]"
            Tm = lambda i: f"v[{T+2*i}:{T+2*i+1}]"
            p = par
            for i in range(4): o.append(f"v_pk_mul_f32 {Tm(i)}, {P(i)}, {P(i)}")
            for i in range(4): o.append(f"v_pk_fma_f32 {Tm(i)}, {Tm(i)}, v[14:15], v[12:13] op_sel:[0,{p},{p}] op_sel_hi:[1,{p},{p}]")
            for i in range(4): o.append(f"v_pk_mul_f32 {Tm(i)}, {Tm(i)}, {P(i)}")
            for i in range(8): o.append(f"v_exp_f32 v{T+i}, v{T+i}")
            for i in range(4): o.append(f"v_pk_mul_f32 {P(i)}, {P(i)}, {P(i+4)}")
            for i in range(4): o.append(f"v_pk_fma_f32 {Tm(i)}, {Tm(i)}, v[16:17], v[16:17] op_sel:[0,{p},{p}] op_sel_hi:[1,{p},{p}]")
            for i in range(8): o.append(f"v_rcp_f32 v{T+i}, v{T+i}")
            for i in range(4): o.append(f"v_pk_mul_f32 {P(i)}, {P(i)}, {Tm(i)}")
        else:
            for i in range(8): o.append(f"v_mul_f32 v{T+i}, v{acc+i}, v{acc+i}")
            for i in range(8): o.append(f"v_fma_f32 v{T+i}, v{T+i}, v{14+par}, v{12+par}")
            for i in range(8): o.append(f"v_mul_f32 v{T+i}, v{T+i}, v{acc+i}")
            for i in range(8):
                o.append(f"v_exp_f32 v{T+i}, v{T+i}")
                o.append(f"v_mul_f32 v{acc+i}, v{acc+i}, v{acc+8+i}")
            for i in range(8): o.append(f"v_fma_f32 v{T+i}, v{T+i}, v{16+par}, v{16+par}")
            for i in range(8): o.append(f"v_rcp_f32 v{T+i}, v{T+i}")
            for i in range(8): o.append(f"v_mul_f32 v{acc+i}, v{acc+i}, v{T+i}")
        for i in range(4): o.append(f"v_cvt_pk_bf16_f32 v{acc+8+i}, v{acc+2*i}, v{acc+2*i+1}")
        def store():
            ins = f"buffer_store_dwordx4 v[{acc+8}:{acc+11}], v2, s[8:11], s{27+par} offen offset:{mt*1024}"
            if self.layer == 0: self.a(ins + " sc1")
            else: self.dstore([ins])
            self.vm.issue(f"h{mt}")
        o.append(store)
        return o

    def dstore(self, instrs):
        a = self.a
        Ls, Lb = a.label("wt"), a.label("wb")
        a(f"s_cmp_eq_u32 s38, 0\ns_cbranch_scc1 {Ls}")
        for i in instrs: a(i)
        a(f"{Lb}:")
        self.tail_blocks.append(f"{Ls}:\n" + "\n".join(i + (" sc1" if i.startswith("buffer_store") else "") for i in instrs) + f"\ns_nop 1\ns_branch {Lb}\n")

    def flag_store(self, sreg, off):
        self.a("s_mov_b64 exec, 1")
        self.dstore([f"buffer_store_dword v9, v8, s[8:11], {sreg} offen offset:{off}"])
        self.a("s_mov_b64 exec, -1")
        self.vm.issue("flag")

    def poll_issue(self, sreg, dst):
        self.a(f"buffer_load_dword v{dst}, v11, s[8:11], {sreg} offen sc1"); self.vm.issue("poll")
    def poll_check(self, sreg, dst, mask):
        a = self.a
        self.vm.wait("poll")
        Lr, Lb = a.label("spin"), a.label("back")
        a(f"""
    v_cmp_ne_u32 vcc, 0, v{dst}
    s_and_b32 s34, vcc_lo, {hex(mask)}
    s_cmp_lg_u32 s34, {hex(mask)}
    s_cbranch_scc1 {Lr}
{Lb}:
    """)
        self.tail_blocks.append(f"""
{Lr}:
    s_mov_b32 s35, {SPIN}
{Lr}_l:
    buffer_load_dword v{dst}, v11, s[8:11], {sreg} offen sc1
    s_waitcnt vmcnt(0)
    v_cmp_ne_u32 vcc, 0, v{dst}
    s_nop 1
    s_and_b32 s34, vcc_lo, {hex(mask)}
    s_cmp_eq_u32 s34, {hex(mask)}
    s_cbranch_scc1 {Lb}
    s_sub_u32 s35, s35, 1
    s_cbranch_scc0 {Lr}_l
    s_branch {Lb}
""")

    def w1dma(self, i):
        a = self.a
        r, u = i // 3, i % 3
        a(f"s_add_u32 m0, s31, {r*6144 + u*1024}")
        a(f"s_add_u32 s33, s30, {r*64*3072}" if u == 0 else "s_nop 0")
        a(f"buffer_load_dwordx4 v{12+u}, s[16:19], s33 offen lds"); self.vm.issue("W")
    def wdl(self, j, mt):
        a = self.a
        i = j * 5 + mt
        if mt == 0:
            a(f"s_add_u32 s47, s46, s{97 + j%4}")
            if j >= 4: a(f"s_add_u32 s47, s47, {(j//4)*20480}")
        if mt < 4: a(f"buffer_load_dwordx4 a[{4*i}:{4*i+3}], v2, s[8:11], s47 offen offset:{mt*1024}")
        else: a(f"buffer_load_dwordx4 a[{4*i}:{4*i+3}], v0, s[8:11], s47 offen")
        self.vm.issue(f"D{j}")

    def front(self):
        a, vm, lg, st = self.a, self.vm, self.lg, self.st
        a(f"""
    s_lshr_b32 s27, s3, 1
    s_mul_i32 s30, s27, {32*3072}
    s_mul_i32 s31, s21, 96
    s_add_u32 s30, s30, s31
    s_mul_i32 s31, s27, 3072
    s_and_b32 s27, s3, 1
    s_mul_i32 s27, s27, {UA}
    s_add_u32 s31, s31, s27
    s_mul_i32 s46, s45, 245760
    s_mul_i32 s47, s3, 61440
    s_add_u32 s46, s46, s47
    s_add_u32 s46, s46, {WDL}
    v_add_u32 v0, 4096, v2
    """)
        for u in range(3):
            a(f"v_add_u32 v15, {64*u}, v1\nv_mul_u32_u24 v16, 10923, v15\nv_lshrrev_b32 v16, 16, v16\nv_mul_u32_u24 v16, 2976, v16\nv_lshl_add_u32 v{12+u}, v15, 4, v16")
        for jj in range(4):
            a(f"s_lshr_b32 s27, s21, 3\ns_add_u32 s27, s27, {jj}\ns_and_b32 s27, s27, 3\ns_mul_i32 s{97+jj}, s27, 5120")
        a(f"""
    s_getreg_b32 s37, hwreg(HW_REG_XCC_ID)
    s_lshl_b32 s22, s20, 11
    s_and_b32 s37, s37, 15
    s_add_u32 s22, s22, {XID}
    s_add_u32 s37, s37, 1
    s_lshl_b32 s27, s21, 6
    s_lshl_b32 s28, s3, 2
    s_add_u32 s27, s27, s28
    v_mov_b32 v8, s27
    v_mov_b32 v9, s37
    s_waitcnt lgkmcnt(0)
    s_and_b32 s9, s9, 0xffff
    s_mov_b32 s10, {WS_USED}
    s_mov_b32 s11, 0x20000
    s_bitcmp1_b32 s3, 0
    s_cselect_b32 s16, s42, s40
    s_cselect_b32 s17, s43, s41
    s_and_b32 s17, s17, 0xffff
    s_mov_b32 s18, {D*F*2}
    s_mov_b32 s19, 0x20000
    s_and_b32 s13, s13, 0xffff
    s_mov_b32 s14, {ACT_BYTES}
    s_mov_b32 s15, 0x20000
    s_cmp_ge_u32 s21, 20
    s_cbranch_scc1 L_idle
    s_mul_i32 s40, s20, 20
    s_add_u32 s40, s40, s21                 ; g
    s_lshl_b32 s41, s40, 2
    s_add_u32 s41, s41, s3                  ; d
    s_lshl_b32 s42, s41, 13
    s_add_u32 s42, s42, {XT}
    s_lshl_b32 s25, s41, 12
    s_mul_i32 s26, s3, {CWS}
    s_add_u32 s26, s26, {CA}
    """)
        a(f"s_add_u32 m0, s26, 4288")
        srd(a, 32, 4, D * S * 2)
        st("ids")
        for i in range(4): a(f"buffer_load_dwordx4 v2, s[8:11], s42 offen offset:{1024*i} lds"); vm.issue("x")
        a(f"s_mov_b32 m0, s26\ns_add_u32 s43, s42, {XT_CP}")
        for i in range(4): a(f"buffer_load_dwordx4 v2, s[8:11], s43 offen offset:{1024*i} lds"); vm.issue("x")
        a(f"s_add_u32 s27, s26, {8704+512}\ns_mov_b32 m0, s27\ns_add_u32 s4, s4, s25\ns_addc_u32 s5, s5, 0")
        for i in range(4): a(f"buffer_load_dwordx4 v2, s[32:35], s25 offen offset:{1024*i} lds"); vm.issue("x")
        a(f"""
    s_load_dword s28, s[4:5], 0
    s_lshr_b32 s29, s41, 1
    s_lshl_b32 s29, s29, 2
    s_add_u32 s6, s6, s29
    s_addc_u32 s7, s7, 0
    s_load_dword s29, s[6:7], 0
    s_mov_b64 exec, 1
    buffer_store_dword v9, v8, s[8:11], s22 offen sc1
    s_mov_b64 exec, -1
    """)
        vm.issue("xid")
        FB, GB, AC, QR = 64, 128, 32, 192
        a(f"""
    v_and_b32 v28, 15, v1                   ; b / a
    v_lshrrev_b32 v29, 4, v1                ; q
    v_mov_b32 v24, 0
    v_mov_b32 v25, 0
    v_mov_b32 v26, 0
    v_mov_b32 v27, 0
    v_lshl_add_u32 v15, v1, 3, s26
    ds_write_b64 v15, v[24:25] offset:8704
    v_lshrrev_b32 v15, 1, v1
    v_mul_u32_u24 v15, 4288, v15
    v_and_b32 v16, 1, v1
    v_lshl_add_u32 v15, v16, 4, v15
    v_add_u32 v15, s26, v15
    s_mov_b64 exec, 15
    ds_write_b128 v15, v[24:27] offset:4096
    s_mov_b64 exec, -1
    ; F bases: 28 + 16 q - 4 (b&7) + (b>=8 ? 4288 : 0) + 1024 (3 - i)
    v_and_b32 v15, 7, v28
    v_lshlrev_b32 v15, 2, v15
    v_lshlrev_b32 v16, 4, v29
    v_sub_u32 v15, v16, v15
    v_lshrrev_b32 v17, 3, v28
    v_mul_u32_u24 v17, 4288, v17
    v_add3_u32 v15, v15, v17, s26
    v_add_u32 v19, 28, v15
    v_add_u32 v18, {28+1024}, v15
    v_add_u32 v17, {28+2048}, v15
    v_add_u32 v16, {28+3072}, v15
    v_lshlrev_b32 v20, 5, v28
    v_lshl_add_u32 v20, v29, 4, v20
    v_add_u32 v20, s26, v20
    s_lshl_b32 s43, s3, 6
    s_add_u32 s43, s43, s26
    v_lshlrev_b32 v21, 11, v3
    v_lshl_add_u32 v21, v28, 4, v21
    v_and_b32 v22, 1, v29
    v_lshl_add_u32 v21, v22, 3, v21
    v_add_u32 v21, s43, v21
    v_lshrrev_b32 v22, 2, v28
    v_mul_u32_u24 v22, {CWS+64}, v22
    v_and_b32 v23, 3, v28
    v_lshl_add_u32 v22, v23, 3, v22
    v_lshl_add_u32 v22, v29, 5, v22
    s_lshl_b32 s43, s3, 7
    s_add_u32 s43, s43, {CA}
    v_add_u32 v22, s43, v22
    s_lshl_b32 s42, s3, 10
    s_add_u32 s42, s42, {MR}
    v_mul_u32_u24 v23, {TB}, v3
    v_lshl_add_u32 v23, v4, 4, v23
    s_mul_i32 s43, s3, {2*TB}
    s_lshl_b32 s25, s40, 9
    s_add_u32 s43, s43, s25
    s_waitcnt lgkmcnt(0)
    ; h'[0] = bf16(h[0] + D[d])
    s_lshl_b32 s28, s28, 16
    s_and_b32 s25, s29, 0xffff0000
    s_lshl_b32 s29, s29, 16
    s_bitcmp1_b32 s41, 0
    s_cselect_b32 s29, s25, s29
    v_mov_b32 v24, s28
    v_add_f32 v24, s29, v24
    v_cvt_pk_bf16_f32 v24, v24, v24
    v_mov_b32 v25, s27
    """)
        st("issued")
        vm.wait("x")
        st("landed")
        a("s_mov_b64 exec, 1\nds_write_b16 v25, v24\ns_mov_b64 exec, -1")
        def reads(rho):
            l = []
            fb, gb = FB + (rho & 1) * 32, GB + (rho & 1) * 32
            for k in range(8):
                sg = k
                o = (512 * (1 - (sg & 1)) + 448 - 64 * rho) // 4
                for h in range(2):
                    l.append(f"ds_read2_b32 v[{fb+4*sg+2*h}:{fb+4*sg+2*h+1}], v{16 + sg//2} offset0:{o+2*h} offset1:{o+2*h+1}")
                l.append(f"ds_read_b128 v[{gb+4*k}:{gb+4*k+3}], v20 offset:{8704 + 480 - 64*(rho - 8*k)}")
            return l
        for k, x in enumerate(reads(0)):
            if k in (10, 20): a("s_waitcnt lgkmcnt(3)")
            a(x)
        vq = deque()
        def qn(j, k):
            r = QR + 16 * k + 4 * j
            if k == 0:
                a(f"s_add_u32 s25, s43, {X1 + j*8*TB}")
                a(f"buffer_load_dwordx4 v[{r}:{r+3}], v23, s[8:11], s25 offen")
            else:
                a(f"s_add_u32 s25, s42, {j*4096}")
                a(f"buffer_load_dwordx4 v[{r}:{r+3}], v2, s[8:11], s25 offen")
            vm.issue("qn")
        for k in range(2):
            for j in range(4): vq.append(lambda j=j, k=k: qn(j, k))
        for i in range(CONV_W): vq.append(lambda i=i: self.w1dma(i))
        NPER = [5, 5, 3, 3, 3, 2, 2, 0]
        assert sum(NPER) == len(vq)
        first = [True] * 8
        for rho in range(8):
            a("s_waitcnt lgkmcnt(0)")
            if rho == 4: st("class4")
            rd = deque(reads(rho + 1)) if rho < 7 else deque()
            nper = NPER[rho]
            slots = [int(36 * (k + 0.5) / nper) for k in range(nper)]
            n = 0
            for sg in range(8):
                for k in range(0, 8 - sg):
                    T = sg + k
                    acc = f"v[{AC+4*T}:{AC+4*T+3}]"
                    fr, gr = FB + (rho & 1) * 32 + 4 * sg, GB + (rho & 1) * 32 + 4 * k
                    a(f"v_mfma_f32_16x16x32_bf16 {acc}, v[{fr}:{fr+3}], v[{gr}:{gr+3}], {'0' if first[T] else acc}")
                    first[T] = False
                    if n in slots and vq: vq.popleft()()
                    elif rd and n < 32: a(rd.popleft())
                    n += 1
            while rd: a(rd.popleft())
        assert not vq
        st("mfma")
        for T in range(8):
            a(f"v_cvt_pk_bf16_f32 v{FB+2*T}, v{AC+4*T}, v{AC+4*T+1}")
            a(f"v_cvt_pk_bf16_f32 v{FB+2*T+1}, v{AC+4*T+2}, v{AC+4*T+3}")
            a(f"ds_write_b64 v21, v[{FB+2*T}:{FB+2*T+1}] offset:{256*T}")
        a("s_waitcnt lgkmcnt(0)\ns_barrier")
        for j in range(4):
            for par in range(2):
                r = AC + 4 * j + 2 * par
                a(f"ds_read_b64_tr_b16 v[{r}:{r+1}], v22 offset:{512*j + 2048*par}")
        vm.wait("qn")
        for j in range(4):
            a(f"s_waitcnt lgkmcnt({6-2*j})")
            o = AC + 16 + 4 * j
            for par in range(2):
                r = QR + 4 * j + 2 * par
                mr = f"v[{QR+16+4*j+2*par}:{QR+17+4*j+2*par}]"
                y = AC + 4 * j + 2 * par
                for h in range(2):
                    t = FB + 8 * h
                    a(f"v_lshlrev_b32 v{t}, 16, v{r+h}")
                    a(f"v_and_b32 v{t+1}, s39, v{r+h}")
                    a(f"v_lshlrev_b32 v{t+4}, 16, v{y+h}")
                    a(f"v_and_b32 v{t+5}, s39, v{y+h}")
                    a(f"v_pk_add_f32 v[{t+2}:{t+3}], v[{t}:{t+1}], {mr} op_sel_hi:[1,0] neg_lo:[0,1] neg_hi:[0,1]")
                    a(f"v_pk_mul_f32 v[{t+4}:{t+5}], v[{t+4}:{t+5}], {mr} op_sel:[0,1] op_sel_hi:[1,1]")
                    a(f"v_pk_fma_f32 v[{t}:{t+1}], v[{t+2}:{t+3}], v[{t+4}:{t+5}], v[{t}:{t+1}]")
                    a(f"v_cvt_pk_bf16_f32 v{o+2*par+h}, v{t}, v{t+1}")
            a(f"s_add_u32 s25, s43, {X1 + j*8*TB}")
            a(f"buffer_store_dwordx4 v[{o}:{o+3}], v23, s[8:11], s25 offen sc1"); vm.issue("o")
        for j in range(4):
            a(f"s_add_u32 s25, s43, {Y + j*8*TB}")
            a(f"buffer_store_dwordx4 v[{AC+4*j}:{AC+4*j+3}], v23, s[8:11], s25 offen sc1"); vm.issue("o")
        st("stored")
        vm.wait("o")
        a("s_barrier")
        st("drained")
        Lx = a.label("arr")
        a(f"""
    s_cmp_lg_u32 s3, 0
    s_cbranch_scc1 {Lx}
    s_lshl_b32 s25, s20, 7
    s_add_u32 s25, s25, {SH}
    v_mov_b32 v24, 1
    v_mov_b32 v25, 0
    s_mov_b64 exec, 1
    buffer_atomic_add v24, v25, s[8:11], s25 offen sc0 sc1
    s_mov_b64 exec, -1
    s_waitcnt vmcnt(0)
    v_readfirstlane_b32 s25, v24
    s_cmp_lg_u32 s25, 19
    s_cbranch_scc1 {Lx}
    s_lshl_b32 s25, s20, 2
    s_add_u32 s25, s25, {GO}
    v_lshlrev_b32 v25, 7, v1
    v_mov_b32 v24, 1
    s_mov_b64 exec, 0xff
    buffer_store_dword v24, v25, s[8:11], s25 offen sc1
    s_mov_b64 exec, -1
{Lx}:
    """)
        for i in range(CONV_W, 21): self.w1dma(i)
        a("s_branch L_join")
        a("L_idle:")
        a("s_mov_b64 exec, 1\nbuffer_store_dword v9, v8, s[8:11], s22 offen sc1\ns_mov_b64 exec, -1")
        for i in range(21):
            if i >= 3: a("s_waitcnt vmcnt(2)")
            self.w1dma(i)
        a("L_join:")
        vm.q = ["?"] * 10
        a(f"""
    v_lshlrev_b32 v9, 4, v11
    buffer_load_dword v9, v9, s[8:11], s22 offen sc1
    s_min_u32 s26, s3, 2
    s_lshl_b32 s27, s26, 6
    s_mul_i32 s28, s21, 192
    s_add_u32 s27, s27, s28
    s_add_u32 s27, s27, {CS}
    v_and_b32 v7, 15, v1
    v_lshlrev_b32 v7, 2, v7
    v_bfe_u32 v8, v1, 4, 1
    v_mul_u32_u24 v8, 6144, v8
    v_add_u32 v7, v7, v8
    buffer_load_dword v32, v7, s[8:11], s27 offen
    s_add_u32 s27, s27, {3072*4}
    buffer_load_dword v40, v7, s[8:11], s27 offen
    s_add_u32 s27, s27, {3072*4}
    buffer_load_dword v41, v7, s[8:11], s27 offen
    s_add_u32 s27, s27, {3072*4}
    buffer_load_dword v42, v7, s[8:11], s27 offen
    s_add_u32 s27, s27, {3072*4}
    buffer_load_dword v43, v7, s[8:11], s27 offen
    s_lshl_b32 s26, s26, 10
    s_add_u32 s26, s26, {CSF}
    v_add_u32 v8, s26, v2
    s_lshl_b32 s22, s44, 2
    s_add_u32 s22, s22, s3
    s_lshl_b32 s23, s22, 10
    s_add_u32 s23, s23, {ST2 - 8*128}
    v_lshl_add_u32 v23, v1, 7, s23
    s_lshl_b32 s22, s22, 7
    s_add_u32 s22, s22, {F1}
    v_writelane_b32 v23, s22, 2
    s_add_u32 s22, s22, 16384
    v_writelane_b32 v23, s22, 3
    s_lshl_b32 s22, s24, 7
    s_add_u32 s22, s22, {F3}
    v_writelane_b32 v23, s22, 4
    s_lshl_b32 s22, s24, 5
    s_add_u32 s22, s22, s21
    s_lshl_b32 s22, s22, 7
    s_add_u32 s22, s22, {ST1}
    v_writelane_b32 v23, s22, 0
    s_add_u32 s22, s22, {ST3 - ST1}
    v_writelane_b32 v23, s22, 1
    s_mov_b64 exec, 0xff1f
    buffer_load_dword a252, v23, s[8:11], 0 offen
    s_mov_b64 exec, -1
    """)
        for jj in range(4):
            a(f"s_lshr_b32 s22, s21, 3\ns_add_u32 s22, s22, {jj}\ns_and_b32 s22, s22, 3\ns_mul_i32 s{4+jj}, s22, 6144")
        Lw = a.label("go")
        a(f"""
    s_waitcnt vmcnt(1)
    v_cmp_ne_u32 vcc, s37, v9
    s_cmp_eq_u32 vcc_lo, 0
    s_cselect_b32 s38, 1, 0
    v_add_f32 v32, v32, v40
    v_add_f32 v41, v41, v42
    v_add_f32 v32, v32, v43
    v_add_f32 v32, v32, v41
    v_cmp_gt_u32 vcc, 32, v1
    v_mov_b32 v38, 0
    v_mov_b32 v39, 0
    v_cndmask_b32 v32, 0, v32, vcc
    v_cvt_pk_bf16_f32 v36, v32, v32
    v_lshlrev_b32 v33, 16, v36
    v_sub_f32 v33, v32, v33
    v_cvt_pk_bf16_f32 v36, v32, v33
    v_and_b32 v34, s39, v36
    v_sub_f32 v33, v33, v34
    v_cvt_pk_bf16_f32 v37, v33, v38
    ds_write_b128 v8, v[36:39]
    s_waitcnt lgkmcnt(0)
    s_cmp_lg_u32 s3, 0
    s_cbranch_scc1 {Lw}
    s_lshl_b32 s36, s20, 7
    s_add_u32 s36, s36, {GO}
    s_mov_b32 s35, {SPIN}
{Lw}_l:
    buffer_load_dword v18, v11, s[8:11], s36 offen sc1
    s_waitcnt vmcnt(0)
    v_cmp_ne_u32 vcc, 0, v18
    s_and_b32 s34, vcc_lo, 0xff
    s_cmp_eq_u32 s34, 0xff
    s_cbranch_scc1 {Lw}
    s_sleep 2
    s_sub_u32 s35, s35, 1
    s_cbranch_scc0 {Lw}_l
{Lw}:
    s_waitcnt lgkmcnt(0)
    """)
        st("ready")
        a("s_barrier")
        vm.q = ["?"]
        lg.q = []
        st("go")

    def gemm1(self, layer):
        a, vm, lg, st = self.a, self.vm, self.lg, self.st
        first = layer == 0
        self.layer = layer
        vm.count = {}
        if DETAIL:
            DET = list(range(int(DETAIL), int(DETAIL) + 7)); st0 = st
            if first: self.st = st = lambda n: None
        XS, HD, ST = (X1, H1, ST1) if first else (X3, H2, ST3)
        sc = "sc1"
        a(f"""
    s_mul_i32 s25, s24, {TB}
    s_add_u32 s25, s25, {XS}
    """)
        state = dict(tnext=0, done=-1)
        def thalf(ks, h):
            r = RING0 + (ks % RING) * 8 + 4 * h
            o = (ks % 2) * 2048 + 512 * h
            def fn():
                a(f"buffer_load_dwordx4 v[{r}:{r+3}], v5, s[8:11], s25 offen offset:{o} {sc}"); vm.issue(f"T{ks}")
                if ks % 2 == 1 and h == 1: a("s_add_u32 s25, s25, 4096")
            return (lambda: state["done"] >= ks - RING, fn)
        def tload():
            ks = state["tnext"]; state["tnext"] += 1
            thalf(ks, 0)[1](); thalf(ks, 1)[1]()
        def stl(i):
            def fn():
                rr = TMP + i * 4
                a(f"buffer_load_dwordx4 v[{rr}:{rr+3}], v6, s[8:11], s26 offen offset:{i*512} sc1"); vm.issue("stl")
            return (lambda: state["done"] >= 20, fn)

        if first:
            a(f"""
    s_mul_i32 s22, s44, {TB}
    s_lshl_b32 s29, s45, 6
    s_add_u32 s22, s22, s29
    s_mul_i32 s29, s3, {40*512}
    s_add_u32 s22, s22, s29
    s_add_u32 s22, s22, {XS}
    v_and_b32 v7, 7, v1
    v_lshlrev_b32 v7, 3, v7
    v_lshrrev_b32 v8, 3, v1
    v_lshl_add_u32 v8, v8, 9, v7
    """)
            for i in range(5):
                a(f"buffer_load_dwordx2 v[{TMP+2*i}:{TMP+2*i+1}], v8, s[8:11], s22 offen sc1"); vm.issue("st")
                if i < 4: a("s_add_u32 s22, s22, 4096")
        for _ in range(6): tload()
        st("issued")
        self.fq.extend([f"s_lshl_b32 s26, s24, 12", f"s_add_u32 s26, s26, {ST}"])
        if True:
            self.post = [f"v_add_u32 v7, {CSF}, v2"]
            self.fq.extend([f"s_mul_i32 s27, s24, {2*96*1024}", "s_mul_i32 s28, s21, 3072", "s_add_u32 s27, s27, s28", f"s_add_u32 s27, s27, {HD}",
                            f"s_add_u32 s28, s27, {96*1024}"])
        if first:
            S, Q, t, u = TMP + 10, TMP + 11, TMP + 12, TMP + 13
            f = [lambda: vm.wait("st")]
            for i in range(10):
                f += [f"v_lshlrev_b32 v{t}, 16, v{TMP+i}", f"v_and_b32 v{u}, s39, v{TMP+i}"]
                if i == 0: f += [f"v_add_f32 v{S}, v{t}, v{u}", f"v_mul_f32 v{Q}, v{t}, v{t}"]
                else: f += [f"v_add_f32 v{S}, v{S}, v{t}", f"v_fmac_f32 v{Q}, v{t}, v{t}", f"v_add_f32 v{S}, v{S}, v{u}"]
                f.append(f"v_fmac_f32 v{Q}, v{u}, v{u}")
            def sts():
                a("s_mov_b32 exec_lo, 0xff\ns_mov_b32 exec_hi, 0xff")
                self.dstore([f"buffer_store_dwordx2 v[{S}:{Q}], v7, s[8:11], s22 offen"])
                a("s_mov_b64 exec, -1"); vm.issue("sts")
            f += ["s_lshl_b32 s22, s44, 12", "s_lshl_b32 s23, s3, 10",
                  f"v_add_f32_dpp v{S}, v{S}, v{S} row_ror:8 row_mask:0xf bank_mask:0xf",
                  f"v_add_f32_dpp v{Q}, v{Q}, v{Q} row_ror:8 row_mask:0xf bank_mask:0xf",
                  "s_add_u32 s22, s22, s23", f"v_mov_b32 v{t}, v{S}", f"v_mov_b32 v{u}, v{Q}", "s_lshl_b32 s23, s45, 6", "s_add_u32 s22, s22, s23",
                  f"v_permlane16_swap_b32 v{S}, v{t}", f"v_permlane16_swap_b32 v{Q}, v{u}",
                  f"s_add_u32 s22, s22, {ST}", "v_lshl_add_u32 v7, v3, 9, v7",
                  f"v_add_f32 v{S}, v{S}, v{t}", f"v_add_f32 v{Q}, v{Q}, v{u}", sts]
            self.fq.extend(f)
        self.fq.extend(self.post)
        tq = [thalf(ks, h) for ks in range(state["tnext"], 40) for h in range(2)]
        k = 2 * (35 - state["tnext"])
        tq = tq[:k] + [stl(i) for i in range(4)] + tq[k:]
        if first:
            xq = [(lambda: True, lambda i=i: self.w1dma(i)) for i in range(21, 30)]
            xq += [(lambda: True, lambda j=j, mt=mt: self.wdl(j, mt)) for j in range(12) for mt in range(5)]
            order = []
            n = 0
            while tq:
                order += tq[:2]; tq = tq[2:]
                n += 1
                if n > XSKIP and n % 2 == 0 and n <= XSKIP + 24: order.append(xq.pop(0))
            tq = order + xq
        self.vq = deque(tq)
        def swaps(ks):
            r = RING0 + (ks % RING) * 8
            self.ensure(f"T{ks}", 2)
            if DETAIL and first and ks in DET: st0(f"bT{ks}")
            vm.wait(f"T{ks}")
            if DETAIL and first and ks in DET: st0(f"aT{ks}")
            a(f"v_swap_b32 v{r+2}, v{r+4}")
            a(f"v_swap_b32 v{r+3}, v{r+5}")
        def mfma(mt, par, A, B, zero=False):
            acc = ACC1 + (mt * 2 + par) * 16
            accs = f"v[{acc}:{acc+15}]"
            a(f"v_mfma_f32_32x32x16_bf16 {accs}, v[{A}:{A+3}], v[{B}:{B+3}], {'0' if zero else accs}")
        for mt in range(3): self.wread(0, mt, 24 + 4 * mt, "A0")
        swaps(0)
        st("T0")
        for ks in range(NMAIN):
            if ks in (8, 16, 24): st(f"ks{ks}")
            r = RING0 + (ks % RING) * 8
            b = 24 + (ks & 1) * 12
            nb = 24 + ((ks + 1) & 1) * 12
            if ks == 20: self.flush_fill()
            lg.wait(f"A{ks}")
            n = 0
            for mt in range(3):
                for par in range(2):
                    mfma(mt, par, b + 4 * mt, r + 4 * par, ks == 0)
                    n += 1
                    if n == 1:
                        if ks + 1 < NMAIN:
                            for m2 in range(3): self.wread(ks + 1, m2, nb + 4 * m2, f"A{ks+1}")
                        if ks + 1 >= NMAIN: self.fill(20)
                    if n == 6: state["done"] = ks
                    if n in (2, 4, 6):
                        did = self.vslot(1)
                        self.fill((8 if did else 20) - (4 if n == 6 else 0))
                    if n == 3: swaps(ks + 1)
                    if n == 5: self.fill(24)
        self.flush_fill()
        st("main")
        NB = 4
        seq = [(mt, ks) for mt in range(3) for ks in list(range(NMAIN, 40)) + [40]]
        def aread(i):
            mt, ks = seq[i]
            self.wread(ks, mt, 24 + (i % NB) * 4, f"B{i}")
        if first:
            vm.wait("W"); a("s_barrier")
        for i in range(NB - 1): aread(i)
        self.ensure("stl", 4)
        R = TMP
        Ls, Lb = a.label("stspin"), a.label("stback")
        f = [lambda: vm.wait("stl"), f"v_max_u32 v18, v{R+1}, v{R+3}"]
        for i in range(1, 4): f.append(f"v_max3_u32 v18, v18, v{R+4*i+1}, v{R+4*i+3}")
        f += [lambda: a(f"v_cmp_eq_u32 vcc, -1, v18\ns_cbranch_vccnz {Ls}\n{Lb}:")]
        rl = "\n".join(f"    buffer_load_dwordx4 v[{TMP+i*4}:{TMP+i*4+3}], v6, s[8:11], s26 offen offset:{i*512} sc1" for i in range(4))
        mx = "\n".join(f"    v_max3_u32 v18, v18, v{R+4*i+1}, v{R+4*i+3}" for i in range(1, 4))
        self.tail_blocks.append(f"""
{Ls}:
    s_mov_b32 s35, {SPIN}
{Ls}_l:
{rl}
    s_waitcnt vmcnt(0)
    v_max_u32 v18, v{R+1}, v{R+3}
{mx}
    v_cmp_eq_u32 vcc, -1, v18
    s_cbranch_vccz {Lb}
    s_sub_u32 s35, s35, 1
    s_cbranch_scc0 {Ls}_l
    s_branch {Lb}
""")
        for k in range(4): f += [f"v_add_f32 v{R+k}, v{R+k}, v{R+4+k}", f"v_add_f32 v{R+8+k}, v{R+8+k}, v{R+12+k}"]
        for k in range(4): f.append(f"v_add_f32 v{R+k}, v{R+k}, v{R+8+k}")
        for k in range(4): f.append(f"v_mov_b32 v{R+4+k}, v{R+k}")
        for k in range(4): f.append(f"v_permlane32_swap_b32 v{R+k}, v{R+4+k}")
        for k in range(4): f.append(f"v_add_f32 v{R+k}, v{R+k}, v{R+4+k}")
        recs = []
        for t in range(2):
            l = []; rr = l.append
            b = R + 2 * t
            vmn, vr = R + 4 + 2 * t, R + 5 + 2 * t
            rr(f"v_mul_f32 v{vmn}, 0x3acccccd, v{b}")
            rr(f"v_mul_f32 v{vr}, 0x3acccccd, v{b+1}")
            rr(f"v_fma_f32 v{vr}, -v{vmn}, v{vmn}, v{vr}")
            rr(f"v_max_f32 v{vr}, 0, v{vr}")
            rr(f"v_cvt_pk_bf16_f32 v{40+4*t}, -v{vmn}, -v{vmn}")
            rnd_bf16(rr, vr)
            rr(f"v_and_b32 v{41+4*t}, 0xffff, v{40+4*t}")
            rr(f"v_add_f32 v{vr}, 0x3727c5ac, v{vr}")
            rnd_bf16(rr, vr)
            rr(f"v_sqrt_f32 v{vr}, v{vr}")
            rr(f"v_mov_b32 v{42+4*t}, 0")
            rnd_bf16(rr, vr)
            rr(f"v_mul_f32 v{16+t}, v{vr}, v{vr}")
            rr(f"v_rcp_f32 v{vr}, v{vr}")
            rr(f"v_mov_b32 v{43+4*t}, 0")
            rr(f"v_mul_f32 v{12+t}, {hex(f2u(GC0))}, v{vr}")
            rr(f"v_mul_f32 v{14+t}, v{vr}, v{vr}")
            rr(f"v_mul_f32 v{vr}, {hex(f2u(GC1))}, v{vr}")
            rr(f"v_mul_f32 v{14+t}, v{14+t}, v{vr}")
            recs.append(l)
        for x, y in zip(*recs): f += [x, y]
        f += [f"s_lshl_b32 s29, s24, 2", "s_lshr_b32 s34, s21, 3", "s_add_u32 s29, s29, s34", "s_lshl_b32 s29, s29, 7",
              f"s_add_u32 s29, s29, {F1 + layer*16384}", "s_lshl_b32 s34, s45, 2", "v_mov_b32 v8, s34", "v_mov_b32 v9, 1",
              "s_lshl_b32 s36, s44, 2", "s_add_u32 s36, s36, s3", "s_lshl_b32 s36, s36, 7", f"s_add_u32 s36, s36, {F1 + layer*16384}"]
        self.fq.extend(f)
        for i, (mt, ks) in enumerate(seq):
            if ks == 40 and mt == 0: self.flush_fill()
            lg.wait(f"B{i}")
            A = 24 + (i % NB) * 4
            for par in range(2):
                B = RING0 + (ks % RING) * 8 + 4 * par if ks < 40 else 40 + 4 * par
                mfma(mt, par, A, B)
                if par == 0:
                    if i + NB - 1 < len(seq): aread(i + NB - 1)
                    if mt == 0 and ks + 1 < 40: swaps(ks + 1)
                    else:
                        did = self.vslot(1) if ks % 2 else 0
                        self.fill(20 - 8 * did)
                else:
                    did = self.vslot(1)
                    self.fill(20 - 8 * did)
            if ks == 40:
                self.flush_fill()
                st(f"pass{mt}")
                if mt == 2: break
                pre = self.g2_setup(layer) if mt == 0 else []
                e = self.epi_ops(mt, 0, False) + self.epi_ops(mt, 1, False)
                k = min(len(pre), 10)
                self.fq.extend(pre[:k] + e + pre[k:])
                if mt == 1:
                    self.fq.insert(len(self.fq) // 4, lambda: (vm.wait("h0"), self.flag_store("s29", 0)))
                    self.fq.insert(len(self.fq) - 24, lambda: self.poll_issue("s36", 18))

    def g2_setup(self, layer):
        HS = H1 if layer == 0 else H2
        f = ["v_and_b32 v19, 15, v1", "v_lshrrev_b32 v20, 4, v1", "v_lshlrev_b32 v21, 4, v19",
             "v_lshl_add_u32 v21, v20, 9, v21",
             "v_lshl_add_u32 v22, v3, 11, v21",
             f"s_mul_i32 s26, s44, {2*96*1024}", f"s_mul_i32 s34, s3, {24*1024}", "s_add_u32 s26, s26, s34", f"s_add_u32 s26, s26, {HS}"]
        for n in range(4):
            f += [f"s_add_u32 s34, s3, {n}", "s_and_b32 s35, s34, 1", f"s_mul_i32 s35, s35, {96*1024}", "s_lshl_b32 s34, s34, 7",
                  "s_and_b32 s34, s34, 256", f"s_add_u32 s{40+n}, s26, s35", f"s_add_u32 s{40+n}, s{40+n}, s34"]
        return f

    def gemm2(self, layer):
        a, vm, lg, st = self.a, self.vm, self.lg, self.st
        last = layer == 1
        state = dict(done=-1, parts=1, free=False)
        def hl(j, n):
            P, jj = j // 4, j % 4
            r = hslot(j) + n * 4
            def fn():
                a(f"s_add_u32 s31, s{40+n}, s{4+jj}")
                a(f"buffer_load_dwordx4 v[{r}:{r+3}], v22, s[8:11], s31 offen offset:{P*1024} sc1")
                vm.issue(f"K{j}")
            return (lambda: state["done"] >= j - 9 and j // 4 < state["parts"] and (j % 9 < 6 or state["free"]), fn)
        rest = list(self.vq)
        hq = [hl(j, n) for j in range(12) for n in range(4)]
        self.poll_check("s36", 18, 0xff)
        st("p0ok")
        self.vq = deque(hq[:12] + rest + hq[12:])
        e = self.epi_ops(2, 0, True) + [lambda: (vm.wait("h1"), self.flag_store("s29", 32))] + self.epi_ops(2, 1, True)
        for k, x in enumerate(e):
            x() if callable(x) else a(x)
            if k % 5 == 0: self.vslot(1)
        self.poll_issue("s36", 18)
        st("epi2")
        XRr, Yr = hslot(3), hslot(4)
        def xl(base, reg, mt):
            def fn():
                a(f"s_add_u32 s31, s32, {base + (mt//2)*4096}")
                a(f"buffer_load_dwordx2 v[{reg+2*mt}:{reg+2*mt+1}], v21, s[8:11], s31 offen offset:{(mt%2)*2048} sc1"); vm.issue("x")
            return (lambda: state["done"] >= 4, fn)
        if not last:
            for mt in range(5): self.vq.append(xl(X1, XRr, mt))
            for mt in range(5): self.vq.append(xl(Y, Yr, mt))
        f = [f"s_mul_i32 s32, s44, {TB}", "s_mul_i32 s33, s45, 10240", "s_add_u32 s32, s32, s33", "s_lshr_b32 s33, s3, 1", "s_lshl_b32 s33, s33, 8",
             "s_and_b32 s34, s3, 1", "s_lshl_b32 s34, s34, 3", "s_add_u32 s33, s33, s34",
             "s_add_u32 s32, s32, s33",
             "s_mul_i32 s34, s3, 9216", f"s_add_u32 s34, s34, {RB}", "v_add_u32 v104, s34, v2"]
        for n in range(1, 4):
            f += [f"s_add_u32 s34, s3, {n}", "s_and_b32 s34, s34, 3", "s_mul_i32 s34, s34, 9216", f"s_add_u32 s34, s34, {RB + (n-1)*3072}",
                  f"v_add_u32 v{104+n}, s34, v2"]
        for j in range(12):
            if j == 1:
                self.poll_check("s36", 18, 0xff00); state["parts"] = 2
                self.fq.extend(f)
            if j == 3: self.poll_issue("s36", 18)
            if j == 4:
                self.flush_fill()
                self.poll_check("s36", 18, 0xff0000); state["parts"] = 3
            self.ensure(f"K{j}", 4)
            if not last: self.ensure(f"D{j}", 5)
            vm.wait(f"D{j}")
            vm.wait(f"K{j}")
            if j in (0, 4, 8): st(f"K{j}")
            k = 0
            for n in range(4):
                r = hslot(j) + n * 4
                for mt in range(5):
                    acc = ACC2 + (n * 5 + mt) * 4
                    accs = f"v[{acc}:{acc+3}]"
                    i = j * 5 + mt
                    a(f"v_mfma_f32_16x16x32_bf16 {accs}, a[{4*i}:{4*i+3}], v[{r}:{r+3}], {'0' if j == 0 else accs}")
                    k += 1
                    if k == 20: state["done"] = j
                    if j == 0 and k == 14:
                        vm.wait("h2"); self.flag_store("s29", 64); state["free"] = True
                    elif k % 4 == 1 or k % 8 == 3: self.vslot(1)
                    else: self.fill(4)
        self.vslot(100)
        assert not self.vq
        st("kloop")
        HR0 = RING0
        for rnd, mts in enumerate(([0, 1, 2], [3, 4])):
            if rnd == 1: a("s_barrier")
            for n in range(1, 4):
                for k, mt in enumerate(mts):
                    acc = ACC2 + (n * 5 + mt) * 4
                    a(f"ds_write_b128 v{104+n}, v[{acc}:{acc+3}] offset:{k*1024}")
            a("s_waitcnt lgkmcnt(0)\ns_barrier")
            for n in range(3):
                for k, mt in enumerate(mts):
                    r = HR0 + (n * 3 + k) * 4
                    a(f"ds_read_b128 v[{r}:{r+3}], v104 offset:{n*3072 + k*1024}")
            a("s_waitcnt lgkmcnt(0)")
            for n in range(3):
                for k, mt in enumerate(mts):
                    r = HR0 + (n * 3 + k) * 4
                    acc = ACC2 + mt * 4
                    a(f"v_pk_add_f32 v[{acc}:{acc+1}], v[{acc}:{acc+1}], v[{r}:{r+1}]")
                    a(f"v_pk_add_f32 v[{acc+2}:{acc+3}], v[{acc+2}:{acc+3}], v[{r+2}:{r+3}]")
        lg.q = []
        if last:
            for i in range(10): a(f"v_accvgpr_read_b32 v{XRr+i}, a{240+i}")
        vm.wait("x")
        st("reduced")
        A = lambda i: f"v[{ACC2+2*i}:{ACC2+2*i+1}]"
        U, Pk, T = 48, 68, 80
        for i in range(10):
            a(f"v_lshlrev_b32 v{U+2*i}, 16, v{XRr+i}")
            a(f"v_and_b32 v{U+2*i+1}, s39, v{XRr+i}")
        for i in range(10): a(f"v_pk_add_f32 {A(i)}, {A(i)}, v[{U+2*i}:{U+2*i+1}]")
        for i in range(10): a(f"v_cvt_pk_bf16_f32 v{Pk+i}, v{ACC2+2*i}, v{ACC2+2*i+1}")
        if last:
            a(f"""
    v_mul_u32_u24 v23, 2560, v19
    v_lshl_add_u32 v23, v20, 3, v23
    s_mul_i32 s31, s44, {64*1280}
    s_mul_i32 s33, s33, 160
    s_add_u32 s31, s31, s33
    s_mul_i32 s33, s45, 160
    s_add_u32 s31, s31, s33
    """)
            for mt in range(5):
                a(f"buffer_store_dwordx2 v[{Pk+2*mt}:{Pk+2*mt+1}], v23, s[12:15], s31 offen offset:{32*mt}")
            return
        def xsum(v0, v1, t0, t1):
            a(f"""
    v_mov_b32 v{t0}, v{v0}
    v_mov_b32 v{t1}, v{v1}
    v_permlane16_swap_b32 v{v0}, v{t0}
    v_permlane16_swap_b32 v{v1}, v{t1}
    v_pk_add_f32 v[{v0}:{v1}], v[{v0}:{v1}], v[{t0}:{t1}]
    v_mov_b32 v{t0}, v{v0}
    v_mov_b32 v{t1}, v{v1}
    v_permlane32_swap_b32 v{v0}, v{t0}
    v_permlane32_swap_b32 v{v1}, v{t1}
    v_pk_add_f32 v[{v0}:{v1}], v[{v0}:{v1}], v[{t0}:{t1}]
    """)
        def stats_partial(sreg):
            a(f"v_pk_add_f32 v[12:13], {A(0)}, {A(1)}")
            a(f"v_pk_mul_f32 v[14:15], {A(0)}, {A(0)}")
            for i in range(1, 10):
                if i >= 2: a(f"v_pk_add_f32 v[12:13], v[12:13], {A(i)}")
                a(f"v_pk_fma_f32 v[14:15], {A(i)}, {A(i)}, v[14:15]")
            a("v_add_f32 v12, v12, v13\nv_add_f32 v13, v14, v15")
            xsum(12, 13, 14, 15)
            a("s_mov_b64 exec, 0xffff")
            self.dstore([f"buffer_store_dwordx2 v[12:13], v2, s[8:11], {sreg} offen"])
            a("s_mov_b64 exec, -1")
        def unpack_A():
            for i in range(10):
                a(f"v_lshlrev_b32 v{ACC2+2*i}, 16, v{Pk+i}")
                a(f"v_and_b32 v{ACC2+2*i+1}, s39, v{Pk+i}")
        a(f"""
    s_lshl_b32 s30, s44, 12
    s_lshl_b32 s31, s3, 10
    s_add_u32 s31, s31, s30
    s_add_u32 s31, s31, {ST2}
    s_lshr_b32 s34, s45, 1
    s_lshl_b32 s34, s34, 8
    s_and_b32 s35, s45, 1
    s_lshl_b32 s35, s35, 3
    s_add_u32 s34, s34, s35
    s_add_u32 s36, s31, s34
    """)
        unpack_A()
        stats_partial("s36")
        a(f"s_mov_b32 s35, {SPIN}")
        for i in range(10):
            a(f"v_lshlrev_b32 v{U+2*i}, 16, v{Yr+i}")
            a(f"v_and_b32 v{U+2*i+1}, s39, v{Yr+i}")
        L0 = a.label("g2poll"); L1 = a.label("g2ok")
        a(f"""
{L0}:
    buffer_load_dwordx4 v[12:15], v2, s[8:11], s31 offen sc1
    s_waitcnt vmcnt(0)
    v_max_u32 v17, v13, v15
    v_cmp_eq_u32 vcc, -1, v17
    s_cbranch_vccz {L1}
    s_sub_u32 s35, s35, 1
    s_cbranch_scc0 {L0}
{L1}:
    v_pk_add_f32 v[12:13], v[12:13], v[14:15]
    """)
        vm.q = []
        st("polled")
        xsum(12, 13, 14, 15)
        ln_stats(a, 12, 13, 16, 18)
        for i in range(10):
            a(f"v_pk_add_f32 v[{T+2*i}:{T+2*i+1}], {A(i)}, v[16:17] op_sel_hi:[1,0] neg_lo:[0,1] neg_hi:[0,1]")
        for i in range(10):
            a(f"v_pk_mul_f32 v[{U+2*i}:{U+2*i+1}], v[{U+2*i}:{U+2*i+1}], v[18:19] op_sel_hi:[1,0]")
        for i in range(10):
            a(f"v_pk_fma_f32 {A(i)}, v[{T+2*i}:{T+2*i+1}], v[{U+2*i}:{U+2*i+1}], {A(i)}")
        for i in range(10):
            a(f"v_cvt_pk_bf16_f32 v{Pk+i}, v{ACC2+2*i}, v{ACC2+2*i+1}")
        l = []
        for mt in range(5):
            if mt % 2 == 0: l.append(f"s_add_u32 s31, s32, {X3 + (mt//2)*4096}")
            l.append(f"buffer_store_dwordx2 v[{Pk+2*mt}:{Pk+2*mt+1}], v21, s[8:11], s31 offen offset:{(mt%2)*2048}"); vm.issue("x3")
        self.dstore(l)
        a(f"""
    s_lshl_b32 s29, s44, 7
    s_add_u32 s29, s29, {F3}
    s_lshl_b32 s34, s45, 4
    s_lshl_b32 s35, s3, 2
    s_add_u32 s34, s34, s35
    v_mov_b32 v8, s34
    s_lshl_b32 s36, s24, 7
    s_add_u32 s36, s36, {F3}
    s_lshl_b32 s34, s45, 9
    s_add_u32 s30, s30, s34
    s_add_u32 s30, s30, s33
    s_add_u32 s30, s30, {ST3}
    """)
        for i in range(10): a(f"v_accvgpr_write_b32 a{240+i}, v{Pk+i}")
        unpack_A()
        vm.wait("x3")
        st("x3drained")
        self.flag_store("s29", 0)
        stats_partial("s30"); vm.issue("sts")
        self.poll_issue("s36", 18)
        self.poll_check("s36", 18, 0xffffffff)
        st("x3ok")

def mega_kernel(kidx=2):
    a = Asm()
    a.uid = 1000
    st = Stamps(a, kidx)
    m = Mega(st)
    m.vm.maxn = 63
    a("s_cmp_ge_u32 s2, 256\ns_cbranch_scc1 L_mega_end")
    st("start")
    m.ids()
    m.front()
    sts = [st]
    for layer in range(2):
        if DIAG_ON(): sts[-1].stash(253 + layer)
        sts.append(Stamps(a, kidx + 1 + layer))
        m.st = sts[-1]
        m.st("lstart")
        m.gemm1(layer)
        m.gemm2(layer)
    m.st("end")
    if DIAG_ON():
        a("s_waitcnt vmcnt(0)"); m.st("drained"); sts[0].unstash(253); sts[1].unstash(254); m.st.flush()
        a("""
    s_lshl_b32 s4, s2, 3
    s_add_u32 s4, s4, s3
    s_cmp_lg_u32 s4, 0
    s_cbranch_scc1 L_mega_end
    s_load_dwordx2 s[4:5], s[0:1], 88
    v_accvgpr_read_b32 v20, a253
    v_accvgpr_read_b32 v21, a254
    s_nop 1
    """)
        sel = [(20, 0), (20, 6), (20, 10), (20, 14), (20, 18), (21, 12), (21, 18), (21, 30), (21, 38)]
        for i, (v, l) in enumerate(sel): a(f"v_readlane_b32 s6, v{v}, {l}\ns_nop 1\nv_mov_b32 v{4+i}, s6")
        a("""
    v_mov_b32 v13, s60
    v_mov_b32 v14, s78
    v_mov_b32 v15, s84
    v_mov_b32 v0, 0
    s_waitcnt lgkmcnt(0)
    s_mov_b64 exec, 1
    global_load_dwordx4 v[16:19], v0, s[4:5] offset:-512
    s_waitcnt vmcnt(0)
    global_store_dwordx4 v0, v[16:19], s[4:5]
    global_store_dwordx4 v0, v[4:7], s[4:5] offset:16
    global_store_dwordx4 v0, v[8:11], s[4:5] offset:32
    global_store_dwordx4 v0, v[12:15], s[4:5] offset:48
    """)
    a("L_mega_end:\ns_endpgm")
    for b in m.tail_blocks: a(b)
    a("L_mega_last:\ns_endpgm")
    return a
```

```python
from common import *
from collections import deque
import struct, math

def f2u(x): return struct.unpack("<I", struct.pack("<f", x))[0]
GC0 = -2.0 * math.sqrt(2.0 / math.pi) * math.log2(math.e)
GC1 = GC0 * 0.044715

GA, UA = 0, 61568
CSF = 123136
RB = CSF + 3072
GEMM_LDS = 163840
RING = 12
NMAIN = 40 - RING
ACC1 = 48
TMP = 144
RING0 = 160
ACC2 = 24
F1 = FL
F3 = FL + 32768
XID = FL + 40960
SH = FL + 57344
GO = FL + 58368
SPIN = 0x40000
CA = 110592
CWS = 13312
CONV_W = 15
XSKIP = 2

def cost(s):
    op = s.split()[0]
    if op.startswith(("v_exp", "v_rcp", "v_sqrt", "v_swap", "v_permlane")): return 8
    return 4

def hslot(j): return (RING0 + (j % 9) * 16) if (j % 9) < 6 else (112 + ((j % 9) - 6) * 16)

import os
DETAIL = os.environ.get('DETAIL', '')
class Mega:
    def __init__(self, st):
        self.a = st.a
        self.st = st
        self.vm = Cnt(self.a, "vmcnt", 63)
        self.lg = Cnt(self.a, "lgkmcnt", 15)
        self.tail_blocks = []
        self.vq = deque()
        self.fq = deque()

    def vslot(self, n=1):
        done = 0
        i = 0
        while done < n and i < len(self.vq):
            ok, fn = self.vq[i]
            if ok():
                del self.vq[i]; fn(); done += 1
            else:
                i += 1
        return done
    def ensure(self, tag, n):
        while self.vm.count.get(tag, 0) < n:
            assert self.vslot(1) == 1, tag
    def fill(self, budget):
        while self.fq:
            x = self.fq[0]
            c = 4 if callable(x) else cost(x)
            if c > budget: break
            self.fq.popleft()
            if callable(x): x()
            else: self.a(x)
            budget -= c
    def flush_fill(self):
        self.fill(1 << 30)

    def ids(self):
        a = self.a
        a(f"""
    s_load_dwordx2 s[8:9], s[0:1], 96       ; ws
    s_load_dwordx4 s[4:7], s[0:1], 32
    s_load_dwordx4 s[40:43], s[0:1], 56
    s_load_dwordx2 s[12:13], s[0:1], 80     ; out
    s_load_dwordx2 s[32:33], s[0:1], 72     ; w_down
    v_lshrrev_b32 v2, 6, v0
    v_and_b32 v1, 63, v0
    v_readfirstlane_b32 s3, v2
    s_and_b32 s20, s2, 7
    s_lshr_b32 s21, s2, 3                   ; m
    v_lshlrev_b32 v2, 4, v1                 ; lane*16
    s_mov_b32 s39, 0xffff0000
    s_lshl_b32 s24, s20, 2
    s_add_u32 s24, s24, s3                  ; tb1 = 4G + w
    v_lshrrev_b32 v3, 5, v1                 ; hf
    v_and_b32 v4, 31, v1                    ; c
    v_lshlrev_b32 v6, 4, v4
    v_lshl_add_u32 v5, v3, 10, v6
    v_lshl_add_u32 v6, v3, 11, v6
    v_bfe_u32 v10, v1, 2, 2
    v_lshl_add_u32 v10, v3, 3, v10
    v_mul_u32_u24 v10, 96, v10
    v_and_b32 v11, 3, v1
    v_lshl_add_u32 v10, v11, 3, v10
    v_bfe_u32 v11, v1, 4, 1
    v_mul_u32_u24 v11, {UA}, v11
    v_add_u32 v10, v10, v11
    v_lshlrev_b32 v11, 2, v4                ; (lane&31)*4
    s_lshr_b32 s44, s21, 3
    s_lshl_b32 s45, s20, 2
    s_add_u32 s44, s44, s45                 ; tb2
    s_and_b32 s45, s21, 7                   ; cb2
    s_mov_b32 s38, 0
    """)

    def wread(self, ks, mt, dst, tag):
        if ks == 40:
            self.a(f"ds_read_b128 v[{dst}:{dst+3}], v7 offset:{mt*1024}"); self.lg.issue(tag)
            return
        for h in range(2):
            self.a(f"ds_read_b64_tr_b16 v[{dst+2*h}:{dst+2*h+1}], v10 offset:{ks*1536 + mt*32 + h*384}"); self.lg.issue(tag)

    def epi_ops(self, mt, par, packed):
        acc = ACC1 + (mt * 2 + par) * 16
        T = TMP + 8 * par
        o = []
        if packed:
            P = lambda i: f"v[{acc+2*i}:{acc+2*i+1}]"
            Tm = lambda i: f"v[{T+2*i}:{T+2*i+1}]"
            p = par
            for i in range(4): o.append(f"v_pk_mul_f32 {Tm(i)}, {P(i)}, {P(i)}")
            for i in range(4): o.append(f"v_pk_fma_f32 {Tm(i)}, {Tm(i)}, v[14:15], v[12:13] op_sel:[0,{p},{p}] op_sel_hi:[1,{p},{p}]")
            for i in range(4): o.append(f"v_pk_mul_f32 {Tm(i)}, {Tm(i)}, {P(i)}")
            for i in range(8): o.append(f"v_exp_f32 v{T+i}, v{T+i}")
            for i in range(4): o.append(f"v_pk_mul_f32 {P(i)}, {P(i)}, {P(i+4)}")
            for i in range(4): o.append(f"v_pk_fma_f32 {Tm(i)}, {Tm(i)}, v[16:17], v[16:17] op_sel:[0,{p},{p}] op_sel_hi:[1,{p},{p}]")
            for i in range(8): o.append(f"v_rcp_f32 v{T+i}, v{T+i}")
            for i in range(4): o.append(f"v_pk_mul_f32 {P(i)}, {P(i)}, {Tm(i)}")
        else:
            for i in range(8): o.append(f"v_mul_f32 v{T+i}, v{acc+i}, v{acc+i}")
            for i in range(8): o.append(f"v_fma_f32 v{T+i}, v{T+i}, v{14+par}, v{12+par}")
            for i in range(8): o.append(f"v_mul_f32 v{T+i}, v{T+i}, v{acc+i}")
            for i in range(8):
                o.append(f"v_exp_f32 v{T+i}, v{T+i}")
                o.append(f"v_mul_f32 v{acc+i}, v{acc+i}, v{acc+8+i}")
            for i in range(8): o.append(f"v_fma_f32 v{T+i}, v{T+i}, v{16+par}, v{16+par}")
            for i in range(8): o.append(f"v_rcp_f32 v{T+i}, v{T+i}")
            for i in range(8): o.append(f"v_mul_f32 v{acc+i}, v{acc+i}, v{T+i}")
        for i in range(4): o.append(f"v_cvt_pk_bf16_f32 v{acc+8+i}, v{acc+2*i}, v{acc+2*i+1}")
        def store():
            ins = f"buffer_store_dwordx4 v[{acc+8}:{acc+11}], v2, s[8:11], s{27+par} offen offset:{mt*1024}"
            if self.layer == 0: self.a(ins + " sc1")
            else: self.dstore([ins])
            self.vm.issue(f"h{mt}")
        o.append(store)
        return o

    def dstore(self, instrs):
        a = self.a
        Ls, Lb = a.label("wt"), a.label("wb")
        a(f"s_cmp_eq_u32 s38, 0\ns_cbranch_scc1 {Ls}")
        for i in instrs: a(i)
        a(f"{Lb}:")
        self.tail_blocks.append(f"{Ls}:\n" + "\n".join(i + (" sc1" if i.startswith("buffer_store") else "") for i in instrs) + f"\ns_nop 1\ns_branch {Lb}\n")

    def flag_store(self, sreg, off):
        self.a("s_mov_b64 exec, 1")
        self.dstore([f"buffer_store_dword v9, v8, s[8:11], {sreg} offen offset:{off}"])
        self.a("s_mov_b64 exec, -1")
        self.vm.issue("flag")

    def poll_issue(self, sreg, dst):
        self.a(f"buffer_load_dword v{dst}, v11, s[8:11], {sreg} offen sc1"); self.vm.issue("poll")
    def poll_check(self, sreg, dst, mask):
        a = self.a
        self.vm.wait("poll")
        Lr, Lb = a.label("spin"), a.label("back")
        a(f"""
    v_cmp_ne_u32 vcc, 0, v{dst}
    s_and_b32 s34, vcc_lo, {hex(mask)}
    s_cmp_lg_u32 s34, {hex(mask)}
    s_cbranch_scc1 {Lr}
{Lb}:
    """)
        self.tail_blocks.append(f"""
{Lr}:
    s_mov_b32 s35, {SPIN}
{Lr}_l:
    buffer_load_dword v{dst}, v11, s[8:11], {sreg} offen sc1
    s_waitcnt vmcnt(0)
    v_cmp_ne_u32 vcc, 0, v{dst}
    s_nop 1
    s_and_b32 s34, vcc_lo, {hex(mask)}
    s_cmp_eq_u32 s34, {hex(mask)}
    s_cbranch_scc1 {Lb}
    s_sub_u32 s35, s35, 1
    s_cbranch_scc0 {Lr}_l
    s_branch {Lb}
""")

    def w1dma(self, i):
        a = self.a
        r, u = i // 3, i % 3
        a(f"s_add_u32 m0, s31, {r*6144 + u*1024}")
        a(f"s_add_u32 s33, s30, {r*64*3072}" if u == 0 else "s_nop 0")
        a(f"buffer_load_dwordx4 v{12+u}, s[16:19], s33 offen lds"); self.vm.issue("W")
    def wdl(self, j, mt):
        a = self.a
        i = j * 5 + mt
        if mt == 0:
            a(f"s_add_u32 s47, s46, s{97 + j%4}")
            if j >= 4: a(f"s_add_u32 s47, s47, {(j//4)*20480}")
        if mt < 4: a(f"buffer_load_dwordx4 a[{4*i}:{4*i+3}], v2, s[8:11], s47 offen offset:{mt*1024} sc1")
        else: a(f"buffer_load_dwordx4 a[{4*i}:{4*i+3}], v0, s[8:11], s47 offen sc1")
        self.vm.issue(f"D{j}")

    def front(self):
        a, vm, lg, st = self.a, self.vm, self.lg, self.st
        a(f"""
    s_lshr_b32 s27, s3, 1
    s_mul_i32 s30, s27, {32*3072}
    s_mul_i32 s31, s21, 96
    s_add_u32 s30, s30, s31
    s_mul_i32 s31, s27, 3072
    s_and_b32 s27, s3, 1
    s_mul_i32 s27, s27, {UA}
    s_add_u32 s31, s31, s27
    s_mul_i32 s46, s45, 245760
    s_mul_i32 s47, s3, 61440
    s_add_u32 s46, s46, s47
    s_add_u32 s46, s46, {WDL}
    v_add_u32 v0, 4096, v2
    """)
        for u in range(3):
            a(f"v_add_u32 v15, {64*u}, v1\nv_mul_u32_u24 v16, 10923, v15\nv_lshrrev_b32 v16, 16, v16\nv_mul_u32_u24 v16, 2976, v16\nv_lshl_add_u32 v{12+u}, v15, 4, v16")
        for jj in range(4):
            a(f"s_lshr_b32 s27, s21, 3\ns_add_u32 s27, s27, {jj}\ns_and_b32 s27, s27, 3\ns_mul_i32 s{97+jj}, s27, 5120")
        a(f"""
    s_getreg_b32 s37, hwreg(HW_REG_XCC_ID)
    s_lshl_b32 s22, s20, 11
    s_and_b32 s37, s37, 15
    s_add_u32 s22, s22, {XID}
    s_add_u32 s37, s37, 1
    s_lshl_b32 s27, s21, 6
    s_lshl_b32 s28, s3, 2
    s_add_u32 s27, s27, s28
    v_mov_b32 v8, s27
    v_mov_b32 v9, s37
    s_waitcnt lgkmcnt(0)
    s_and_b32 s9, s9, 0xffff
    s_mov_b32 s10, {WS_USED}
    s_mov_b32 s11, 0x20000
    s_bitcmp1_b32 s3, 0
    s_cselect_b32 s16, s42, s40
    s_cselect_b32 s17, s43, s41
    s_and_b32 s17, s17, 0xffff
    s_mov_b32 s18, {D*F*2}
    s_mov_b32 s19, 0x20000
    s_and_b32 s13, s13, 0xffff
    s_mov_b32 s14, {ACT_BYTES}
    s_mov_b32 s15, 0x20000
    s_lshl_b32 s25, s20, 2
    s_sub_u32 s25, s21, s25
    s_and_b32 s25, s25, 31
    s_cmp_lt_u32 s25, 12
    s_cbranch_scc1 L_idle
    s_mul_i32 s40, s20, 20
    s_add_u32 s40, s40, s25
    s_sub_u32 s40, s40, 12                  ; g
    s_lshl_b32 s41, s40, 2
    s_add_u32 s41, s41, s3                  ; d
    s_lshl_b32 s42, s41, 13
    s_add_u32 s42, s42, {XT}
    s_lshl_b32 s25, s41, 12
    s_mul_i32 s26, s3, {CWS}
    s_add_u32 s26, s26, {CA}
    """)
        a(f"s_add_u32 m0, s26, 4288")
        srd(a, 32, 4, D * S * 2)
        st("ids")
        for i in range(4): a(f"buffer_load_dwordx4 v2, s[8:11], s42 offen offset:{1024*i} lds"); vm.issue("x")
        a(f"s_mov_b32 m0, s26\ns_add_u32 s43, s42, {XT_CP}")
        for i in range(4): a(f"buffer_load_dwordx4 v2, s[8:11], s43 offen offset:{1024*i} lds"); vm.issue("x")
        a(f"s_add_u32 s27, s26, {8704+512}\ns_mov_b32 m0, s27\ns_add_u32 s4, s4, s25\ns_addc_u32 s5, s5, 0")
        for i in range(4): a(f"buffer_load_dwordx4 v2, s[32:35], s25 offen offset:{1024*i} lds"); vm.issue("x")
        a(f"""
    s_load_dword s28, s[4:5], 0
    s_lshr_b32 s29, s41, 1
    s_lshl_b32 s29, s29, 2
    s_add_u32 s6, s6, s29
    s_addc_u32 s7, s7, 0
    s_load_dword s29, s[6:7], 0
    s_mov_b64 exec, 1
    buffer_store_dword v9, v8, s[8:11], s22 offen sc1
    s_mov_b64 exec, -1
    """)
        vm.issue("xid")
        FB, GB, AC, QR = 64, 128, 32, 192
        a(f"""
    v_and_b32 v28, 15, v1                   ; b / a
    v_lshrrev_b32 v29, 4, v1                ; q
    v_mov_b32 v24, 0
    v_mov_b32 v25, 0
    v_mov_b32 v26, 0
    v_mov_b32 v27, 0
    v_lshl_add_u32 v15, v1, 3, s26
    ds_write_b64 v15, v[24:25] offset:8704
    v_lshrrev_b32 v15, 1, v1
    v_mul_u32_u24 v15, 4288, v15
    v_and_b32 v16, 1, v1
    v_lshl_add_u32 v15, v16, 4, v15
    v_add_u32 v15, s26, v15
    s_mov_b64 exec, 15
    ds_write_b128 v15, v[24:27] offset:4096
    s_mov_b64 exec, -1
    ; F bases: 28 + 16 q - 4 (b&7) + (b>=8 ? 4288 : 0) + 1024 (3 - i)
    v_and_b32 v15, 7, v28
    v_lshlrev_b32 v15, 2, v15
    v_lshlrev_b32 v16, 4, v29
    v_sub_u32 v15, v16, v15
    v_lshrrev_b32 v17, 3, v28
    v_mul_u32_u24 v17, 4288, v17
    v_add3_u32 v15, v15, v17, s26
    v_add_u32 v19, 28, v15
    v_add_u32 v18, {28+1024}, v15
    v_add_u32 v17, {28+2048}, v15
    v_add_u32 v16, {28+3072}, v15
    v_lshlrev_b32 v20, 5, v28
    v_lshl_add_u32 v20, v29, 4, v20
    v_add_u32 v20, s26, v20
    s_lshl_b32 s43, s3, 6
    s_add_u32 s43, s43, s26
    v_lshlrev_b32 v21, 11, v3
    v_lshl_add_u32 v21, v28, 4, v21
    v_and_b32 v22, 1, v29
    v_lshl_add_u32 v21, v22, 3, v21
    v_add_u32 v21, s43, v21
    v_lshrrev_b32 v22, 2, v28
    v_mul_u32_u24 v22, {CWS+64}, v22
    v_and_b32 v23, 3, v28
    v_lshl_add_u32 v22, v23, 3, v22
    v_lshl_add_u32 v22, v29, 5, v22
    s_lshl_b32 s43, s3, 7
    s_add_u32 s43, s43, {CA}
    v_add_u32 v22, s43, v22
    s_lshl_b32 s42, s3, 10
    s_add_u32 s42, s42, {MR}
    v_mul_u32_u24 v23, {TB}, v3
    v_lshl_add_u32 v23, v4, 4, v23
    s_mul_i32 s43, s3, {2*TB}
    s_lshl_b32 s25, s40, 9
    s_add_u32 s43, s43, s25
    s_waitcnt lgkmcnt(0)
    ; h'[0] = bf16(h[0] + D[d])
    s_lshl_b32 s28, s28, 16
    s_and_b32 s25, s29, 0xffff0000
    s_lshl_b32 s29, s29, 16
    s_bitcmp1_b32 s41, 0
    s_cselect_b32 s29, s25, s29
    v_mov_b32 v24, s28
    v_add_f32 v24, s29, v24
    v_cvt_pk_bf16_f32 v24, v24, v24
    v_mov_b32 v25, s27
    """)
        st("issued")
        vm.wait("x")
        st("landed")
        a("s_mov_b64 exec, 1\nds_write_b16 v25, v24\ns_mov_b64 exec, -1")
        def reads(rho):
            l = []
            fb, gb = FB + (rho & 1) * 32, GB + (rho & 1) * 32
            for k in range(8):
                sg = k
                o = (512 * (1 - (sg & 1)) + 448 - 64 * rho) // 4
                for h in range(2):
                    l.append(f"ds_read2_b32 v[{fb+4*sg+2*h}:{fb+4*sg+2*h+1}], v{16 + sg//2} offset0:{o+2*h} offset1:{o+2*h+1}")
                l.append(f"ds_read_b128 v[{gb+4*k}:{gb+4*k+3}], v20 offset:{8704 + 480 - 64*(rho - 8*k)}")
            return l
        for k, x in enumerate(reads(0)):
            if k in (10, 20): a("s_waitcnt lgkmcnt(3)")
            a(x)
        vq = deque()
        def qn(j, k):
            r = QR + 16 * k + 4 * j
            if k == 0:
                a(f"s_add_u32 s25, s43, {X1 + j*8*TB}")
                a(f"buffer_load_dwordx4 v[{r}:{r+3}], v23, s[8:11], s25 offen")
            else:
                a(f"s_add_u32 s25, s42, {j*4096}")
                a(f"buffer_load_dwordx4 v[{r}:{r+3}], v2, s[8:11], s25 offen")
            vm.issue("qn")
        for k in range(2):
            for j in range(4): vq.append(lambda j=j, k=k: qn(j, k))
        for i in range(CONV_W): vq.append(lambda i=i: self.w1dma(i))
        NPER = [5, 5, 3, 3, 3, 2, 2, 0]
        assert sum(NPER) == len(vq)
        first = [True] * 8
        for rho in range(8):
            a("s_waitcnt lgkmcnt(0)")
            if rho == 4: st("class4")
            rd = deque(reads(rho + 1)) if rho < 7 else deque()
            nper = NPER[rho]
            slots = [int(36 * (k + 0.5) / nper) for k in range(nper)]
            n = 0
            for sg in range(8):
                for k in range(0, 8 - sg):
                    T = sg + k
                    acc = f"v[{AC+4*T}:{AC+4*T+3}]"
                    fr, gr = FB + (rho & 1) * 32 + 4 * sg, GB + (rho & 1) * 32 + 4 * k
                    a(f"v_mfma_f32_16x16x32_bf16 {acc}, v[{fr}:{fr+3}], v[{gr}:{gr+3}], {'0' if first[T] else acc}")
                    first[T] = False
                    if n in slots and vq: vq.popleft()()
                    elif rd and n < 32: a(rd.popleft())
                    n += 1
            while rd: a(rd.popleft())
        assert not vq
        st("mfma")
        for T in range(8):
            a(f"v_cvt_pk_bf16_f32 v{FB+2*T}, v{AC+4*T}, v{AC+4*T+1}")
            a(f"v_cvt_pk_bf16_f32 v{FB+2*T+1}, v{AC+4*T+2}, v{AC+4*T+3}")
            a(f"ds_write_b64 v21, v[{FB+2*T}:{FB+2*T+1}] offset:{256*T}")
        a("s_waitcnt lgkmcnt(0)\ns_barrier")
        for j in range(4):
            for par in range(2):
                r = AC + 4 * j + 2 * par
                a(f"ds_read_b64_tr_b16 v[{r}:{r+1}], v22 offset:{512*j + 2048*par}")
        vm.wait("qn")
        for j in range(4):
            a(f"s_waitcnt lgkmcnt({6-2*j})")
            o = AC + 16 + 4 * j
            for par in range(2):
                r = QR + 4 * j + 2 * par
                mr = f"v[{QR+16+4*j+2*par}:{QR+17+4*j+2*par}]"
                y = AC + 4 * j + 2 * par
                for h in range(2):
                    t = FB + 8 * h
                    a(f"v_lshlrev_b32 v{t}, 16, v{r+h}")
                    a(f"v_and_b32 v{t+1}, s39, v{r+h}")
                    a(f"v_lshlrev_b32 v{t+4}, 16, v{y+h}")
                    a(f"v_and_b32 v{t+5}, s39, v{y+h}")
                    a(f"v_pk_add_f32 v[{t+2}:{t+3}], v[{t}:{t+1}], {mr} op_sel_hi:[1,0] neg_lo:[0,1] neg_hi:[0,1]")
                    a(f"v_pk_mul_f32 v[{t+4}:{t+5}], v[{t+4}:{t+5}], {mr} op_sel:[0,1] op_sel_hi:[1,1]")
                    a(f"v_pk_fma_f32 v[{t}:{t+1}], v[{t+2}:{t+3}], v[{t+4}:{t+5}], v[{t}:{t+1}]")
                    a(f"v_cvt_pk_bf16_f32 v{o+2*par+h}, v{t}, v{t+1}")
            a(f"s_add_u32 s25, s43, {X1 + j*8*TB}")
            a(f"buffer_store_dwordx4 v[{o}:{o+3}], v23, s[8:11], s25 offen sc1"); vm.issue("o")
        for j in range(4):
            a(f"s_add_u32 s25, s43, {Y + j*8*TB}")
            a(f"buffer_store_dwordx4 v[{AC+4*j}:{AC+4*j+3}], v23, s[8:11], s25 offen sc1"); vm.issue("o")
        st("stored")
        vm.wait("o")
        a("s_barrier")
        st("drained")
        a("s_mov_b32 s101, 0\ns_branch L_arrive")
        a(f"""
L_idle:
    s_mov_b64 exec, 1
    buffer_store_dword v9, v8, s[8:11], s22 offen sc1
    s_mov_b64 exec, -1
    s_and_b32 s33, s33, 0xffff
    s_mov_b32 s34, {D*F*2}
    s_mov_b32 s35, 0x20000
    s_mul_i32 s40, s20, 12
    s_add_u32 s40, s40, s25
    s_lshl_b32 s40, s40, 2
    s_add_u32 s40, s40, s3
    s_lshl_b32 s26, s3, 12
    s_add_u32 s26, s26, {RB}
    v_lshrrev_b32 v16, 2, v4
    v_lshlrev_b32 v16, 9, v16
    v_lshl_add_u32 v16, v3, 8, v16
    v_and_b32 v17, 3, v4
    v_lshl_add_u32 v16, v17, 6, v16
    v_add_u32 v16, s26, v16
    v_add_u32 v17, s26, v2
    s_mov_b32 s28, 0x05040100
    s_mov_b32 s29, 0x07060302
    s_lshr_b32 s27, s40, 1
    s_mul_i32 s27, s27, 10240
    v_lshlrev_b32 v15, 7, v1
    buffer_load_dword v80, v15, s[16:19], s27 offen
    s_add_u32 s27, s27, 8192
    s_mov_b64 exec, 0xffff
    buffer_load_dword v81, v15, s[16:19], s27 offen
    s_mov_b64 exec, -1
L_relay:
    s_mul_i32 s41, s40, 13108
    s_lshr_b32 s41, s41, 16
    s_mul_i32 s42, s41, 5
    s_sub_u32 s42, s40, s42                 ; strip
    s_mul_i32 s4, s41, {16*1280}
    s_lshl_b32 s5, s42, 8
    s_add_u32 s4, s4, s5
    s_add_u32 s5, s4, {8*1280}
    v_mul_u32_u24 v18, {4*1280}, v3
    v_lshl_add_u32 v18, v4, 3, v18
    """)
        for e in range(8):
            a(f"buffer_load_dwordx2 v[{32+2*e}:{33+2*e}], v18, s[32:35], s{4 + e//4} offen offset:{1280*(e%4)}")
        a(f"""
    ; cb = fb/3 ; P = fb%3 ; dest = (12 (cb>>3) + 4 P + ((cb&7)>>1))*5120 + (cb&1)*512
    s_mul_i32 s43, s41, 43
    s_lshr_b32 s43, s43, 7
    s_mul_i32 s6, s43, 3
    s_sub_u32 s6, s41, s6
    s_lshl_b32 s6, s6, 2
    s_lshr_b32 s7, s43, 3
    s_mul_i32 s7, s7, 12
    s_add_u32 s6, s6, s7
    s_bfe_u32 s7, s43, 0x20001
    s_add_u32 s6, s6, s7
    s_mul_i32 s6, s6, 5120
    s_and_b32 s7, s43, 1
    s_lshl_b32 s7, s7, 9
    s_add_u32 s6, s6, s7
    s_add_u32 s6, s6, {WDL}
    s_lshl_b32 s42, s42, 3
    """)
        for i in range(4):
            a(f"""
    v_add_u32 v19, s42, v3
    v_add_u32 v19, {2*i}, v19
    v_mul_u32_u24 v20, 26, v19
    v_lshrrev_b32 v20, 7, v20               ; cb2 = x/5
    v_mul_u32_u24 v20, {245760 - 5*1024}, v20
    v_lshl_add_u32 v20, v19, 10, v20
    v_lshl_add_u32 v{24+i}, v4, 4, v20
    """)
        a("s_waitcnt vmcnt(0)")
        if DIAG_ON(): a("s_memrealtime s[54:55]")
        for c in range(4):
            o = 48 + c * 4
            for j in range(4):
                lo = 32 + 4 * j + c // 2
                a(f"v_perm_b32 v{o+j}, v{lo+2}, v{lo}, {'s28' if c % 2 == 0 else 's29'}")
            a(f"ds_write_b128 v16, v[{o}:{o+3}] offset:{16*c}")
        for i in range(4): a(f"ds_read_b128 v[{64+4*i}:{67+4*i}], v17 offset:{1024*i}")
        for i in range(4):
            a(f"s_waitcnt lgkmcnt({3-i})")
            a(f"buffer_store_dwordx4 v[{64+4*i}:{67+4*i}], v{24+i}, s[8:11], s6 offen sc1")
        a("""
    s_add_u32 s40, s40, 384
    s_cmp_lt_u32 s40, 480
    s_cbranch_scc1 L_relay
    """)
        if DIAG_ON(): a("s_memrealtime s[56:57]")
        for i in range(6): self.w1dma(i)
        a("s_waitcnt vmcnt(6)\ns_barrier")
        if DIAG_ON(): a("s_memrealtime s[62:63]")
        a(f"""
    s_mov_b32 s101, 1
L_arrive:
    s_cmp_lg_u32 s3, 0
    s_cbranch_scc1 L_arrived
    s_lshl_b32 s25, s20, 7
    s_add_u32 s25, s25, {SH}
    v_mov_b32 v24, 1
    v_mov_b32 v25, 0
    s_mov_b64 exec, 1
    buffer_atomic_add v24, v25, s[8:11], s25 offen sc0 sc1
    s_mov_b64 exec, -1
    s_waitcnt vmcnt(0)
    v_readfirstlane_b32 s25, v24
    s_cmp_lg_u32 s25, 31
    s_cbranch_scc1 L_arrived
    s_lshl_b32 s25, s20, 2
    s_add_u32 s25, s25, {GO}
    v_lshlrev_b32 v25, 7, v1
    v_mov_b32 v24, 1
    s_mov_b64 exec, 0xff
    buffer_store_dword v24, v25, s[8:11], s25 offen sc1
    s_mov_b64 exec, -1
L_arrived:
    s_cmp_eq_u32 s101, 0
    s_cbranch_scc1 L_wrest
    """)
        for i in range(6, CONV_W): self.w1dma(i)
        a("L_wrest:")
        for i in range(CONV_W, 21): self.w1dma(i)
        a("L_join:")
        vm.q = ["?"] * 21
        a(f"""
    v_lshlrev_b32 v9, 4, v11
    buffer_load_dword v9, v9, s[8:11], s22 offen sc1
    s_lshl_b32 s22, s44, 2
    s_add_u32 s22, s22, s3
    s_lshl_b32 s23, s22, 10
    s_add_u32 s23, s23, {ST2 - 8*128}
    v_lshl_add_u32 v23, v1, 7, s23
    s_lshl_b32 s22, s22, 7
    s_add_u32 s22, s22, {F1}
    v_writelane_b32 v23, s22, 2
    s_add_u32 s22, s22, 16384
    v_writelane_b32 v23, s22, 3
    s_lshl_b32 s22, s24, 7
    s_add_u32 s22, s22, {F3}
    v_writelane_b32 v23, s22, 4
    s_lshl_b32 s22, s24, 5
    s_add_u32 s22, s22, s21
    s_lshl_b32 s22, s22, 7
    s_add_u32 s22, s22, {ST1}
    v_writelane_b32 v23, s22, 0
    s_add_u32 s22, s22, {ST3 - ST1}
    v_writelane_b32 v23, s22, 1
    s_mov_b64 exec, 0xff1f
    buffer_load_dword v22, v23, s[8:11], 0 offen
    s_mov_b64 exec, -1
    """)
        for jj in range(4):
            a(f"s_lshr_b32 s22, s21, 3\ns_add_u32 s22, s22, {jj}\ns_and_b32 s22, s22, 3\ns_mul_i32 s{4+jj}, s22, 6144")
        Lw = a.label("go")
        a(f"""
    s_waitcnt vmcnt(1)
    v_cmp_ne_u32 vcc, s37, v9
    s_cmp_eq_u32 vcc_lo, 0
    s_cselect_b32 s38, 1, 0
    s_barrier
    s_cmp_lg_u32 s3, 0
    s_cbranch_scc1 L_cs_early
    s_lshl_b32 s36, s20, 7
    s_add_u32 s36, s36, {GO}
    s_mov_b32 s35, {SPIN}
{Lw}_l:
    buffer_load_dword v18, v11, s[8:11], s36 offen sc1
    s_waitcnt vmcnt(0)
    v_cmp_ne_u32 vcc, 0, v18
    s_and_b32 s34, vcc_lo, 0xff
    s_cmp_eq_u32 s34, 0xff
    s_cbranch_scc1 {Lw}
    s_sleep 2
    s_sub_u32 s35, s35, 1
    s_cbranch_scc0 {Lw}_l
    s_branch {Lw}
L_cs_early:
    """)
        self.colsum(0, NMAIN)
        a(f"{Lw}:")
        st("ready")
        a("s_barrier")
        vm.q = ["?"]
        lg.q = []
        st("go")

    def colsum(self, k0, k1):
        a = self.a
        a("""
    s_lshl_b32 s22, s3, 5
    s_sub_u32 s22, s22, 32
    v_add_u32 v23, s22, v10
    v_and_b32 v16, 15, v1
    v_bfe_u32 v17, v1, 4, 1
    v_cmp_eq_u32 vcc, v16, v17
    v_mov_b32 v17, 0x3f803f80
    """)
        def rd(k):
            b = 24 + 4 * (k % 6)
            for h in range(2): a(f"ds_read_b64_tr_b16 v[{b+2*h}:{b+2*h+1}], v23 offset:{k*1536 + h*384}")
        for k in range(k0, k0 + 5): rd(k)
        a("v_cndmask_b32 v16, 0, v17, vcc\nv_mov_b32 v17, v16\nv_mov_b32 v18, v16\nv_mov_b32 v19, v16")
        for k in range(k0, k1):
            a(f"s_waitcnt lgkmcnt({2*min(4, k1-1-k)})")
            b = 24 + 4 * (k % 6)
            a(f"v_mfma_f32_16x16x32_bf16 a[240:243], v[16:19], v[{b}:{b+3}], {'0' if k == 0 else 'a[240:243]'}")
            if k + 5 < k1: rd(k + 5)

    def gemm1(self, layer):
        a, vm, lg, st = self.a, self.vm, self.lg, self.st
        first = layer == 0
        self.layer = layer
        vm.count = {}
        if DETAIL:
            DET = list(range(int(DETAIL), int(DETAIL) + 7)); st0 = st
            if first: self.st = st = lambda n: None
        XS, HD, ST = (X1, H1, ST1) if first else (X3, H2, ST3)
        sc = "sc1"
        a(f"""
    s_mul_i32 s25, s24, {TB}
    s_add_u32 s25, s25, {XS}
    """)
        state = dict(tnext=0, done=-1)
        def thalf(ks, h):
            r = RING0 + (ks % RING) * 8 + 4 * h
            o = (ks % 2) * 2048 + 512 * h
            def fn():
                a(f"buffer_load_dwordx4 v[{r}:{r+3}], v5, s[8:11], s25 offen offset:{o} {sc}"); vm.issue(f"T{ks}")
                if ks % 2 == 1 and h == 1: a("s_add_u32 s25, s25, 4096")
            return (lambda: state["done"] >= ks - RING, fn)
        def tload():
            ks = state["tnext"]; state["tnext"] += 1
            thalf(ks, 0)[1](); thalf(ks, 1)[1]()
        def stl(i):
            def fn():
                rr = TMP + i * 4
                a(f"buffer_load_dwordx4 v[{rr}:{rr+3}], v6, s[8:11], s26 offen offset:{i*512} sc1"); vm.issue("stl")
            return (lambda: state["done"] >= 20, fn)

        if first:
            a(f"""
    s_mul_i32 s22, s44, {TB}
    s_lshl_b32 s29, s45, 6
    s_add_u32 s22, s22, s29
    s_mul_i32 s29, s3, {40*512}
    s_add_u32 s22, s22, s29
    s_add_u32 s22, s22, {XS}
    v_and_b32 v7, 7, v1
    v_lshlrev_b32 v7, 3, v7
    v_lshrrev_b32 v8, 3, v1
    v_lshl_add_u32 v8, v8, 9, v7
    """)
            for i in range(5):
                a(f"buffer_load_dwordx2 v[{TMP+2*i}:{TMP+2*i+1}], v8, s[8:11], s22 offen sc1"); vm.issue("st")
                if i < 4: a("s_add_u32 s22, s22, 4096")
        for _ in range(6): tload()
        st("issued")
        self.fq.extend([f"s_lshl_b32 s26, s24, 12", f"s_add_u32 s26, s26, {ST}"])
        if True:
            self.post = [f"v_add_u32 v7, {CSF}, v2"]
            self.fq.extend([f"s_mul_i32 s27, s24, {2*96*1024}", "s_mul_i32 s28, s21, 3072", "s_add_u32 s27, s27, s28", f"s_add_u32 s27, s27, {HD}",
                            f"s_add_u32 s28, s27, {96*1024}"])
        if first:
            S, Q, t, u = TMP + 10, TMP + 11, TMP + 12, TMP + 13
            f = [lambda: vm.wait("st")]
            for i in range(10):
                f += [f"v_lshlrev_b32 v{t}, 16, v{TMP+i}", f"v_and_b32 v{u}, s39, v{TMP+i}"]
                if i == 0: f += [f"v_add_f32 v{S}, v{t}, v{u}", f"v_mul_f32 v{Q}, v{t}, v{t}"]
                else: f += [f"v_add_f32 v{S}, v{S}, v{t}", f"v_fmac_f32 v{Q}, v{t}, v{t}", f"v_add_f32 v{S}, v{S}, v{u}"]
                f.append(f"v_fmac_f32 v{Q}, v{u}, v{u}")
            def sts():
                a("s_mov_b32 exec_lo, 0xff\ns_mov_b32 exec_hi, 0xff")
                self.dstore([f"buffer_store_dwordx2 v[{S}:{Q}], v7, s[8:11], s22 offen"])
                a("s_mov_b64 exec, -1"); vm.issue("sts")
            f += ["s_lshl_b32 s22, s44, 12", "s_lshl_b32 s23, s3, 10",
                  f"v_add_f32_dpp v{S}, v{S}, v{S} row_ror:8 row_mask:0xf bank_mask:0xf",
                  f"v_add_f32_dpp v{Q}, v{Q}, v{Q} row_ror:8 row_mask:0xf bank_mask:0xf",
                  "s_add_u32 s22, s22, s23", f"v_mov_b32 v{t}, v{S}", f"v_mov_b32 v{u}, v{Q}", "s_lshl_b32 s23, s45, 6", "s_add_u32 s22, s22, s23",
                  f"v_permlane16_swap_b32 v{S}, v{t}", f"v_permlane16_swap_b32 v{Q}, v{u}",
                  f"s_add_u32 s22, s22, {ST}", "v_lshl_add_u32 v7, v3, 9, v7",
                  f"v_add_f32 v{S}, v{S}, v{t}", f"v_add_f32 v{Q}, v{Q}, v{u}", sts]
            self.fq.extend(f)
        self.fq.extend(self.post)
        tq = [thalf(ks, h) for ks in range(state["tnext"], 40) for h in range(2)]
        k = 2 * (35 - state["tnext"])
        tq = tq[:k] + [stl(i) for i in range(4)] + tq[k:]
        if first:
            xq = [(lambda: True, lambda i=i: self.w1dma(i)) for i in range(21, 30)]
            xq += [(lambda: True, lambda j=j, mt=mt: self.wdl(j, mt)) for j in range(12) for mt in range(5)]
            order = []
            n = 0
            while tq:
                order += tq[:2]; tq = tq[2:]
                n += 1
                if n > XSKIP and n % 2 == 0 and n <= XSKIP + 24: order.append(xq.pop(0))
            tq = order + xq
        self.vq = deque(tq)
        def swaps(ks):
            r = RING0 + (ks % RING) * 8
            self.ensure(f"T{ks}", 2)
            if DETAIL and first and ks in DET: st0(f"bT{ks}")
            vm.wait(f"T{ks}")
            if DETAIL and first and ks in DET: st0(f"aT{ks}")
            a(f"v_swap_b32 v{r+2}, v{r+4}")
            a(f"v_swap_b32 v{r+3}, v{r+5}")
        def mfma(mt, par, A, B, zero=False):
            acc = ACC1 + (mt * 2 + par) * 16
            accs = f"v[{acc}:{acc+15}]"
            a(f"v_mfma_f32_32x32x16_bf16 {accs}, v[{A}:{A+3}], v[{B}:{B+3}], {'0' if zero else accs}")
        for mt in range(3): self.wread(0, mt, 24 + 4 * mt, "A0")
        swaps(0)
        st("T0")
        for ks in range(NMAIN):
            if ks in (8, 16, 24): st(f"ks{ks}")
            r = RING0 + (ks % RING) * 8
            b = 24 + (ks & 1) * 12
            nb = 24 + ((ks + 1) & 1) * 12
            if ks == 20: self.flush_fill()
            lg.wait(f"A{ks}")
            n = 0
            for mt in range(3):
                for par in range(2):
                    mfma(mt, par, b + 4 * mt, r + 4 * par, ks == 0)
                    n += 1
                    if n == 1:
                        if ks + 1 < NMAIN:
                            for m2 in range(3): self.wread(ks + 1, m2, nb + 4 * m2, f"A{ks+1}")
                        if ks + 1 >= NMAIN: self.fill(20)
                    if n == 6: state["done"] = ks
                    if n in (2, 4, 6):
                        did = self.vslot(1)
                        self.fill((8 if did else 20) - (4 if n == 6 else 0))
                    if n == 3: swaps(ks + 1)
                    if n == 5: self.fill(24)
        self.flush_fill()
        st("main")
        NB = 4
        seq = [(mt, ks) for mt in range(3) for ks in list(range(NMAIN, 40)) + [40]]
        def aread(i):
            mt, ks = seq[i]
            if first and mt == 0 and ks == 40: a("s_barrier")
            self.wread(ks, mt, 24 + (i % NB) * 4, f"B{i}")
        if first:
            vm.wait("W"); a("s_barrier")
            assert not lg.q
            a("s_cmp_eq_u32 s3, 0\ns_cbranch_scc1 L_cs_done")
            self.colsum(NMAIN, 40)
            a(f"""
    s_lshl_b32 s22, s3, 10
    s_add_u32 s22, s22, {CSF - 1024}
    v_add_u32 v23, s22, v2
    v_cmp_gt_u32 vcc, 32, v1
    v_mov_b32 v30, 0
    v_mov_b32 v31, 0
    v_accvgpr_read_b32 v24, a240
    v_accvgpr_read_b32 v25, a241
    v_permlane16_swap_b32 v24, v25
    v_cndmask_b32 v24, 0, v24, vcc
    v_cvt_pk_bf16_f32 v28, v24, v24
    v_lshlrev_b32 v25, 16, v28
    v_sub_f32 v25, v24, v25
    v_cvt_pk_bf16_f32 v28, v24, v25
    v_and_b32 v26, s39, v28
    v_sub_f32 v25, v25, v26
    v_cvt_pk_bf16_f32 v29, v25, v30
    ds_write_b128 v23, v[28:31]
    s_waitcnt lgkmcnt(0)
L_cs_done:
    """)
        for i in range(NB - 1): aread(i)
        self.ensure("stl", 4)
        R = TMP
        Ls, Lb = a.label("stspin"), a.label("stback")
        f = [lambda: vm.wait("stl"), f"v_max_u32 v18, v{R+1}, v{R+3}"]
        for i in range(1, 4): f.append(f"v_max3_u32 v18, v18, v{R+4*i+1}, v{R+4*i+3}")
        f += [lambda: a(f"v_cmp_eq_u32 vcc, -1, v18\ns_cbranch_vccnz {Ls}\n{Lb}:")]
        rl = "\n".join(f"    buffer_load_dwordx4 v[{TMP+i*4}:{TMP+i*4+3}], v6, s[8:11], s26 offen offset:{i*512} sc1" for i in range(4))
        mx = "\n".join(f"    v_max3_u32 v18, v18, v{R+4*i+1}, v{R+4*i+3}" for i in range(1, 4))
        self.tail_blocks.append(f"""
{Ls}:
    s_mov_b32 s35, {SPIN}
{Ls}_l:
{rl}
    s_waitcnt vmcnt(0)
    v_max_u32 v18, v{R+1}, v{R+3}
{mx}
    v_cmp_eq_u32 vcc, -1, v18
    s_cbranch_vccz {Lb}
    s_sub_u32 s35, s35, 1
    s_cbranch_scc0 {Ls}_l
    s_branch {Lb}
""")
        for k in range(4): f += [f"v_add_f32 v{R+k}, v{R+k}, v{R+4+k}", f"v_add_f32 v{R+8+k}, v{R+8+k}, v{R+12+k}"]
        for k in range(4): f.append(f"v_add_f32 v{R+k}, v{R+k}, v{R+8+k}")
        for k in range(4): f.append(f"v_mov_b32 v{R+4+k}, v{R+k}")
        for k in range(4): f.append(f"v_permlane32_swap_b32 v{R+k}, v{R+4+k}")
        for k in range(4): f.append(f"v_add_f32 v{R+k}, v{R+k}, v{R+4+k}")
        recs = []
        for t in range(2):
            l = []; rr = l.append
            b = R + 2 * t
            vmn, vr = R + 4 + 2 * t, R + 5 + 2 * t
            rr(f"v_mul_f32 v{vmn}, 0x3acccccd, v{b}")
            rr(f"v_mul_f32 v{vr}, 0x3acccccd, v{b+1}")
            rr(f"v_fma_f32 v{vr}, -v{vmn}, v{vmn}, v{vr}")
            rr(f"v_max_f32 v{vr}, 0, v{vr}")
            rr(f"v_cvt_pk_bf16_f32 v{40+4*t}, -v{vmn}, -v{vmn}")
            rnd_bf16(rr, vr)
            rr(f"v_and_b32 v{41+4*t}, 0xffff, v{40+4*t}")
            rr(f"v_add_f32 v{vr}, 0x3727c5ac, v{vr}")
            rnd_bf16(rr, vr)
            rr(f"v_sqrt_f32 v{vr}, v{vr}")
            rr(f"v_mov_b32 v{42+4*t}, 0")
            rnd_bf16(rr, vr)
            rr(f"v_mul_f32 v{16+t}, v{vr}, v{vr}")
            rr(f"v_rcp_f32 v{vr}, v{vr}")
            rr(f"v_mov_b32 v{43+4*t}, 0")
            rr(f"v_mul_f32 v{12+t}, {hex(f2u(GC0))}, v{vr}")
            rr(f"v_mul_f32 v{14+t}, v{vr}, v{vr}")
            rr(f"v_mul_f32 v{vr}, {hex(f2u(GC1))}, v{vr}")
            rr(f"v_mul_f32 v{14+t}, v{14+t}, v{vr}")
            recs.append(l)
        for x, y in zip(*recs): f += [x, y]
        f += [f"s_lshl_b32 s29, s24, 2", "s_lshr_b32 s34, s21, 3", "s_add_u32 s29, s29, s34", "s_lshl_b32 s29, s29, 7",
              f"s_add_u32 s29, s29, {F1 + layer*16384}", "s_lshl_b32 s34, s45, 2", "v_mov_b32 v8, s34", "v_mov_b32 v9, 1",
              "s_lshl_b32 s36, s44, 2", "s_add_u32 s36, s36, s3", "s_lshl_b32 s36, s36, 7", f"s_add_u32 s36, s36, {F1 + layer*16384}"]
        self.fq.extend(f)
        for i, (mt, ks) in enumerate(seq):
            if ks == 40 and mt == 0: self.flush_fill()
            lg.wait(f"B{i}")
            A = 24 + (i % NB) * 4
            for par in range(2):
                B = RING0 + (ks % RING) * 8 + 4 * par if ks < 40 else 40 + 4 * par
                mfma(mt, par, A, B)
                if par == 0:
                    if i + NB - 1 < len(seq): aread(i + NB - 1)
                    if mt == 0 and ks + 1 < 40: swaps(ks + 1)
                    else:
                        did = self.vslot(1) if ks % 2 else 0
                        self.fill(20 - 8 * did)
                else:
                    did = self.vslot(1)
                    self.fill(20 - 8 * did)
            if ks == 40:
                self.flush_fill()
                st(f"pass{mt}")
                if mt == 2: break
                pre = self.g2_setup(layer) if mt == 0 else []
                e = self.epi_ops(mt, 0, False) + self.epi_ops(mt, 1, False)
                k = min(len(pre), 10)
                self.fq.extend(pre[:k] + e + pre[k:])
                if mt == 1:
                    self.fq.insert(len(self.fq) // 4, lambda: (vm.wait("h0"), self.flag_store("s29", 0)))
                    self.fq.insert(len(self.fq) - 24, lambda: self.poll_issue("s36", 18))

    def g2_setup(self, layer):
        HS = H1 if layer == 0 else H2
        f = ["v_and_b32 v19, 15, v1", "v_lshrrev_b32 v20, 4, v1", "v_lshlrev_b32 v21, 4, v19",
             "v_lshl_add_u32 v21, v20, 9, v21",
             "v_lshl_add_u32 v22, v3, 11, v21",
             f"s_mul_i32 s26, s44, {2*96*1024}", f"s_mul_i32 s34, s3, {24*1024}", "s_add_u32 s26, s26, s34", f"s_add_u32 s26, s26, {HS}"]
        for n in range(4):
            f += [f"s_add_u32 s34, s3, {n}", "s_and_b32 s35, s34, 1", f"s_mul_i32 s35, s35, {96*1024}", "s_lshl_b32 s34, s34, 7",
                  "s_and_b32 s34, s34, 256", f"s_add_u32 s{40+n}, s26, s35", f"s_add_u32 s{40+n}, s{40+n}, s34"]
        return f

    def gemm2(self, layer):
        a, vm, lg, st = self.a, self.vm, self.lg, self.st
        last = layer == 1
        state = dict(done=-1, parts=1, free=False)
        def hl(j, n):
            P, jj = j // 4, j % 4
            r = hslot(j) + n * 4
            def fn():
                a(f"s_add_u32 s31, s{40+n}, s{4+jj}")
                a(f"buffer_load_dwordx4 v[{r}:{r+3}], v22, s[8:11], s31 offen offset:{P*1024} sc1")
                vm.issue(f"K{j}")
            return (lambda: state["done"] >= j - 9 and j // 4 < state["parts"] and (j % 9 < 6 or state["free"]), fn)
        rest = list(self.vq)
        hq = [hl(j, n) for j in range(12) for n in range(4)]
        self.poll_check("s36", 18, 0xff)
        st("p0ok")
        self.vq = deque(hq[:12] + rest + hq[12:])
        e = self.epi_ops(2, 0, True) + [lambda: (vm.wait("h1"), self.flag_store("s29", 32))] + self.epi_ops(2, 1, True)
        for k, x in enumerate(e):
            x() if callable(x) else a(x)
            if k % 5 == 0: self.vslot(1)
        self.poll_issue("s36", 18)
        st("epi2")
        XRr, Yr = hslot(3), hslot(4)
        def xl(base, reg, mt):
            def fn():
                a(f"s_add_u32 s31, s32, {base + (mt//2)*4096}")
                a(f"buffer_load_dwordx2 v[{reg+2*mt}:{reg+2*mt+1}], v21, s[8:11], s31 offen offset:{(mt%2)*2048} sc1"); vm.issue("x")
            return (lambda: state["done"] >= 4, fn)
        if not last:
            for mt in range(5): self.vq.append(xl(X1, XRr, mt))
            for mt in range(5): self.vq.append(xl(Y, Yr, mt))
        f = [f"s_mul_i32 s32, s44, {TB}", "s_mul_i32 s33, s45, 10240", "s_add_u32 s32, s32, s33", "s_lshr_b32 s33, s3, 1", "s_lshl_b32 s33, s33, 8",
             "s_and_b32 s34, s3, 1", "s_lshl_b32 s34, s34, 3", "s_add_u32 s33, s33, s34",
             "s_add_u32 s32, s32, s33",
             "s_mul_i32 s34, s3, 9216", f"s_add_u32 s34, s34, {RB}", "v_add_u32 v104, s34, v2"]
        for n in range(1, 4):
            f += [f"s_add_u32 s34, s3, {n}", "s_and_b32 s34, s34, 3", "s_mul_i32 s34, s34, 9216", f"s_add_u32 s34, s34, {RB + (n-1)*3072}",
                  f"v_add_u32 v{104+n}, s34, v2"]
        for j in range(12):
            if j == 1:
                self.poll_check("s36", 18, 0xff00); state["parts"] = 2
                self.fq.extend(f)
            if j == 3: self.poll_issue("s36", 18)
            if j == 4:
                self.flush_fill()
                self.poll_check("s36", 18, 0xff0000); state["parts"] = 3
            self.ensure(f"K{j}", 4)
            if not last: self.ensure(f"D{j}", 5)
            vm.wait(f"D{j}")
            vm.wait(f"K{j}")
            if j in (0, 4, 8): st(f"K{j}")
            k = 0
            for n in range(4):
                r = hslot(j) + n * 4
                for mt in range(5):
                    acc = ACC2 + (n * 5 + mt) * 4
                    accs = f"v[{acc}:{acc+3}]"
                    i = j * 5 + mt
                    a(f"v_mfma_f32_16x16x32_bf16 {accs}, a[{4*i}:{4*i+3}], v[{r}:{r+3}], {'0' if j == 0 else accs}")
                    k += 1
                    if k == 20: state["done"] = j
                    if j == 0 and k == 14:
                        vm.wait("h2"); self.flag_store("s29", 64); state["free"] = True
                    elif k % 4 == 1 or k % 8 == 3: self.vslot(1)
                    else: self.fill(4)
        self.vslot(100)
        assert not self.vq
        st("kloop")
        HR0 = RING0
        for rnd, mts in enumerate(([0, 1, 2], [3, 4])):
            if rnd == 1: a("s_barrier")
            for n in range(1, 4):
                for k, mt in enumerate(mts):
                    acc = ACC2 + (n * 5 + mt) * 4
                    a(f"ds_write_b128 v{104+n}, v[{acc}:{acc+3}] offset:{k*1024}")
            a("s_waitcnt lgkmcnt(0)\ns_barrier")
            for n in range(3):
                for k, mt in enumerate(mts):
                    r = HR0 + (n * 3 + k) * 4
                    a(f"ds_read_b128 v[{r}:{r+3}], v104 offset:{n*3072 + k*1024}")
            a("s_waitcnt lgkmcnt(0)")
            for n in range(3):
                for k, mt in enumerate(mts):
                    r = HR0 + (n * 3 + k) * 4
                    acc = ACC2 + mt * 4
                    a(f"v_pk_add_f32 v[{acc}:{acc+1}], v[{acc}:{acc+1}], v[{r}:{r+1}]")
                    a(f"v_pk_add_f32 v[{acc+2}:{acc+3}], v[{acc+2}:{acc+3}], v[{r+2}:{r+3}]")
        lg.q = []
        if last:
            for i in range(10): a(f"v_accvgpr_read_b32 v{XRr+i}, a{240+i}")
        vm.wait("x")
        st("reduced")
        A = lambda i: f"v[{ACC2+2*i}:{ACC2+2*i+1}]"
        U, Pk, T = 48, 68, 80
        for i in range(10):
            a(f"v_lshlrev_b32 v{U+2*i}, 16, v{XRr+i}")
            a(f"v_and_b32 v{U+2*i+1}, s39, v{XRr+i}")
        for i in range(10): a(f"v_pk_add_f32 {A(i)}, {A(i)}, v[{U+2*i}:{U+2*i+1}]")
        for i in range(10): a(f"v_cvt_pk_bf16_f32 v{Pk+i}, v{ACC2+2*i}, v{ACC2+2*i+1}")
        if last:
            a(f"""
    v_mul_u32_u24 v23, 2560, v19
    v_lshl_add_u32 v23, v20, 3, v23
    s_mul_i32 s31, s44, {64*1280}
    s_mul_i32 s33, s33, 160
    s_add_u32 s31, s31, s33
    s_mul_i32 s33, s45, 160
    s_add_u32 s31, s31, s33
    """)
            for mt in range(5):
                a(f"buffer_store_dwordx2 v[{Pk+2*mt}:{Pk+2*mt+1}], v23, s[12:15], s31 offen offset:{32*mt}")
            return
        def xsum(v0, v1, t0, t1):
            a(f"""
    v_mov_b32 v{t0}, v{v0}
    v_mov_b32 v{t1}, v{v1}
    v_permlane16_swap_b32 v{v0}, v{t0}
    v_permlane16_swap_b32 v{v1}, v{t1}
    v_pk_add_f32 v[{v0}:{v1}], v[{v0}:{v1}], v[{t0}:{t1}]
    v_mov_b32 v{t0}, v{v0}
    v_mov_b32 v{t1}, v{v1}
    v_permlane32_swap_b32 v{v0}, v{t0}
    v_permlane32_swap_b32 v{v1}, v{t1}
    v_pk_add_f32 v[{v0}:{v1}], v[{v0}:{v1}], v[{t0}:{t1}]
    """)
        def stats_partial(sreg):
            a(f"v_pk_add_f32 v[12:13], {A(0)}, {A(1)}")
            a(f"v_pk_mul_f32 v[14:15], {A(0)}, {A(0)}")
            for i in range(1, 10):
                if i >= 2: a(f"v_pk_add_f32 v[12:13], v[12:13], {A(i)}")
                a(f"v_pk_fma_f32 v[14:15], {A(i)}, {A(i)}, v[14:15]")
            a("v_add_f32 v12, v12, v13\nv_add_f32 v13, v14, v15")
            xsum(12, 13, 14, 15)
            a("s_mov_b64 exec, 0xffff")
            self.dstore([f"buffer_store_dwordx2 v[12:13], v2, s[8:11], {sreg} offen"])
            a("s_mov_b64 exec, -1")
        def unpack_A():
            for i in range(10):
                a(f"v_lshlrev_b32 v{ACC2+2*i}, 16, v{Pk+i}")
                a(f"v_and_b32 v{ACC2+2*i+1}, s39, v{Pk+i}")
        a(f"""
    s_lshl_b32 s30, s44, 12
    s_lshl_b32 s31, s3, 10
    s_add_u32 s31, s31, s30
    s_add_u32 s31, s31, {ST2}
    s_lshr_b32 s34, s45, 1
    s_lshl_b32 s34, s34, 8
    s_and_b32 s35, s45, 1
    s_lshl_b32 s35, s35, 3
    s_add_u32 s34, s34, s35
    s_add_u32 s36, s31, s34
    """)
        unpack_A()
        stats_partial("s36")
        a(f"s_mov_b32 s35, {SPIN}")
        for i in range(10):
            a(f"v_lshlrev_b32 v{U+2*i}, 16, v{Yr+i}")
            a(f"v_and_b32 v{U+2*i+1}, s39, v{Yr+i}")
        L0 = a.label("g2poll"); L1 = a.label("g2ok")
        a(f"""
{L0}:
    buffer_load_dwordx4 v[12:15], v2, s[8:11], s31 offen sc1
    s_waitcnt vmcnt(0)
    v_max_u32 v17, v13, v15
    v_cmp_eq_u32 vcc, -1, v17
    s_cbranch_vccz {L1}
    s_sub_u32 s35, s35, 1
    s_cbranch_scc0 {L0}
{L1}:
    v_pk_add_f32 v[12:13], v[12:13], v[14:15]
    """)
        vm.q = []
        st("polled")
        xsum(12, 13, 14, 15)
        ln_stats(a, 12, 13, 16, 18)
        for i in range(10):
            a(f"v_pk_add_f32 v[{T+2*i}:{T+2*i+1}], {A(i)}, v[16:17] op_sel_hi:[1,0] neg_lo:[0,1] neg_hi:[0,1]")
        for i in range(10):
            a(f"v_pk_mul_f32 v[{U+2*i}:{U+2*i+1}], v[{U+2*i}:{U+2*i+1}], v[18:19] op_sel_hi:[1,0]")
        for i in range(10):
            a(f"v_pk_fma_f32 {A(i)}, v[{T+2*i}:{T+2*i+1}], v[{U+2*i}:{U+2*i+1}], {A(i)}")
        for i in range(10):
            a(f"v_cvt_pk_bf16_f32 v{Pk+i}, v{ACC2+2*i}, v{ACC2+2*i+1}")
        l = []
        for mt in range(5):
            if mt % 2 == 0: l.append(f"s_add_u32 s31, s32, {X3 + (mt//2)*4096}")
            l.append(f"buffer_store_dwordx2 v[{Pk+2*mt}:{Pk+2*mt+1}], v21, s[8:11], s31 offen offset:{(mt%2)*2048}"); vm.issue("x3")
        self.dstore(l)
        a(f"""
    s_lshl_b32 s29, s44, 7
    s_add_u32 s29, s29, {F3}
    s_lshl_b32 s34, s45, 4
    s_lshl_b32 s35, s3, 2
    s_add_u32 s34, s34, s35
    v_mov_b32 v8, s34
    s_lshl_b32 s36, s24, 7
    s_add_u32 s36, s36, {F3}
    s_lshl_b32 s34, s45, 9
    s_add_u32 s30, s30, s34
    s_add_u32 s30, s30, s33
    s_add_u32 s30, s30, {ST3}
    """)
        for i in range(10): a(f"v_accvgpr_write_b32 a{240+i}, v{Pk+i}")
        unpack_A()
        vm.wait("x3")
        st("x3drained")
        self.flag_store("s29", 0)
        stats_partial("s30"); vm.issue("sts")
        self.poll_issue("s36", 18)
        self.poll_check("s36", 18, 0xffffffff)
        st("x3ok")

def mega_kernel(kidx=2):
    a = Asm()
    a.uid = 1000
    st = Stamps(a, kidx)
    m = Mega(st)
    m.vm.maxn = 63
    a("s_cmp_ge_u32 s2, 256\ns_cbranch_scc1 L_mega_end")
    st("start")
    m.ids()
    m.front()
    sts = [st]
    for layer in range(2):
        if DIAG_ON(): sts[-1].stash(253 + layer)
        sts.append(Stamps(a, kidx + 1 + layer))
        m.st = sts[-1]
        m.st("lstart")
        m.gemm1(layer)
        m.gemm2(layer)
    m.st("end")
    if DIAG_ON():
        a("s_waitcnt vmcnt(0)"); m.st("drained"); sts[0].unstash(253); sts[1].unstash(254); m.st.flush()
        a("""
    s_lshl_b32 s4, s2, 3
    s_add_u32 s4, s4, s3
    s_cmp_lg_u32 s4, 0
    s_cbranch_scc1 L_mega_end
    s_load_dwordx2 s[4:5], s[0:1], 88
    v_accvgpr_read_b32 v20, a253
    v_accvgpr_read_b32 v21, a254
    s_nop 1
    """)
        sel = [(20, 0), (20, 6), (20, 10), (20, 14), (20, 18), (21, 12), (21, 18), (21, 30), (21, 38)]
        for i, (v, l) in enumerate(sel): a(f"v_readlane_b32 s6, v{v}, {l}\ns_nop 1\nv_mov_b32 v{4+i}, s6")
        a("""
    v_mov_b32 v13, s60
    v_mov_b32 v14, s78
    v_mov_b32 v15, s84
    v_mov_b32 v0, 0
    s_waitcnt lgkmcnt(0)
    s_mov_b64 exec, 1
    global_load_dwordx4 v[16:19], v0, s[4:5] offset:-512
    s_waitcnt vmcnt(0)
    global_store_dwordx4 v0, v[16:19], s[4:5]
    global_store_dwordx4 v0, v[4:7], s[4:5] offset:16
    global_store_dwordx4 v0, v[8:11], s[4:5] offset:32
    global_store_dwordx4 v0, v[12:15], s[4:5] offset:48
    """)
    a("L_mega_end:\ns_endpgm")
    for b in m.tail_blocks: a(b)
    a("L_mega_last:\ns_endpgm")
    return a
```

```python
from common import *
import os

KT, VT, OUT, STS = 0, 11264, 22528, 22528 + 23040
PREP_LDS = STS + 512
PREP_GRID = 256
NT = os.environ.get('NT', '')

def prep_kernel():
    a = Asm()
    st = Stamps(a, 0)
    a(f"s_cmp_ge_u32 s2, {PREP_GRID}\ns_cbranch_scc1 L_prep_end")
    st("start")
    a(f"""
    v_lshrrev_b32 v2, 6, v0
    v_and_b32 v1, 63, v0                    ; lane
    v_readfirstlane_b32 s3, v2              ; wave
    s_load_dwordx4 s[4:7], s[0:1], 0        ; q, k
    s_load_dwordx4 s[12:15], s[0:1], 16     ; v, shift_k
    s_load_dwordx2 s[16:17], s[0:1], 96     ; ws
    s_lshr_b32 s40, s2, 3
    s_and_b32 s18, s2, 7
    ; ---- tile copy: chunk e = 64 n + lane -> row e/10, 16-byte piece e%10
    s_mul_i32 s19, s40, {64*1280}
    s_mul_i32 s41, s18, 160
    s_add_u32 s19, s19, s41
    s_lshl_b32 s41, s3, 6
    """)
    for r, add in enumerate((0, 320, None)):
        v = 16 + r
        if add is None: a(f"v_add_u32 v{v}, 640, v1")
        else: a(f"v_add_u32 v{v}, s41, v1" + (f"\nv_add_u32 v{v}, {add}, v{v}" if add else ""))
        a(f"""
    v_mul_u32_u24 v3, 6554, v{v}
    v_lshrrev_b32 v3, 16, v3
    v_mul_u32_u24 v4, 1120, v3
    v_lshl_add_u32 v{v}, v{v}, 4, v4
    v_add_u32 v{v}, s19, v{v}
    v_subrev_u32 v{v+4}, {4*1280}, v{v}
    v_subrev_u32 v{v}, 1280, v{v}
    """)
    a(f"""
    ; ---- part (a) indices: u = t/40, p = t%40
    v_mul_u32_u24 v5, 1639, v0
    v_lshrrev_b32 v5, 16, v5                ; u
    v_mul_u32_u24 v6, 40, v5
    v_sub_u32 v6, v0, v6                    ; p
    s_mul_i32 s19, s18, 640
    v_lshl_add_u32 v7, v6, 4, s19
    v_and_b32 v8, 7, v0                     ; tk
    v_lshrrev_b32 v10, 3, v0                ; slot
    s_lshl_b32 s19, s2, 3
    v_add_u32 v11, s19, v8                  ; token
    v_mul_u32_u24 v12, 1280, v11
    v_lshl_add_u32 v12, v10, 5, v12         ; q offset
    s_lshl_b32 s41, s3, 10
    s_waitcnt lgkmcnt(0)
    """)
    srd(a, 24, 6, ACT_BYTES); srd(a, 28, 12, ACT_BYTES)
    st("kernarg")
    a(f"""
    s_add_u32 m0, s41, {KT}
    s_nop 0
    buffer_load_dwordx4 v20, s[24:27], 0 offen {NT} lds
    s_add_u32 m0, s41, {VT}
    s_nop 0
    buffer_load_dwordx4 v16, s[28:31], 0 offen {NT} lds
    s_add_u32 m0, s41, {KT + 5120}
    s_nop 0
    buffer_load_dwordx4 v21, s[24:27], 0 offen {NT} lds
    s_add_u32 m0, s41, {VT + 5120}
    s_nop 0
    buffer_load_dwordx4 v17, s[28:31], 0 offen {NT} lds
    s_cmp_lg_u32 s3, 0
    s_cbranch_scc1 L_prep_k11
    s_mov_b32 m0, {KT + 10240}
    s_nop 0
    buffer_load_dwordx4 v22, s[24:27], 0 offen {NT} lds
L_prep_k11:
    s_cmp_lg_u32 s3, 1
    s_cbranch_scc1 L_prep_v11
    s_mov_b32 m0, {VT + 10240}
    s_mov_b64 exec, 0x3ff
    buffer_load_dwordx4 v18, s[28:31], 0 offen {NT} lds
    s_mov_b64 exec, -1
L_prep_v11:
    """)
    srd(a, 20, 4, ACT_BYTES); srd(a, 32, 14, D * 8); srd(a, 36, 16, WS_USED)
    a(f"""
    s_load_dwordx2 s[4:5], s[0:1], 32       ; ssm_k
    buffer_load_dwordx4 v[40:43], v7, s[32:35], 0 offen
    buffer_load_dwordx4 v[44:47], v12, s[20:23], 0 offen {NT}
    buffer_load_dwordx4 v[48:51], v12, s[20:23], 0 offen offset:16 {NT}
    s_mul_i32 s19, s2, 1536
    s_add_u32 s19, s19, {ST1}
    v_lshl_add_u32 v13, v0, 4, s19
    s_lshl_b32 s19, s2, 8
    s_add_u32 s19, s19, {FL - 96*16}
    v_lshl_add_u32 v14, v0, 4, s19
    v_cmp_gt_u32 vcc, 96, v0
    v_mov_b32 v52, 0
    v_cndmask_b32 v13, v14, v13, vcc
    v_cndmask_b32 v52, v52, -1, vcc
    v_mov_b32 v53, v52
    v_mov_b32 v54, v52
    v_mov_b32 v55, v52
    v_cmp_gt_u32 vcc, 112, v0
    s_and_saveexec_b64 s[46:47], vcc
    s_cbranch_execz L_prep_nod
    buffer_store_dwordx4 v[52:55], v13, s[36:39], 0 offen sc1
L_prep_nod:
    s_mov_b64 exec, s[46:47]
    s_mov_b32 s45, 0xffff0000
    v_mul_u32_u24 v13, 1280, v5
    v_lshl_add_u32 v13, v6, 2, v13
    v_mul_u32_u24 v15, 144, v6
    v_lshlrev_b32 v3, 4, v5
    v_sub_u32 v15, v15, v3
    v_add_u32 v15, {OUT + 112}, v15
    v_mul_u32_u24 v56, 144, v10
    v_and_b32 v3, 7, v0
    v_lshl_add_u32 v56, v3, 4, v56
    v_lshlrev_b32 v57, 14, v10
    v_lshl_add_u32 v57, v3, 4, v57
    s_mul_i32 s41, s18, {80*XT_CH}
    s_lshl_b32 s42, s40, 7
    s_sub_u32 s41, s41, s42
    s_add_u32 s41, s41, {XT + 3968}
    s_add_u32 s42, s41, {XT_CP}
    s_add_u32 s43, s41, {XT_CH}
    s_add_u32 s44, s41, {XT_CH + XT_CP}
    v_lshlrev_b32 v14, 11, v10
    v_and_b32 v3, 6, v8
    v_lshl_add_u32 v14, v3, 3, v14
    v_and_b32 v3, 1, v8
    v_lshl_add_u32 v14, v3, 10, v14
    s_lshr_b32 s19, s2, 3
    s_mul_i32 s19, s19, {TB}
    s_lshl_b32 s46, s18, 6
    s_add_u32 s19, s19, s46
    s_add_u32 s19, s19, {X1}
    s_waitcnt lgkmcnt(0)
    s_mov_b32 s8, s4
    s_and_b32 s9, s5, 0xffff
    s_mov_b32 s10, {D*S*2}
    s_mov_b32 s11, 0x20000
    s_mul_i32 s98, s18, {80*4096}
    s_mul_i32 s99, s40, 10240
    s_add_u32 s98, s98, s99
    s_cmp_eq_u32 s3, 4
    s_cselect_b32 s99, 16, 64
    s_cselect_b32 s100, 8192, 0
    s_add_u32 s98, s98, s100
    v_lshlrev_b32 v58, 7, v1
    s_waitcnt vmcnt(0)
    s_barrier
    """)
    st("loaded")
    a("""
    s_cmp_lt_u32 s3, 3
    s_cbranch_scc1 L_prep_l2c
    v_cmp_gt_u32 vcc, s99, v1
    s_and_saveexec_b64 s[46:47], vcc
    buffer_load_dword v116, v58, s[8:11], s98 offen
    s_mov_b64 exec, s[46:47]
    s_cmp_lg_u32 s3, 4
    s_cbranch_scc1 L_prep_l2c
    s_getpc_b64 s[4:5]
L_prep_pc:
    s_add_u32 s4, s4, mega_kernel-L_prep_pc
    s_addc_u32 s5, s5, 0
    s_lshl_b32 s6, s40, 11
    v_lshl_add_u32 v117, v1, 7, s6
    v_cmp_gt_u32 vcc, L_mega_last-mega_kernel, v117
    s_and_b32 vcc_lo, vcc_lo, 0xffff
    s_mov_b32 vcc_hi, 0
    s_and_saveexec_b64 s[46:47], vcc
    s_cbranch_execz L_prep_nocode
    global_load_dword v118, v117, s[4:5]
L_prep_nocode:
    s_mov_b64 exec, s[46:47]
L_prep_l2c:
    """)
    for r in range(12): a(f"ds_read_b32 v{16+r}, v13 offset:{KT + 160*r}")
    a("""
    v_lshlrev_b32 v106, 16, v40
    v_lshlrev_b32 v107, 16, v42
    v_and_b32 v108, s45, v40
    v_and_b32 v109, s45, v42
    v_lshlrev_b32 v110, 16, v41
    v_lshlrev_b32 v111, 16, v43
    v_and_b32 v112, s45, v41
    v_and_b32 v113, s45, v43
    s_waitcnt lgkmcnt(6)
    """)
    for r in range(9): a(f"ds_read_b32 v{28+r}, v13 offset:{VT + 160*r}")
    for r in range(12):
        if r == 6: a("s_waitcnt lgkmcnt(9)")
        a(f"v_lshlrev_b32 v{64+2*r}, 16, v{16+r}")
        a(f"v_and_b32 v{65+2*r}, s45, v{16+r}")
    K = lambda r: f"v[{64+2*r}:{65+2*r}]"
    V = lambda r: f"v[{88+2*r}:{89+2*r}]"
    W = lambda j: f"v[{106+2*j}:{107+2*j}]"
    KV = lambda m: f"v[{16+2*m}:{17+2*m}]"
    a("s_waitcnt lgkmcnt(0)")
    for r in range(9):
        a(f"v_lshlrev_b32 v{88+2*r}, 16, v{28+r}")
        a(f"v_and_b32 v{89+2*r}, s45, v{28+r}")
    for m in range(9): a(f"v_pk_mul_f32 {KV(m)}, {K(m)}, {W(3)}")
    for j in (2, 1, 0):
        for m in range(9): a(f"v_pk_fma_f32 {KV(m)}, {K(m+3-j)}, {W(j)}, {KV(m)}")
    for m in range(9): a(f"v_pk_mul_f32 {KV(m)}, {KV(m)}, {V(m)}")
    for c in range(2):
        for cp in range(2):
            base = 64 + (c * 2 + cp) * 4
            for i in range(4):
                m = 8 - cp - 2 * i
                a(f"v_cvt_pk_bf16_f32 v{base+i}, v{16+2*m+c}, v{16+2*(m-1)+c}")
            a(f"ds_write_b128 v15, v[{base}:{base+3}] offset:{(c*2+cp)*40*144}")
    st("a_done")
    for i in range(8):
        a(f"v_lshlrev_b32 v{88+2*i}, 16, v{44+i}")
        a(f"v_and_b32 v{89+2*i}, s45, v{44+i}")
    X = lambda i: f"v[{88+2*i}:{89+2*i}]"
    a(f"v_pk_add_f32 v[104:105], {X(0)}, {X(1)}")
    a(f"v_pk_mul_f32 v[106:107], {X(0)}, {X(0)}")
    for i in range(1, 8):
        if i >= 2: a(f"v_pk_add_f32 v[104:105], v[104:105], {X(i)}")
        a(f"v_pk_fma_f32 v[106:107], {X(i)}, {X(i)}, v[106:107]")
    a(f"""
    v_add_f32 v104, v104, v105
    v_add_f32 v105, v106, v107
    v_add_f32_dpp v104, v104, v104 row_ror:8 row_mask:0xf bank_mask:0xf
    v_add_f32_dpp v105, v105, v105 row_ror:8 row_mask:0xf bank_mask:0xf
    v_mov_b32 v106, v104
    v_mov_b32 v107, v105
    v_permlane16_swap_b32 v104, v106
    v_permlane16_swap_b32 v105, v107
    v_pk_add_f32 v[104:105], v[104:105], v[106:107]
    v_mov_b32 v106, v104
    v_mov_b32 v107, v105
    v_permlane32_swap_b32 v104, v106
    v_permlane32_swap_b32 v105, v107
    v_pk_add_f32 v[104:105], v[104:105], v[106:107]
    v_and_b32 v109, 7, v0
    v_lshlrev_b32 v109, 3, v109
    v_lshl_add_u32 v108, v2, 6, v109
    ds_write_b64 v108, v[104:105] offset:{STS}
    s_waitcnt lgkmcnt(0)
    s_barrier
    """)
    for r in range(4): a(f"ds_read_b128 v[{16+4*r}:{19+4*r}], v56 offset:{OUT + r*40*144}")
    a(f"""
    ds_read_b64 v[104:105], v109 offset:{STS}
    ds_read_b64 v[106:107], v109 offset:{STS+64}
    ds_read_b64 v[110:111], v109 offset:{STS+128}
    ds_read_b64 v[112:113], v109 offset:{STS+192}
    ds_read_b64 v[114:115], v109 offset:{STS+256}
    """)
    for r in range(4):
        a(f"s_waitcnt lgkmcnt({8-r})")
        a(f"buffer_store_dwordx4 v[{16+4*r}:{19+4*r}], v57, s[36:39], s{41+r} offen sc1")
    a("v_and_b32 v3, 1, v0\nv_cmp_eq_u32 vcc, 1, v3")
    for k in range(4): a(f"v_cndmask_b32 v{64+k}, v{48+k}, v{44+k}, vcc")
    for k in range(4): a(f"v_mov_b32_dpp v{68+k}, v{64+k} quad_perm:[1,0,3,2] row_mask:0xf bank_mask:0xf")
    for g in range(2):
        for h in range(2):
            a(f"v_cndmask_b32 v{72+4*g+h}, v{44+2*g+h}, v{68+2*g+h}, vcc")
            a(f"v_cndmask_b32 v{74+4*g+h}, v{68+2*g+h}, v{48+2*g+h}, vcc")
        a(f"buffer_store_dwordx4 v[{72+4*g}:{75+4*g}], v14, s[36:39], s19 offen offset:{512*g} sc1")
    a("""
    s_waitcnt lgkmcnt(0)
    v_pk_add_f32 v[104:105], v[104:105], v[106:107]
    v_pk_add_f32 v[110:111], v[110:111], v[112:113]
    v_pk_add_f32 v[104:105], v[104:105], v[114:115]
    v_pk_add_f32 v[104:105], v[104:105], v[110:111]
    """)
    ln_stats(a, 104, 105, 106, 107)
    a(f"""
    v_lshlrev_b32 v11, 3, v11
    s_mov_b32 s19, {MR}
    v_cmp_gt_u32 vcc, 8, v0
    s_and_saveexec_b64 s[46:47], vcc
    s_cbranch_execz L_prep_nomr
    buffer_store_dwordx2 v[106:107], v11, s[36:39], s19 offen sc1
L_prep_nomr:
    s_mov_b64 exec, s[46:47]
    """)
    st('b_done')
    if DIAG_ON():
        a("s_waitcnt vmcnt(0)"); st('drained')
        st.flush("s3", "s[36:39]")
        a("""
    s_lshl_b32 s4, s2, 3
    s_add_u32 s4, s4, s3
    s_cmp_lg_u32 s4, 0
    s_cbranch_scc1 L_prep_end
    s_load_dwordx2 s[4:5], s[0:1], 88
    v_mov_b32 v4, s48
    v_mov_b32 v5, s52
    v_mov_b32 v6, s56
    v_mov_b32 v7, s58
    v_mov_b32 v0, 0
    s_waitcnt lgkmcnt(0)
    s_mov_b64 exec, 1
    global_store_dwordx4 v0, v[4:7], s[4:5]
    """)
    a("s_endpgm")
    a("L_prep_end:\ns_endpgm")
    return a
```

```python
from common import *
from collections import deque
import struct, math

def f2u(x): return struct.unpack("<I", struct.pack("<f", x))[0]
GC0 = -2.0 * math.sqrt(2.0 / math.pi) * math.log2(math.e)
GC1 = GC0 * 0.044715

GA, UA = 0, 61440
RB = 122880
RY = RB + 20480
GEMM_LDS = 163840
RING = 12
NMAIN = 40 - RING
ACC1 = 48
TMP = 144
RING0 = 160
ACC2 = 24
F1 = FL
F3 = FL + 32768
XID = FL + 40960
SH = FL + 57344
GO = FL + 58368
SPIN = 0x40000
PF = FL + 59392
RF = FL + 63488
CA = 110592
CWS = 8704
CH = CA + 4 * CWS
KT, VT, OUT, QS = CA, CA + 12288, 86784, 98304
NON = "s96"
CONV_W = 21
NROT = 7
PRE_W = 3
CONV_D = 0
PRE_D = 10
IDLE_W = 0
WG, WL = 's0', 's1'
EPI_LD = [6, 9]
XSKIP = 2

def cost(s):
    op = s.split()[0]
    if op.startswith(("v_exp", "v_rcp", "v_sqrt", "v_swap", "v_permlane")): return 8
    return 4

def hslot(j): return (RING0 + (j % 9) * 16) if (j % 9) < 6 else (112 + ((j % 9) - 6) * 16)

import os
DETAIL = os.environ.get('DETAIL', '')
class Mega:
    def __init__(self, st):
        self.a = st.a
        self.st = st
        self.vm = Cnt(self.a, "vmcnt", 63)
        self.lg = Cnt(self.a, "lgkmcnt", 15)
        self.tail_blocks = []
        self.vq = deque()
        self.fq = deque()

    def vslot(self, n=1):
        done = 0
        i = 0
        while done < n and i < len(self.vq):
            ok, fn = self.vq[i]
            if ok():
                del self.vq[i]; fn(); done += 1
            else:
                i += 1
        return done
    def ensure(self, tag, n):
        while self.vm.count.get(tag, 0) < n:
            assert self.vslot(1) == 1, tag
    def fill(self, budget):
        while self.fq:
            x = self.fq[0]
            c = 4 if callable(x) else cost(x)
            if c > budget: break
            self.fq.popleft()
            if callable(x): x()
            else: self.a(x)
            budget -= c
    def flush_fill(self):
        self.fill(1 << 30)

    def late_ids(self):
        self.a(f"""
    s_lshl_b32 s24, s20, 2
    s_add_u32 s24, s24, s3                  ; tb1 = 4G + w
    v_lshlrev_b32 v6, 4, v4
    v_lshl_add_u32 v5, v3, 10, v6
    v_lshl_add_u32 v6, v3, 11, v6
    v_bfe_u32 v10, v1, 2, 2
    v_lshl_add_u32 v10, v3, 3, v10
    v_mul_u32_u24 v10, 96, v10
    v_and_b32 v11, 3, v1
    v_lshl_add_u32 v10, v11, 3, v10
    v_bfe_u32 v11, v1, 4, 1
    v_mul_u32_u24 v11, {UA}, v11
    v_add_u32 v10, v10, v11
    v_lshlrev_b32 v11, 2, v4                ; (lane&31)*4
    s_lshr_b32 s38, s21, 1
    s_xor_b32 s38, s38, s21
    s_and_b32 s38, s38, 1
    """)

    def wread(self, ks, mt, dst, tag):
        if ks == 40: return
        for h in range(2):
            self.a(f"ds_read_b64_tr_b16 v[{dst+2*h}:{dst+2*h+1}], v10 offset:{ks*1536 + mt*32 + h*384}"); self.lg.issue(tag)

    def epi_ops(self, mt, par, packed):
        acc = ACC1 + (mt * 2 + par) * 16
        T = TMP + 8 * par
        o = []
        if packed:
            P = lambda i: f"v[{acc+2*i}:{acc+2*i+1}]"
            Tm = lambda i: f"v[{T+2*i}:{T+2*i+1}]"
            p = par
            for i in range(4): o.append(f"v_pk_mul_f32 {Tm(i)}, {P(i)}, {P(i)}")
            for i in range(4): o.append(f"v_pk_fma_f32 {Tm(i)}, {Tm(i)}, v[14:15], v[12:13] op_sel:[0,{p},{p}] op_sel_hi:[1,{p},{p}]")
            for i in range(4): o.append(f"v_pk_mul_f32 {Tm(i)}, {Tm(i)}, {P(i)}")
            for i in range(8): o.append(f"v_exp_f32 v{T+i}, v{T+i}")
            for i in range(4): o.append(f"v_pk_mul_f32 {P(i)}, {P(i)}, {P(i+4)}")
            for i in range(4): o.append(f"v_pk_fma_f32 {Tm(i)}, {Tm(i)}, v[16:17], v[16:17] op_sel:[0,{p},{p}] op_sel_hi:[1,{p},{p}]")
            for i in range(8): o.append(f"v_rcp_f32 v{T+i}, v{T+i}")
            for i in range(4): o.append(f"v_pk_mul_f32 {P(i)}, {P(i)}, {Tm(i)}")
        else:
            for i in range(8): o.append(f"v_mul_f32 v{T+i}, v{acc+i}, v{acc+i}")
            for i in range(8): o.append(f"v_fma_f32 v{T+i}, v{T+i}, v{14+par}, v{12+par}")
            for i in range(8): o.append(f"v_mul_f32 v{T+i}, v{T+i}, v{acc+i}")
            for i in range(8):
                o.append(f"v_exp_f32 v{T+i}, v{T+i}")
                o.append(f"v_mul_f32 v{acc+i}, v{acc+i}, v{acc+8+i}")
            for i in range(8): o.append(f"v_fma_f32 v{T+i}, v{T+i}, v{16+par}, v{16+par}")
            for i in range(8): o.append(f"v_rcp_f32 v{T+i}, v{T+i}")
            for i in range(8): o.append(f"v_mul_f32 v{acc+i}, v{acc+i}, v{T+i}")
        for i in range(4): o.append(f"v_cvt_pk_bf16_f32 v{acc+8+i}, v{acc+2*i}, v{acc+2*i+1}")
        def store():
            ins = f"buffer_store_dwordx4 v[{acc+8}:{acc+11}], v2, s[8:11], s{27+par} offen offset:{mt*1024}"
            if self.layer == 0: self.a(ins + " sc1")
            else: self.dstore([ins])
            self.vm.issue(f"h{mt}")
        o.append(store)
        return o

    def dstore(self, instrs):
        a = self.a
        Ls, Lb = a.label("wt"), a.label("wb")
        a(f"s_cmp_eq_u32 s38, 0\ns_cbranch_scc1 {Ls}")
        for i in instrs: a(i)
        a(f"{Lb}:")
        self.tail_blocks.append(f"{Ls}:\n" + "\n".join(i + (" sc1" if i.startswith("buffer_store") else "") for i in instrs) + f"\ns_nop 1\ns_branch {Lb}\n")

    def flag_store(self, sreg, off):
        self.a("s_mov_b64 exec, 1")
        self.dstore([f"buffer_store_dword v9, v8, s[8:11], {sreg} offen offset:{off}"])
        self.a("s_mov_b64 exec, -1")
        self.vm.issue("flag")

    def poll_issue(self, sreg, dst):
        self.a(f"buffer_load_dword v{dst}, v11, s[8:11], {sreg} offen sc1"); self.vm.issue("poll")
    def poll_check(self, sreg, dst, mask):
        a = self.a
        self.vm.wait("poll")
        Lr, Lb = a.label("spin"), a.label("back")
        a(f"""
    v_cmp_eq_u32 vcc, {NON}, v{dst}
    s_and_b32 s34, vcc_lo, {hex(mask)}
    s_cmp_lg_u32 s34, {hex(mask)}
    s_cbranch_scc1 {Lr}
{Lb}:
    """)
        self.tail_blocks.append(f"""
{Lr}:
    s_mov_b32 s35, {SPIN}
{Lr}_l:
    buffer_load_dword v{dst}, v11, s[8:11], {sreg} offen sc1
    s_waitcnt vmcnt(0)
    v_cmp_eq_u32 vcc, {NON}, v{dst}
    s_nop 1
    s_and_b32 s34, vcc_lo, {hex(mask)}
    s_cmp_eq_u32 s34, {hex(mask)}
    s_cbranch_scc1 {Lb}
    s_sub_u32 s35, s35, 1
    s_cbranch_scc0 {Lr}_l
    s_branch {Lb}
""")

    def w1dma(self, i):
        a = self.a
        r, u = i // 3, i % 3
        if r < NROT:
            if u == 0:
                if r == 0: a(f"s_mul_i32 s47, s38, {NROT-1}")
                else: a(f"s_sub_u32 s47, {r}, s38")
                a(f"s_mul_i32 s33, s47, {64*3072}\ns_add_u32 s33, s33, {WG}\ns_mul_i32 s47, s47, 6144\ns_add_u32 s47, s47, {WL}")
            a(f"s_add_u32 m0, s47, {u*1024}\ns_nop 0")
        else:
            a(f"s_add_u32 m0, {WL}, {r*6144 + u*1024}")
            a(f"s_add_u32 s33, {WG}, {r*64*3072}" if u == 0 else "s_nop 0")
        a(f"buffer_load_dwordx4 v{12+u}, s[16:19], s33 offen lds"); self.vm.issue("W")
    def wvoff(self):
        for u in range(3):
            self.a(f"v_add_u32 v15, {64*u}, v1\nv_mul_u32_u24 v16, 10923, v15\nv_lshrrev_b32 v16, 16, v16\nv_mul_u32_u24 v16, 2976, v16\nv_lshl_add_u32 v{12+u}, v15, 4, v16")
    def wdl(self, j, mt):
        a = self.a
        i = j * 5 + mt
        if mt == 0:
            a(f"s_add_u32 s47, s46, s{97 + j%4}")
            if j >= 4: a(f"s_add_u32 s47, s47, {(j//4)*20480}")
        if mt < 4: a(f"buffer_load_dwordx4 a[{4*i}:{4*i+3}], v2, s[8:11], s47 offen offset:{mt*1024} sc1")
        else: a(f"buffer_load_dwordx4 a[{4*i}:{4*i+3}], v0, s[8:11], s47 offen sc1")
        self.vm.issue(f"D{j}")

    def checkflags(self, regs, mask_hi, reload):
        a = self.a
        Lr, Lb = a.label("cf"), a.label("cb")
        def test():
            t = ""
            for k, r in enumerate(regs):
                t += f"v_cmp_ne_u32 vcc, {NON}, v{r}\n"
                if k == len(regs) - 1 and mask_hi: t += "s_or_b32 s34, s34, vcc_lo\n"
                else: t += ("s_mov_b64 s[34:35], vcc\n" if k == 0 else "s_or_b64 s[34:35], s[34:35], vcc\n")
            return t + "s_cmp_eq_u64 s[34:35], 0\n"
        a(test() + f"s_cbranch_scc0 {Lr}\n{Lb}:")
        self.tail_blocks.append(f"{Lr}:\ns_mov_b32 s36, {SPIN}\n{Lr}_l:\n" + "\n".join(reload) + "\ns_waitcnt vmcnt(0)\n" + test() +
                                f"s_cbranch_scc1 {Lb}\ns_sub_u32 s36, s36, 1\ns_cbranch_scc0 {Lr}_l\ns_branch {Lb}\n")

    def front(self):
        a, vm, lg, st = self.a, self.vm, self.lg, self.st
        a(f"""
    s_load_dwordx4 s[44:47], s[0:1], 88
    s_load_dwordx2 s[24:25], s[0:1], 0      ; q
    s_load_dwordx2 s[28:29], s[0:1], 8      ; k
    s_load_dwordx2 s[32:33], s[0:1], 16     ; v
    s_load_dwordx2 s[20:21], s[0:1], 24     ; shift_k
    s_load_dwordx4 s[4:7], s[0:1], 32
    s_load_dwordx4 s[40:43], s[0:1], 56
    s_load_dwordx2 s[36:37], s[0:1], 72     ; w_down
    s_load_dwordx2 s[12:13], s[0:1], 80     ; out
    s_memrealtime s[98:99]
    v_lshrrev_b32 v2, 6, v0
    v_and_b32 v1, 63, v0
    v_readfirstlane_b32 s3, v2
    v_lshlrev_b32 v2, 4, v1                 ; lane*16
    v_lshrrev_b32 v3, 5, v1                 ; hf
    v_and_b32 v4, 31, v1                    ; c
    s_lshl_b32 s100, s2, 3
    s_lshl_b32 s101, s3, 1
    s_add_u32 s100, s100, s101
    v_add_u32 v16, s100, v3                 ; token
    v_mul_u32_u24 v17, 1280, v16
    v_lshl_add_u32 v17, v4, 3, v17          ; q offset
    s_lshr_b32 s100, s2, 6
    s_lshl_b32 s100, s100, 3
    s_and_b32 s101, s2, 7
    s_add_u32 s100, s100, s101
    s_bfe_u32 s101, s2, 0x30003
    s_mul_i32 s38, s100, {64*1280}
    s_mul_i32 s39, s101, 160
    s_add_u32 s38, s38, s39
    v_mov_b32 v31, 0x80000000
    """)
        for r in range(3):
            a(f"""
    v_add_u32 v24, {256*r}, v0
    v_mul_u32_u24 v25, 6554, v24
    v_lshrrev_b32 v25, 16, v25
    v_mul_u32_u24 v25, 1120, v25
    v_lshl_add_u32 v{18+r}, v24, 4, v25
    v_add_u32 v{18+r}, s38, v{18+r}
    v_subrev_u32 v{21+r}, {3*1280}, v{18+r}
    """)
        a(f"""
    v_cmp_gt_u32 vcc, 128, v0
    s_lshl_b32 s38, s3, 10
    s_mov_b32 s26, {ACT_BYTES}
    v_cndmask_b32 v20, v31, v20, vcc
    v_cmp_gt_u32 vcc, 158, v0
    s_mov_b32 s27, 0x20000
    s_mov_b32 s30, {ACT_BYTES}
    v_cndmask_b32 v23, v31, v23, vcc
    s_mov_b32 s31, 0x20000
    s_mov_b32 s34, {ACT_BYTES}
    s_mov_b32 s35, 0x20000
    s_add_u32 m0, s38, {KT}
    s_waitcnt lgkmcnt(0)
    v_mov_b32 v24, 0
    s_or_b32 s97, s2, s3
    s_cmp_lg_u32 s97, 0
    s_cbranch_scc1 L_nonce
    s_or_b32 s98, s98, 1
    v_mov_b32 v25, s98
    s_mov_b64 exec, 1
    global_store_dword v24, v25, s[44:45] sc1
    s_mov_b64 exec, -1
L_nonce:
    s_and_b32 s25, s25, 0xffff
    s_and_b32 s29, s29, 0xffff
    s_and_b32 s33, s33, 0xffff
    """)
        st("kernarg")
        for i in range(5): a(f"buffer_load_dwordx2 v[{32+2*i}:{33+2*i}], v17, s[24:27], 0 offen offset:{256*i}"); vm.issue("q")
        for r in range(3):
            if r: a(f"s_add_u32 m0, s38, {KT + 4096*r}\ns_nop 0")
            a(f"buffer_load_dwordx4 v{21+r}, s[28:31], 0 offen lds"); vm.issue("kv")
            a(f"s_add_u32 m0, s38, {VT + 4096*r}\ns_nop 0")
            a(f"buffer_load_dwordx4 v{18+r}, s[32:35], 0 offen lds"); vm.issue("kv")
        a(f"""
    ; tile thread: lanes 0..39 = (time block 2w + l/20, channel quad l%20)
    v_cmp_lt_u32 vcc, 19, v1
    v_subrev_u32 v26, 20, v1
    s_lshl_b32 s25, s3, 1
    v_cndmask_b32 v26, v1, v26, vcc         ; quad
    v_cndmask_b32 v27, 0, 1, vcc
    v_add_u32 v27, s25, v27
    s_mul_i32 s25, s101, 640
    v_lshl_add_u32 v28, v26, 5, s25
    s_and_b32 s21, s21, 0xffff
    s_mov_b32 s22, {D*8}
    s_mov_b32 s23, 0x20000
    buffer_load_dwordx4 v[44:47], v28, s[20:23], 0 offen
    buffer_load_dwordx4 v[48:51], v28, s[20:23], 0 offen offset:16
    s_mov_b32 s8, s46
    s_and_b32 s9, s47, 0xffff
    s_mov_b32 s10, {WS_USED}
    s_mov_b32 s11, 0x20000
    s_bitcmp1_b32 s3, 0
    s_cselect_b32 s16, s42, s40
    s_cselect_b32 s17, s43, s41
    s_and_b32 s17, s17, 0xffff
    s_mov_b32 s18, {D*F*2}
    s_mov_b32 s19, 0x20000
    s_and_b32 s13, s13, 0xffff
    s_mov_b32 s14, {ACT_BYTES}
    s_mov_b32 s15, 0x20000
    s_and_b32 s20, s2, 7
    s_lshr_b32 s21, s2, 3                   ; m
    s_lshr_b32 s27, s3, 1
    s_mul_i32 s30, s27, {32*3072}
    s_mul_i32 s31, s21, 96
    s_add_u32 {WG}, s30, s31
    s_mul_i32 s31, s27, 3072
    s_and_b32 s27, s3, 1
    s_mul_i32 s27, s27, {UA}
    s_add_u32 {WL}, s31, s27
    s_mov_b32 s39, 0xffff0000
    """)
        vm.issue("kv"); vm.issue("kv")
        a("v_mov_b32 v29, v16")
        vm.wait("q")
        st("q")
        a(f"v_lshlrev_b32 v15, 6, v4\nv_lshl_add_u32 v15, v3, 3, v15\ns_lshl_b32 s25, s3, 4\ns_add_u32 s25, s25, {QS}\nv_add_u32 v15, s25, v15")
        for i in range(5): a(f"ds_write_b64 v15, v[{32+2*i}:{33+2*i}] offset:{2048*i}")
        for i in range(10):
            a(f"v_lshlrev_b32 v{64+2*i}, 16, v{32+i}")
            a(f"v_and_b32 v{65+2*i}, s39, v{32+i}")
        X = lambda i: f"v[{64+2*i}:{65+2*i}]"
        a(f"v_pk_add_f32 v[84:85], {X(0)}, {X(1)}")
        a(f"v_pk_mul_f32 v[86:87], {X(0)}, {X(0)}")
        for i in range(1, 10):
            if i >= 2: a(f"v_pk_add_f32 v[84:85], v[84:85], {X(i)}")
            a(f"v_pk_fma_f32 v[86:87], {X(i)}, {X(i)}, v[86:87]")
        a("v_add_f32 v84, v84, v85\nv_add_f32 v85, v86, v87")
        for r in (8, 4, 2, 1):
            a(f"v_add_f32_dpp v84, v84, v84 row_ror:{r} row_mask:0xf bank_mask:0xf")
            a(f"v_add_f32_dpp v85, v85, v85 row_ror:{r} row_mask:0xf bank_mask:0xf")
        a("v_mov_b32 v86, v84\nv_mov_b32 v87, v85\nv_permlane16_swap_b32 v84, v86\nv_permlane16_swap_b32 v85, v87\nv_pk_add_f32 v[84:85], v[84:85], v[86:87]")
        ln_stats(a, 84, 85, 86, 87)
        a(f"""
    v_lshlrev_b32 v29, 3, v29
    s_mov_b32 s25, {MR}
    s_mov_b32 exec_lo, 1
    s_mov_b32 exec_hi, 1
    buffer_store_dwordx2 v[86:87], v29, s[8:11], s25 offen sc1
    s_mov_b64 exec, -1
    s_mul_i32 s25, s2, 1536
    s_add_u32 s25, s25, {ST1}
    v_lshl_add_u32 v15, v0, 4, s25
    v_cmp_gt_u32 vcc, 96, v0
    s_lshl_b32 s25, s101, 7
    s_add_u32 s25, s25, {SH}
    s_cmp_eq_u32 s100, 0
    s_cselect_b32 s25, s25, 0x80000000
    v_cndmask_b32 v15, v31, v15, vcc
    v_cndmask_b32 v52, 0, -1, vcc
    v_mov_b32 v16, s25
    v_cmp_eq_u32 vcc, 96, v0
    v_mov_b32 v53, v52
    v_mov_b32 v54, v52
    v_mov_b32 v55, v52
    v_cndmask_b32 v15, v15, v16, vcc
    buffer_store_dwordx4 v[52:55], v15, s[8:11], 0 offen sc1
    v_mul_u32_u24 v16, 1280, v27
    v_lshl_add_u32 v16, v26, 3, v16
    v_add_u32 v16, {KT}, v16
    v_mul_u32_u24 v17, 576, v26
    v_lshlrev_b32 v27, 4, v27
    v_sub_u32 v17, v17, v27
    v_add_u32 v17, {OUT + 112}, v17
    v_lshrrev_b32 v26, 3, v0
    v_and_b32 v27, 7, v0
    v_mul_u32_u24 v18, 144, v26
    v_lshl_add_u32 v18, v27, 4, v18
    v_add_u32 v18, {OUT}, v18
    v_lshlrev_b32 v19, 12, v26
    v_lshl_add_u32 v19, v27, 4, v19
    v_lshlrev_b32 v20, 4, v0
    v_add_u32 v20, {QS}, v20
    v_lshrrev_b32 v21, 2, v0
    v_lshlrev_b32 v21, 9, v21
    v_and_b32 v27, 3, v0
    v_lshl_add_u32 v21, v27, 4, v21
    v_cmp_gt_u32 vcc, 128, v0
    s_mul_i32 s22, s101, {80*XT_CH}
    s_lshl_b32 s23, s100, 7
    s_sub_u32 s22, s22, s23
    v_cndmask_b32 v22, v31, v19, vcc
    v_cndmask_b32 v23, v31, v21, vcc
    s_add_u32 s22, s22, {XT + 3968}
    s_mul_i32 s23, s21, {TB}
    s_lshl_b32 s25, s20, 6
    s_add_u32 s23, s23, s25
    s_add_u32 s23, s23, {X1}
    s_lshl_b32 s25, s20, 2
    s_sub_u32 s97, s21, s25
    s_and_b32 s97, s97, 31
    s_mul_i32 s40, s20, 20
    s_add_u32 s40, s40, s97
    s_sub_u32 s40, s40, 12                  ; g
    s_lshl_b32 s41, s40, 2
    s_add_u32 s41, s41, s3                  ; d
    s_mul_i32 s26, s3, 4608
    s_add_u32 s26, s26, {CH}
    s_add_u32 s27, s26, 512
    s_mov_b32 s32, s4
    s_and_b32 s33, s5, 0xffff
    s_mov_b32 s34, {D*S*2}
    s_lshl_b32 s25, s41, 12
    s_mov_b32 m0, s27
    s_cmp_lt_u32 s97, 12
    s_cbranch_scc1 L_touch
    buffer_load_dwordx4 v2, s[32:35], s25 offen lds
    buffer_load_dwordx4 v2, s[32:35], s25 offen offset:1024 lds
    buffer_load_dwordx4 v2, s[32:35], s25 offen offset:2048 lds
    buffer_load_dwordx4 v2, s[32:35], s25 offen offset:3072 lds
    s_waitcnt vmcnt(6)
    s_branch L_touched
L_touch:
    s_waitcnt vmcnt(2)
L_touched:
    """)
        vm.q = ["?"] * 6
        a("s_waitcnt lgkmcnt(0)\ns_barrier")
        st("loaded")
        a("global_load_dword v30, v24, s[44:45] sc1"); vm.issue("non")
        for r in range(3): a(f"ds_read_b128 v[{52+4*r}:{55+4*r}], v20 offset:{4096*r}")
        for r in range(11): a(f"ds_read_b64 v[{64+2*r}:{65+2*r}], v16 offset:{160*r}")
        side = deque()
        for r in range(3):
            side.append(lambda r=r: (a(f"buffer_store_dwordx4 v[{52+4*r}:{55+4*r}], v{21 if r < 2 else 23}, s[8:11], s23 offen sc1" + ("\ns_add_u32 s23, s23, 32768" if r < 2 else "")), vm.issue("o")))
        for h in range(2):
            b = 44 + 4 * h
            for j in range(4):
                for c in range(2):
                    src = b + 2 * c + j // 2
                    a((f"v_lshlrev_b32 v{160+4*j+2*h+c}, 16, v{src}" if j % 2 == 0 else f"v_and_b32 v{160+4*j+2*h+c}, s39, v{src}"))
        a("s_waitcnt lgkmcnt(4)")
        for r in range(8): a(f"ds_read_b64 v[{96+2*r}:{97+2*r}], v16 offset:{VT - KT + 160*r}")
        for r in range(11):
            if r == 7: a("s_waitcnt lgkmcnt(8)")
            for h in range(2):
                a(f"v_lshlrev_b32 v{112+4*r+2*h}, 16, v{64+2*r+h}")
                a(f"v_and_b32 v{113+4*r+2*h}, s39, v{64+2*r+h}")
        K = lambda r, h: f"v[{112+4*r+2*h}:{113+4*r+2*h}]"
        W = lambda j, h: f"v[{160+4*j+2*h}:{161+4*j+2*h}]"
        KV = lambda m, h: f"v[{176+4*m+2*h}:{177+4*m+2*h}]"
        V = lambda m, h: f"v[{208+4*m+2*h}:{209+4*m+2*h}]"
        for j in (3, 2, 1, 0):
            for m in range(8):
                for h in range(2):
                    if j == 3: a(f"v_pk_mul_f32 {KV(m,h)}, {K(m,h)}, {W(3,h)}")
                    else: a(f"v_pk_fma_f32 {KV(m,h)}, {K(m+3-j,h)}, {W(j,h)}, {KV(m,h)}")
                if m == 0 and side: side.popleft()()
        assert not side
        a("s_waitcnt lgkmcnt(0)")
        for m in range(8):
            for h in range(2):
                a(f"v_lshlrev_b32 v{208+4*m+2*h}, 16, v{96+2*m+h}")
                a(f"v_and_b32 v{209+4*m+2*h}, s39, v{96+2*m+h}")
                a(f"v_pk_mul_f32 {KV(m,h)}, {KV(m,h)}, {V(m,h)}")
        a("s_mov_b32 exec_hi, 0xff")
        for c in range(4):
            for i in range(4):
                m = 7 - 2 * i
                a(f"v_cvt_pk_bf16_f32 v{64+4*c+i}, v{176+4*m+c}, v{176+4*(m-1)+c}")
            a(f"ds_write_b128 v17, v[{64+4*c}:{67+4*c}] offset:{144*c}")
        a("s_mov_b64 exec, -1\ns_waitcnt lgkmcnt(0)\ns_barrier")
        st("tile")
        for r in range(3): a(f"ds_read_b128 v[{80+4*r}:{83+4*r}], v18 offset:{4608*r}")
        for r in range(3):
            a(f"s_waitcnt lgkmcnt({2-r})")
            a(f"buffer_store_dwordx4 v[{80+4*r}:{83+4*r}], v{19 if r < 2 else 22}, s[8:11], s22 offen sc1"); vm.issue("o")
            if r < 2: a("s_add_u32 s22, s22, 131072")
        Ln = a.label("non")
        vm.wait("non")
        a(f"""
    v_readfirstlane_b32 {NON}, v30
    s_cmp_lg_u32 {NON}, 0
    s_cbranch_scc1 {Ln}
    s_mov_b32 s22, {SPIN}
{Ln}_l:
    global_load_dword v30, v24, s[44:45] sc1
    s_waitcnt vmcnt(0)
    v_readfirstlane_b32 {NON}, v30
    s_cmp_lg_u32 {NON}, 0
    s_cbranch_scc1 {Ln}
    s_sub_u32 s22, s22, 1
    s_cbranch_scc0 {Ln}_l
{Ln}:
    s_lshl_b32 s22, s101, 5
    s_add_u32 s22, s22, s100
    s_lshl_b32 s22, s22, 4
    s_add_u32 s22, s22, {PF}
    v_mov_b32 v9, {NON}
    s_lshr_b32 s44, s21, 3
    s_lshl_b32 s45, s20, 2
    s_add_u32 s44, s44, s45                 ; tb2
    s_and_b32 s45, s21, 7                   ; cb2
    s_mul_i32 s46, s45, 245760
    s_mul_i32 s47, s3, 61440
    s_add_u32 s46, s46, s47
    s_add_u32 s46, s46, {WDL}
    v_add_u32 v0, 4096, v2
    s_mov_b32 s101, s97
    """)
        for jj in range(4):
            a(f"s_lshr_b32 s23, s21, 3\ns_add_u32 s23, s23, {jj}\ns_and_b32 s23, s23, 3\ns_mul_i32 s{97+jj}, s23, 5120")
        self.late_ids()
        self.wvoff()
        a(f"""
    s_lshl_b32 s23, s20, 9
    s_add_u32 s23, s23, {PF}
    v_lshlrev_b32 v15, 4, v4
    """)
        a(f"""
    s_waitcnt vmcnt(0)
    s_barrier
    s_cmp_lg_u32 s3, 0
    s_cbranch_scc1 L_noflag
    s_mov_b64 exec, 1
    buffer_store_dword v9, v24, s[8:11], s22 offen sc1
    s_mov_b64 exec, -1
L_noflag:
    """)
        st("pflag")
        vm.q = ["?"] * 4
        a(f"""
    buffer_load_dword v16, v15, s[8:11], s23 offen sc1
    """)
        vm.issue("pf")
        a(f"""
    s_getreg_b32 s30, hwreg(HW_REG_XCC_ID)
    s_lshl_b32 s22, s20, 11
    s_and_b32 s30, s30, 15
    s_add_u32 s22, s22, {XID}
    s_add_u32 s30, s30, {NON}
    s_lshl_b32 s31, s21, 6
    s_lshl_b32 s28, s3, 2
    s_add_u32 s31, s31, s28
    v_mov_b32 v8, s31
    v_mov_b32 v17, s30
    s_cmp_lt_u32 s101, 12
    s_cbranch_scc1 L_idle
    s_mov_b32 s37, s30
    s_lshl_b32 s42, s41, 12
    s_add_u32 s42, s42, {XT}
    s_add_u32 s4, s4, s25
    s_addc_u32 s5, s5, 0
    s_load_dword s28, s[4:5], 0
    s_lshr_b32 s29, s41, 1
    s_lshl_b32 s29, s29, 2
    s_add_u32 s6, s6, s29
    s_addc_u32 s7, s7, 0
    s_load_dword s29, s[6:7], 0
    s_mov_b32 s30, s26
    s_mul_i32 s26, s3, {CWS}
    s_add_u32 s26, s26, {CA}
    """)
        FB, GB, AC, QR = 64, 128, 32, 192
        a(f"""
    v_and_b32 v28, 15, v1                   ; b / a
    v_lshrrev_b32 v29, 4, v1                ; q
    v_mov_b32 v24, 0
    v_mov_b32 v25, 0
    v_mov_b32 v26, 0
    v_mov_b32 v27, 0
    v_lshl_add_u32 v31, v1, 3, s30
    ds_write_b64 v31, v[24:25]
    v_lshrrev_b32 v31, 1, v1
    v_mul_u32_u24 v31, 4288, v31
    v_and_b32 v56, 1, v1
    v_lshl_add_u32 v31, v56, 4, v31
    v_add_u32 v31, s26, v31
    s_mov_b64 exec, 15
    ds_write_b128 v31, v[24:27] offset:4096
    s_mov_b64 exec, -1
    ; F bases: 28 + 16 q - 4 (b&7) + (b>=8 ? 4288 : 0) + 1024 (3 - i)
    v_and_b32 v31, 7, v28
    v_lshlrev_b32 v31, 2, v31
    v_lshlrev_b32 v56, 4, v29
    v_sub_u32 v31, v56, v31
    v_lshrrev_b32 v57, 3, v28
    v_mul_u32_u24 v57, 4288, v57
    v_add3_u32 v31, v31, v57, s26
    v_add_u32 v59, 28, v31
    v_add_u32 v58, {28+1024}, v31
    v_add_u32 v57, {28+2048}, v31
    v_add_u32 v56, {28+3072}, v31
    v_lshlrev_b32 v20, 5, v28
    v_lshl_add_u32 v20, v29, 4, v20
    v_add_u32 v20, s30, v20
    s_lshl_b32 s43, s3, 6
    s_add_u32 s43, s43, s26
    v_lshlrev_b32 v21, 11, v3
    v_lshl_add_u32 v21, v28, 4, v21
    v_and_b32 v22, 1, v29
    v_lshl_add_u32 v21, v22, 3, v21
    v_add_u32 v21, s43, v21
    v_lshrrev_b32 v22, 2, v28
    v_mul_u32_u24 v22, {CWS+64}, v22
    v_and_b32 v23, 3, v28
    v_lshl_add_u32 v22, v23, 3, v22
    v_lshl_add_u32 v22, v29, 5, v22
    s_lshl_b32 s43, s3, 7
    s_add_u32 s43, s43, {CA}
    v_add_u32 v22, s43, v22
    v_mul_u32_u24 v23, {TB}, v3
    v_lshl_add_u32 v23, v4, 4, v23
    s_mul_i32 s43, s3, {2*TB}
    s_lshl_b32 s25, s40, 9
    s_add_u32 s43, s43, s25
    s_waitcnt lgkmcnt(0)
    ; h'[0] = bf16(h[0] + D[d])
    s_lshl_b32 s28, s28, 16
    s_and_b32 s25, s29, 0xffff0000
    s_lshl_b32 s29, s29, 16
    s_bitcmp1_b32 s41, 0
    s_cselect_b32 s29, s25, s29
    v_mov_b32 v24, s28
    v_add_f32 v24, s29, v24
    v_cvt_pk_bf16_f32 v24, v24, v24
    v_mov_b32 v25, s27
    """)
        vm.wait("pf")
        self.checkflags([16], False, ["buffer_load_dword v16, v15, s[8:11], s23 offen sc1"])
        st("pok")
        for i in range(4):
            a(f"buffer_load_dwordx4 v[{64+8*i}:{67+8*i}], v2, s[8:11], s42 offen offset:{1024*i} sc1"); vm.issue("x")
            a(f"buffer_load_dword v{68+8*i}, v2, s[8:11], s42 offen offset:{1024*i+16} sc1"); vm.issue("x")
        a("s_mov_b64 exec, 1\nbuffer_store_dword v17, v8, s[8:11], s22 offen sc1\ns_mov_b64 exec, -1"); vm.issue("xid")
        for i in range(PRE_W): self.w1dma(i)
        a(f"s_lshl_b32 s42, s3, 10\ns_add_u32 s42, s42, {MR}\nv_mov_b32 v16, v56\nv_mov_b32 v17, v57\nv_mov_b32 v18, v58\nv_mov_b32 v19, v59")
        vm.wait("x")
        a("v_writelane_b32 v92, 0, 63\nv_add_u32 v30, s26, v2")
        for i in range(4):
            b = 64 + 8 * i
            a(f"ds_write_b128 v30, v[{b}:{b+3}] offset:{4288 + 1024*i}")
            for k in range(4): a(f"v_alignbit_b32 v{96+4*i+k}, v{b+k+1}, v{b+k}, 16")
            a(f"ds_write_b128 v30, v[{96+4*i}:{99+4*i}] offset:{1024*i}")
        st("landed")
        a("s_mov_b64 exec, 1\nds_write_b16 v25, v24\ns_mov_b64 exec, -1")
        def reads(rho):
            l = []
            fb, gb = FB + (rho & 1) * 32, GB + (rho & 1) * 32
            for k in range(8):
                sg = k
                o = (512 * (1 - (sg & 1)) + 448 - 64 * rho) // 4
                for h in range(2):
                    l.append(f"ds_read2_b32 v[{fb+4*sg+2*h}:{fb+4*sg+2*h+1}], v{16 + sg//2} offset0:{o+2*h} offset1:{o+2*h+1}")
                l.append(f"ds_read_b128 v[{gb+4*k}:{gb+4*k+3}], v20 offset:{480 - 64*(rho - 8*k)}")
            return l
        for k, x in enumerate(reads(0)):
            if k in (10, 20): a("s_waitcnt lgkmcnt(3)")
            a(x)
        vq = deque()
        def qn(j, k):
            r = QR + 16 * k + 4 * j
            if k == 0:
                a(f"s_add_u32 s25, s43, {X1 + j*8*TB}")
                a(f"buffer_load_dwordx4 v[{r}:{r+3}], v23, s[8:11], s25 offen sc1")
            else:
                a(f"s_add_u32 s25, s42, {j*4096}")
                a(f"buffer_load_dwordx4 v[{r}:{r+3}], v2, s[8:11], s25 offen sc1")
            vm.issue("qn")
        allpf = [f"buffer_load_dword v{224+r}, v2, s[8:11], s23 offen offset:{1024*r} sc1" for r in range(4)]
        allrf = [f"buffer_load_dword v{228+r}, v2, s[8:11], s31 offen offset:{1024*r} sc1" for r in range(2)]
        a(f"s_mov_b32 s23, {PF}\ns_mov_b32 s31, {RF}")
        ld = lambda x, t: (lambda: (a(x), vm.issue(t)))
        Wq = [lambda i=i: self.w1dma(i) for i in range(PRE_W, CONV_W)]
        Dq = [lambda j=j, mt=mt: self.wdl(j, mt) for j in range(12) for mt in range(5)]
        Q = [lambda j=j, k=k: qn(j, k) for k in range(2) for j in range(4)]
        plan = [Wq[0:2], [ld(x, "apf") for x in allpf] + Wq[2:4],
                Wq[4:6] + [lambda: (vm.wait("apf"), self.checkflags([224, 225, 226, 227], False, allpf))] + Q[0:2],
                Q[2:5] + Wq[6:8], Q[5:8] + Wq[8:10], Wq[10:13], Wq[13:16], Wq[16:18]]
        assert len(Wq) == 18
        first = [True] * 8
        for rho in range(8):
            a("s_waitcnt lgkmcnt(0)")
            if rho == 4: st("class4")
            rd = deque(reads(rho + 1)) if rho < 7 else deque()
            vq = deque(plan[rho]); nper = len(vq)
            slots = [int((36 if rho < 7 else 16) * (k + 0.5) / nper) for k in range(nper)]
            n = 0
            for sg in range(8):
                for k in range(0, 8 - sg):
                    T = sg + k
                    acc = f"v[{AC+4*T}:{AC+4*T+3}]"
                    fr, gr = FB + (rho & 1) * 32 + 4 * sg, GB + (rho & 1) * 32 + 4 * k
                    a(f"v_mfma_f32_16x16x32_bf16 {acc}, v[{fr}:{fr+3}], v[{gr}:{gr+3}], {'0' if first[T] else acc}")
                    first[T] = False
                    if n in slots and vq: vq.popleft()()
                    elif rd and n < 32: a(rd.popleft())
                    n += 1
            while rd: a(rd.popleft())
            assert not vq
        st("mfma")
        for T in range(8):
            a(f"v_cvt_pk_bf16_f32 v{FB+2*T}, v{AC+4*T}, v{AC+4*T+1}")
            a(f"v_cvt_pk_bf16_f32 v{FB+2*T+1}, v{AC+4*T+2}, v{AC+4*T+3}")
            a(f"ds_write_b64 v21, v[{FB+2*T}:{FB+2*T+1}] offset:{256*T}")
        a("s_waitcnt lgkmcnt(0)\ns_barrier")
        for j in range(4):
            for par in range(2):
                r = AC + 4 * j + 2 * par
                a(f"ds_read_b64_tr_b16 v[{r}:{r+1}], v22 offset:{512*j + 2048*par}")
        vm.wait("qn")
        for j in range(4):
            a(f"s_waitcnt lgkmcnt({6-2*j})")
            o = AC + 16 + 4 * j
            for par in range(2):
                r = QR + 4 * j + 2 * par
                mr = f"v[{QR+16+4*j+2*par}:{QR+17+4*j+2*par}]"
                y = AC + 4 * j + 2 * par
                for h in range(2):
                    t = FB + 8 * h
                    a(f"v_lshlrev_b32 v{t}, 16, v{r+h}")
                    a(f"v_and_b32 v{t+1}, s39, v{r+h}")
                    a(f"v_lshlrev_b32 v{t+4}, 16, v{y+h}")
                    a(f"v_and_b32 v{t+5}, s39, v{y+h}")
                    a(f"v_pk_add_f32 v[{t+2}:{t+3}], v[{t}:{t+1}], {mr} op_sel_hi:[1,0] neg_lo:[0,1] neg_hi:[0,1]")
                    a(f"v_pk_mul_f32 v[{t+4}:{t+5}], v[{t+4}:{t+5}], {mr} op_sel:[0,1] op_sel_hi:[1,1]")
                    a(f"v_pk_fma_f32 v[{t}:{t+1}], v[{t+2}:{t+3}], v[{t+4}:{t+5}], v[{t}:{t+1}]")
                    a(f"v_cvt_pk_bf16_f32 v{o+2*par+h}, v{t}, v{t+1}")
            a(f"s_add_u32 s25, s43, {X1 + j*8*TB}")
            a(f"buffer_store_dwordx4 v[{o}:{o+3}], v23, s[8:11], s25 offen sc1"); vm.issue("o")
        for j in range(4):
            a(f"s_add_u32 s25, s43, {Y + j*8*TB}")
            a(f"buffer_store_dwordx4 v[{AC+4*j}:{AC+4*j+3}], v23, s[8:11], s25 offen sc1"); vm.issue("o")
        st("stored")
        vm.wait("o")
        a("s_barrier")
        st("drained")
        a("s_branch L_arrive")
        a(f"""
L_idle:
    s_mov_b64 exec, 1
    buffer_store_dword v17, v8, s[8:11], s22 offen sc1
    s_mov_b64 exec, -1
    s_mov_b32 s32, s36
    s_and_b32 s33, s37, 0xffff
    s_mov_b32 s37, s30
    s_mov_b32 s34, {D*F*2}
    s_mul_i32 s30, s20, 12
    s_add_u32 s30, s30, s101
    s_lshl_b32 s40, s30, 2
    s_add_u32 s40, s40, s3
    s_lshl_b32 s26, s3, 12
    s_add_u32 s26, s26, {CA}
    v_lshrrev_b32 v21, 2, v4
    v_lshlrev_b32 v21, 9, v21
    v_lshl_add_u32 v21, v3, 8, v21
    v_and_b32 v17, 3, v4
    v_lshl_add_u32 v21, v17, 6, v21
    v_add_u32 v21, s26, v21
    v_add_u32 v17, s26, v2
    s_mov_b32 s28, 0x05040100
    s_mov_b32 s29, 0x07060302
    s_mov_b32 s36, s33
    """)
        for i in range(IDLE_W): self.w1dma(i)
        a(f"""
    s_mov_b32 s33, s36
L_relay:
    s_mul_i32 s41, s40, 13108
    s_lshr_b32 s41, s41, 16
    s_mul_i32 s42, s41, 5
    s_sub_u32 s42, s40, s42                 ; strip
    s_mul_i32 s4, s41, {16*1280}
    s_lshl_b32 s5, s42, 8
    s_add_u32 s4, s4, s5
    s_add_u32 s5, s4, {8*1280}
    v_mul_u32_u24 v18, {4*1280}, v3
    v_lshl_add_u32 v18, v4, 3, v18
    """)
        for e in range(8):
            a(f"buffer_load_dwordx2 v[{32+2*e}:{33+2*e}], v18, s[32:35], s{4 + e//4} offen offset:{1280*(e%4)}")
        a(f"""
    s_lshr_b32 s27, s40, 1
    s_mul_i32 s27, s27, 10240
    v_lshlrev_b32 v22, 7, v1
    s_cmp_ge_u32 s40, 384
    s_cbranch_scc1 L_notouch
    buffer_load_dword a250, v22, s[16:19], s27 offen
    s_add_u32 s27, s27, 8192
    s_mov_b64 exec, 0xffff
    buffer_load_dword a251, v22, s[16:19], s27 offen
    s_mov_b64 exec, -1
L_notouch:
    ; cb = fb/3 ; P = fb%3 ; dest = (12 (cb>>3) + 4 P + ((cb&7)>>1))*5120 + (cb&1)*512
    s_mul_i32 s43, s41, 43
    s_lshr_b32 s43, s43, 7
    s_mul_i32 s6, s43, 3
    s_sub_u32 s6, s41, s6
    s_lshl_b32 s6, s6, 2
    s_lshr_b32 s7, s43, 3
    s_mul_i32 s7, s7, 12
    s_add_u32 s6, s6, s7
    s_bfe_u32 s7, s43, 0x20001
    s_add_u32 s6, s6, s7
    s_mul_i32 s6, s6, 5120
    s_and_b32 s7, s43, 1
    s_lshl_b32 s7, s7, 9
    s_add_u32 s6, s6, s7
    s_add_u32 s6, s6, {WDL}
    s_lshl_b32 s42, s42, 3
    """)
        for i in range(4):
            a(f"""
    v_add_u32 v19, s42, v3
    v_add_u32 v19, {2*i}, v19
    v_mul_u32_u24 v20, 26, v19
    v_lshrrev_b32 v20, 7, v20               ; cb2 = x/5
    v_mul_u32_u24 v20, {245760 - 5*1024}, v20
    v_lshl_add_u32 v20, v19, 10, v20
    v_lshl_add_u32 v{24+i}, v4, 4, v20
    """)
        a("s_waitcnt vmcnt(0)")
        if DIAG_ON(): a("s_memrealtime s[60:61]")
        for c in range(4):
            o = 48 + c * 4
            for j in range(4):
                lo = 32 + 4 * j + c // 2
                a(f"v_perm_b32 v{o+j}, v{lo+2}, v{lo}, {'s28' if c % 2 == 0 else 's29'}")
            a(f"ds_write_b128 v21, v[{o}:{o+3}] offset:{16*c}")
        for i in range(4): a(f"ds_read_b128 v[{64+4*i}:{67+4*i}], v17 offset:{1024*i}")
        for i in range(4):
            a(f"s_waitcnt lgkmcnt({3-i})")
            a(f"buffer_store_dwordx4 v[{64+4*i}:{67+4*i}], v{24+i}, s[8:11], s6 offen sc1")
        a("""
    s_add_u32 s40, s40, 384
    s_cmp_lt_u32 s40, 480
    s_cbranch_scc1 L_relay
    """)
        if DIAG_ON(): a("s_memrealtime s[62:63]")
        for i in range(IDLE_W, IDLE_W + 3): self.w1dma(i)
        a(f"""
    s_waitcnt vmcnt(3)
    s_barrier
    s_cmp_lg_u32 s3, 0
    s_cbranch_scc1 L_norf
    s_lshl_b32 s30, s30, 4
    s_add_u32 s30, s30, {RF}
    v_mov_b32 v24, 0
    s_mov_b64 exec, 1
    buffer_store_dword v9, v24, s[8:11], s30 offen sc1
    s_mov_b64 exec, -1
L_norf:
    """)
        self.checkflags([16], False, ["buffer_load_dword v16, v15, s[8:11], s23 offen sc1"])
        for i in range(IDLE_W + 3, CONV_W): self.w1dma(i)
        a(f"""
L_arrive:
    s_cmp_lg_u32 s3, 0
    s_cbranch_scc1 L_arrived
    s_lshl_b32 s25, s20, 7
    s_add_u32 s25, s25, {SH}
    v_mov_b32 v24, 1
    v_mov_b32 v25, 0
    s_mov_b64 exec, 1
    buffer_atomic_add v24, v25, s[8:11], s25 offen sc0 sc1
    s_mov_b64 exec, -1
    s_waitcnt vmcnt(0)
    v_readfirstlane_b32 s25, v24
    s_cmp_lg_u32 s25, 31
    s_cbranch_scc1 L_arrived
    s_lshl_b32 s25, s20, 2
    s_add_u32 s25, s25, {GO}
    v_lshlrev_b32 v25, 7, v1
    s_mov_b64 exec, 0xff
    buffer_store_dword v9, v25, s[8:11], s25 offen sc1
    s_mov_b64 exec, -1
L_arrived:
    """)
        vm.q = ["?"] * 13
        a(f"s_mov_b32 s31, {RF}")
        for x in allrf: a(x); vm.issue("arf")
        for i in range(CONV_W, 30): self.w1dma(i)
        a("v_lshlrev_b32 v25, 4, v11\nbuffer_load_dword v25, v25, s[8:11], s22 offen sc1"); vm.issue("W")
        vm.wait("arf")
        self.checkflags([228, 229], True, allrf)
        a(f"""
    s_lshl_b32 s22, s44, 2
    s_add_u32 s22, s22, s3
    s_lshl_b32 s23, s22, 10
    s_add_u32 s23, s23, {ST2 - 8*128}
    v_lshl_add_u32 v23, v1, 7, s23
    s_lshl_b32 s22, s22, 7
    s_add_u32 s22, s22, {F1}
    v_writelane_b32 v23, s22, 2
    s_add_u32 s22, s22, 16384
    v_writelane_b32 v23, s22, 3
    s_lshl_b32 s22, s24, 7
    s_add_u32 s22, s22, {F3}
    v_writelane_b32 v23, s22, 4
    s_lshl_b32 s22, s24, 5
    s_add_u32 s22, s22, s21
    s_lshl_b32 s22, s22, 7
    s_add_u32 s22, s22, {ST1}
    v_writelane_b32 v23, s22, 0
    s_add_u32 s22, s22, {ST3 - ST1}
    v_writelane_b32 v23, s22, 1
    s_mov_b64 exec, 0xff1f
    buffer_load_dword a255, v23, s[8:11], 0 offen
    s_mov_b64 exec, -1
    """)
        for jj in range(4):
            a(f"s_lshr_b32 s22, s21, 3\ns_add_u32 s22, s22, {jj}\ns_and_b32 s22, s22, 3\ns_mul_i32 s{4+jj}, s22, 6144")
        Lw = a.label("go")
        nyoung = 1
        for x in self.g2_setup(0): a(x)
        a(f"""
    s_waitcnt vmcnt({nyoung})
    v_cmp_ne_u32 vcc, s37, v25
    s_cmp_eq_u32 vcc_lo, 0
    s_cselect_b32 s38, 1, 0
    s_barrier
    s_cmp_lg_u32 s3, 0
    s_cbranch_scc1 L_cs_early
    """)
        q0 = list(vm.q)
        for x in Dq[:PRE_D]: x()
        vm.q = q0
        a(f"""
    s_lshl_b32 s36, s20, 7
    s_add_u32 s36, s36, {GO}
    s_mov_b32 s35, {SPIN}
{Lw}_l:
    buffer_load_dword v18, v11, s[8:11], s36 offen sc1
    s_waitcnt vmcnt(0)
    v_cmp_eq_u32 vcc, {NON}, v18
    s_and_b32 s34, vcc_lo, 0xff
    s_cmp_eq_u32 s34, 0xff
    s_cbranch_scc1 {Lw}
    s_sleep 2
    s_sub_u32 s35, s35, 1
    s_cbranch_scc0 {Lw}_l
    s_branch {Lw}
L_cs_early:
    """)
        self.colsum(0, 40, deque(Dq[:PRE_D]))
        a(f"""
    s_lshl_b32 s22, s3, 9
    s_add_u32 s22, s22, {RB - 512}
    v_lshl_add_u32 v23, v1, 3, s22
    v_cmp_gt_u32 vcc, 32, v1
    v_mov_b32 v30, 0
    v_accvgpr_read_b32 v24, a240
    v_accvgpr_read_b32 v25, a241
    v_permlane16_swap_b32 v24, v25
    v_cndmask_b32 v24, 0, v24, vcc
    v_cvt_pk_bf16_f32 v28, v24, v24
    v_lshlrev_b32 v25, 16, v28
    v_sub_f32 v25, v24, v25
    v_cvt_pk_bf16_f32 v28, v24, v25
    v_and_b32 v26, s39, v28
    v_sub_f32 v25, v25, v26
    v_cvt_pk_bf16_f32 v29, v25, v30
    ds_write_b64 v23, v[28:29]
    s_waitcnt lgkmcnt(0)
{Lw}:
    v_lshlrev_b32 v23, 3, v1
    v_add_u32 v23, {RB}, v23
    """)
        a(f"""
    s_mul_i32 s22, s44, {TB}
    s_lshl_b32 s29, s45, 6
    s_add_u32 s22, s22, s29
    s_mul_i32 s29, s3, {40*512}
    s_add_u32 s22, s22, s29
    s_add_u32 s22, s22, {X1}
    v_and_b32 v7, 7, v1
    v_lshlrev_b32 v7, 3, v7
    v_lshrrev_b32 v8, 3, v1
    v_lshl_add_u32 v8, v8, 9, v7
    """)
        st("ready")
        a("s_barrier")
        vm.q = ["?"] * (PRE_D + 1)
        lg.q = []
        st("go")
        for mt in range(3): a(f"ds_read_b64 a[{240+4*mt}:{241+4*mt}], v23 offset:{512*mt}"); lg.issue("cs")
        for r in (242, 243, 246, 247): a(f"v_accvgpr_write_b32 a{r}, 0")

    def colsum(self, k0, k1, side):
        a = self.a
        a("""
    s_lshl_b32 s22, s3, 5
    s_sub_u32 s22, s22, 32
    v_add_u32 v23, s22, v10
    v_and_b32 v48, 15, v1
    v_bfe_u32 v49, v1, 4, 1
    v_cmp_eq_u32 vcc, v48, v49
    v_mov_b32 v49, 0x3f803f80
    """)
        def rd(k):
            b = 24 + 4 * (k % 6)
            for h in range(2): a(f"ds_read_b64_tr_b16 v[{b+2*h}:{b+2*h+1}], v23 offset:{k*1536 + h*384}")
        for k in range(k0, k0 + 5): rd(k)
        a("v_cndmask_b32 v48, 0, v49, vcc\nv_mov_b32 v49, v48\nv_mov_b32 v50, v48\nv_mov_b32 v51, v48")
        for k in range(k0, k1):
            a(f"s_waitcnt lgkmcnt({2*min(4, k1-1-k)})")
            b = 24 + 4 * (k % 6)
            a(f"v_mfma_f32_16x16x32_bf16 a[240:243], v[48:51], v[{b}:{b+3}], {'0' if k == 0 else 'a[240:243]'}")
            if k + 5 < k1: rd(k + 5)
            if side and k % 2 == 0: side.popleft()()
        assert not side

    def gemm1(self, layer):
        a, vm, lg, st = self.a, self.vm, self.lg, self.st
        first = layer == 0
        self.layer = layer
        vm.count = {}
        if DETAIL:
            DET = list(range(int(DETAIL), int(DETAIL) + 7)); st0 = st
            if first: self.st = st = lambda n: None
        XS, HD, ST = (X1, H1, ST1) if first else (X3, H2, ST3)
        sc = "sc1"
        a(f"""
    s_mul_i32 s25, s24, {TB}
    s_add_u32 s25, s25, {XS}
    """)
        state = dict(tnext=0, done=-1)
        def thalf(ks, h):
            r = RING0 + (ks % RING) * 8 + 4 * h
            o = (ks % 2) * 2048 + 512 * h
            def fn():
                a(f"buffer_load_dwordx4 v[{r}:{r+3}], v5, s[8:11], s25 offen offset:{o} {sc}"); vm.issue(f"T{ks}")
                if ks % 2 == 1 and h == 1: a("s_add_u32 s25, s25, 4096")
            return (lambda: state["done"] >= ks - RING, fn)
        def tload():
            ks = state["tnext"]; state["tnext"] += 1
            thalf(ks, 0)[1](); thalf(ks, 1)[1]()
        def stl(i):
            def fn():
                rr = TMP + i * 4
                a(f"buffer_load_dwordx4 v[{rr}:{rr+3}], v6, s[8:11], s26 offen offset:{i*512} sc1"); vm.issue("stl")
            return (lambda: state["done"] >= 20, fn)

        for _ in range(3): tload()
        if first:
            for i in range(5):
                a(f"buffer_load_dwordx2 v[{TMP+2*i}:{TMP+2*i+1}], v8, s[8:11], s22 offen sc1"); vm.issue("st")
                if i < 4: a("s_add_u32 s22, s22, 4096")
        for _ in range(3): tload()
        st("issued")
        self.fq.extend([f"s_lshl_b32 s26, s24, 12", f"s_add_u32 s26, s26, {ST}"])
        if True:
            self.post = []
            self.fq.extend([f"s_mul_i32 s27, s24, {2*96*1024}", "s_mul_i32 s28, s21, 3072", "s_add_u32 s27, s27, s28", f"s_add_u32 s27, s27, {HD}",
                            f"s_add_u32 s28, s27, {96*1024}"])
        if first:
            S, Q, t, u = TMP + 10, TMP + 11, TMP + 12, TMP + 13
            f = [lambda: vm.wait("st")]
            for i in range(10):
                f += [f"v_lshlrev_b32 v{t}, 16, v{TMP+i}", f"v_and_b32 v{u}, s39, v{TMP+i}"]
                if i == 0: f += [f"v_add_f32 v{S}, v{t}, v{u}", f"v_mul_f32 v{Q}, v{t}, v{t}"]
                else: f += [f"v_add_f32 v{S}, v{S}, v{t}", f"v_fmac_f32 v{Q}, v{t}, v{t}", f"v_add_f32 v{S}, v{S}, v{u}"]
                f.append(f"v_fmac_f32 v{Q}, v{u}, v{u}")
            def sts():
                a("s_mov_b32 exec_lo, 0xff\ns_mov_b32 exec_hi, 0xff")
                self.dstore([f"buffer_store_dwordx2 v[{S}:{Q}], v7, s[8:11], s22 offen"])
                a("s_mov_b64 exec, -1"); vm.issue("sts")
            f += ["s_lshl_b32 s22, s44, 12", "s_lshl_b32 s23, s3, 10",
                  f"v_add_f32_dpp v{S}, v{S}, v{S} row_ror:8 row_mask:0xf bank_mask:0xf",
                  f"v_add_f32_dpp v{Q}, v{Q}, v{Q} row_ror:8 row_mask:0xf bank_mask:0xf",
                  "s_add_u32 s22, s22, s23", f"v_mov_b32 v{t}, v{S}", f"v_mov_b32 v{u}, v{Q}", "s_lshl_b32 s23, s45, 6", "s_add_u32 s22, s22, s23",
                  f"v_permlane16_swap_b32 v{S}, v{t}", f"v_permlane16_swap_b32 v{Q}, v{u}",
                  f"s_add_u32 s22, s22, {ST}", "v_lshl_add_u32 v7, v3, 9, v7",
                  f"v_add_f32 v{S}, v{S}, v{t}", f"v_add_f32 v{Q}, v{Q}, v{u}", sts]
            self.fq.extend(f)
        self.fq.extend(self.post)
        tq = [thalf(ks, h) for ks in range(state["tnext"], 40) for h in range(2)]
        k = 2 * (35 - state["tnext"])
        tq = tq[:k] + [stl(i) for i in range(4)] + tq[k:]
        xq = []
        if first: xq += [(lambda: True, lambda j=j, mt=mt: self.wdl(j, mt)) for j in range(12) for mt in range(5)][PRE_D:]
        order = []
        n = 0
        while tq:
            order += tq[:2]; tq = tq[2:]
            n += 1
            pass
        tq = order + xq
        self.vq = deque(tq)
        def swaps(ks):
            r = RING0 + (ks % RING) * 8
            self.ensure(f"T{ks}", 2)
            if DETAIL and first and ks in DET: st0(f"bT{ks}")
            vm.wait(f"T{ks}")
            if DETAIL and first and ks in DET: st0(f"aT{ks}")
            a(f"v_swap_b32 v{r+2}, v{r+4}")
            a(f"v_swap_b32 v{r+3}, v{r+5}")
        def mfma(mt, par, A, B, zero=False):
            acc = ACC1 + (mt * 2 + par) * 16
            accs = f"v[{acc}:{acc+15}]"
            Ar = A if isinstance(A, str) else f"v[{A}:{A+3}]"
            a(f"v_mfma_f32_32x32x16_bf16 {accs}, {Ar}, v[{B}:{B+3}], {'0' if zero else accs}")
        for mt in range(3): self.wread(0, mt, 24 + 4 * mt, "A0")
        swaps(0)
        st("T0")
        for ks in range(NMAIN):
            if ks in (8, 16, 24): st(f"ks{ks}")
            r = RING0 + (ks % RING) * 8
            b = 24 + (ks & 1) * 12
            nb = 24 + ((ks + 1) & 1) * 12
            if ks == 20: self.flush_fill()
            lg.wait(f"A{ks}")
            n = 0
            for mt in range(3):
                for par in range(2):
                    mfma(mt, par, b + 4 * mt, r + 4 * par, ks == 0)
                    n += 1
                    if n == 1:
                        if ks + 1 < NMAIN:
                            for m2 in range(3): self.wread(ks + 1, m2, nb + 4 * m2, f"A{ks+1}")
                        if ks + 1 >= NMAIN: self.fill(20)
                    if n == 6: state["done"] = ks
                    if n in (2, 4, 6):
                        did = self.vslot(1)
                        self.fill((8 if did else 20) - (4 if n == 6 else 0))
                    if n == 3: swaps(ks + 1)
                    if n == 5: self.fill(24)
        self.flush_fill()
        st("main")
        NB = 4
        seq = [(mt, ks) for mt in range(3) for ks in list(range(NMAIN, 40)) + [40]]
        def aread(i):
            mt, ks = seq[i]
            self.wread(ks, mt, 24 + (i % NB) * 4, f"B{i}")
        if first: a("s_barrier")
        for i in range(NB - 1): aread(i)
        self.ensure("stl", 4)
        R = TMP
        Ls, Lb = a.label("stspin"), a.label("stback")
        f = [lambda: vm.wait("stl"), f"v_max_u32 v18, v{R+1}, v{R+3}"]
        for i in range(1, 4): f.append(f"v_max3_u32 v18, v18, v{R+4*i+1}, v{R+4*i+3}")
        f += [lambda: a(f"v_cmp_eq_u32 vcc, -1, v18\ns_cbranch_vccnz {Ls}\n{Lb}:")]
        rl = "\n".join(f"    buffer_load_dwordx4 v[{TMP+i*4}:{TMP+i*4+3}], v6, s[8:11], s26 offen offset:{i*512} sc1" for i in range(4))
        mx = "\n".join(f"    v_max3_u32 v18, v18, v{R+4*i+1}, v{R+4*i+3}" for i in range(1, 4))
        self.tail_blocks.append(f"""
{Ls}:
    s_mov_b32 s35, {SPIN}
{Ls}_l:
{rl}
    s_waitcnt vmcnt(0)
    v_max_u32 v18, v{R+1}, v{R+3}
{mx}
    v_cmp_eq_u32 vcc, -1, v18
    s_cbranch_vccz {Lb}
    s_sub_u32 s35, s35, 1
    s_cbranch_scc0 {Ls}_l
    s_branch {Lb}
""")
        for k in range(4): f += [f"v_add_f32 v{R+k}, v{R+k}, v{R+4+k}", f"v_add_f32 v{R+8+k}, v{R+8+k}, v{R+12+k}"]
        for k in range(4): f.append(f"v_add_f32 v{R+k}, v{R+k}, v{R+8+k}")
        for k in range(4): f.append(f"v_mov_b32 v{R+4+k}, v{R+k}")
        for k in range(4): f.append(f"v_permlane32_swap_b32 v{R+k}, v{R+4+k}")
        for k in range(4): f.append(f"v_add_f32 v{R+k}, v{R+k}, v{R+4+k}")
        recs = []
        for t in range(2):
            l = []; rr = l.append
            b = R + 2 * t
            vmn, vr = R + 4 + 2 * t, R + 5 + 2 * t
            rr(f"v_mul_f32 v{vmn}, 0x3acccccd, v{b}")
            rr(f"v_mul_f32 v{vr}, 0x3acccccd, v{b+1}")
            rr(f"v_fma_f32 v{vr}, -v{vmn}, v{vmn}, v{vr}")
            rr(f"v_max_f32 v{vr}, 0, v{vr}")
            rr(f"v_cvt_pk_bf16_f32 v{40+4*t}, -v{vmn}, -v{vmn}")
            rnd_bf16(rr, vr)
            rr(f"v_and_b32 v{41+4*t}, 0xffff, v{40+4*t}")
            rr(f"v_add_f32 v{vr}, 0x3727c5ac, v{vr}")
            rnd_bf16(rr, vr)
            rr(f"v_sqrt_f32 v{vr}, v{vr}")
            rr(f"v_mov_b32 v{42+4*t}, v{40+4*t}")
            rnd_bf16(rr, vr)
            rr(f"v_mul_f32 v{16+t}, v{vr}, v{vr}")
            rr(f"v_rcp_f32 v{vr}, v{vr}")
            rr(f"v_mov_b32 v{43+4*t}, v{41+4*t}")
            rr(f"v_mul_f32 v{12+t}, {hex(f2u(GC0))}, v{vr}")
            rr(f"v_mul_f32 v{14+t}, v{vr}, v{vr}")
            rr(f"v_mul_f32 v{vr}, {hex(f2u(GC1))}, v{vr}")
            rr(f"v_mul_f32 v{14+t}, v{14+t}, v{vr}")
            recs.append(l)
        for x, y in zip(*recs): f += [x, y]
        f += [f"s_lshl_b32 s29, s24, 2", "s_lshr_b32 s34, s21, 3", "s_add_u32 s29, s29, s34", "s_lshl_b32 s29, s29, 7",
              f"s_add_u32 s29, s29, {F1 + layer*16384}", "s_lshl_b32 s34, s45, 2", "v_mov_b32 v8, s34", f"v_mov_b32 v9, {NON}",
              "s_lshl_b32 s36, s44, 2", "s_add_u32 s36, s36, s3", "s_lshl_b32 s36, s36, 7", f"s_add_u32 s36, s36, {F1 + layer*16384}"]
        self.fq.extend(f)
        for i, (mt, ks) in enumerate(seq):
            if ks == 40 and mt == 0: self.flush_fill()
            lg.wait(f"B{i}")
            A = 24 + (i % NB) * 4 if ks < 40 else ("a[240:243]", "a[244:247]", "a[246:249]")[mt]
            for par in range(2):
                B = RING0 + (ks % RING) * 8 + 4 * par if ks < 40 else 40 + 4 * par
                mfma(mt, par, A, B)
                if par == 0:
                    if i + NB - 1 < len(seq): aread(i + NB - 1)
                    if mt == 0 and ks + 1 < 40: swaps(ks + 1)
                    else:
                        did = self.vslot(1) if ks % 4 else 0
                        self.fill(20 - 8 * did)
                else:
                    did = self.vslot(1)
                    self.fill(20 - 8 * did)
            if ks == 40:
                self.flush_fill()
                st(f"pass{mt}")
                if mt == 2: break
                pre = ["s_nop 3"]
                e = self.epi_ops(mt, 0, False) + self.epi_ops(mt, 1, False)
                k = min(len(pre), 10)
                self.fq.extend(pre[:k] + e + pre[k:])
                if mt == 1:
                    self.fq.insert(len(self.fq) // 4, lambda: (vm.wait("h0"), self.flag_store("s29", 0)))
                    self.fq.insert(len(self.fq) - 24, lambda: self.poll_issue("s36", 18))

    def g2_setup(self, layer):
        HS = H1 if layer == 0 else H2
        f = ["v_and_b32 v19, 15, v1", "v_lshrrev_b32 v20, 4, v1", "v_lshlrev_b32 v21, 4, v19",
             "v_lshl_add_u32 v21, v20, 9, v21",
             "v_lshl_add_u32 v22, v3, 11, v21",
             f"s_mul_i32 s26, s44, {2*96*1024}", f"s_mul_i32 s34, s3, {24*1024}", "s_add_u32 s26, s26, s34", f"s_add_u32 s26, s26, {HS}"]
        for n in range(4):
            f += [f"s_add_u32 s34, s3, {n}", "s_and_b32 s35, s34, 1", f"s_mul_i32 s35, s35, {96*1024}", "s_lshl_b32 s34, s34, 7",
                  "s_and_b32 s34, s34, 256", f"s_add_u32 s{40+n}, s26, s35", f"s_add_u32 s{40+n}, s{40+n}, s34"]
        return f

    def gemm2(self, layer):
        a, vm, lg, st = self.a, self.vm, self.lg, self.st
        last = layer == 1
        state = dict(done=-1, parts=1, free=False)
        def hl(j, n):
            P, jj = j // 4, j % 4
            r = hslot(j) + n * 4
            def fn():
                a(f"s_add_u32 s31, s{40+n}, s{4+jj}")
                a(f"buffer_load_dwordx4 v[{r}:{r+3}], v22, s[8:11], s31 offen offset:{P*1024} sc1")
                vm.issue(f"K{j}")
            return (lambda: state["done"] >= j - 9 and j // 4 < state["parts"] and (j % 9 < 6 or state["free"]), fn)
        rest = list(self.vq)
        hq = [hl(j, n) for j in range(12) for n in range(4)]
        self.poll_check("s36", 18, 0xff)
        st("p0ok")
        self.vq = deque(hq[:12] + rest + hq[12:])
        e = self.epi_ops(2, 0, True) + [lambda: (vm.wait("h1"), self.flag_store("s29", 32))] + self.epi_ops(2, 1, True)
        for k, x in enumerate(e):
            x() if callable(x) else a(x)
            if k % (EPI_LD[layer]) == 0: self.vslot(1)
        self.poll_issue("s36", 18)
        st("epi2")
        XRr, Yr = hslot(3), hslot(4)
        U, UY = hslot(6), hslot(6) + 20
        def xl(base, reg, mt):
            def fn():
                if mt % 2 == 0: a(f"s_add_u32 s30, s32, {base + (mt//2)*4096}")
                a(f"buffer_load_dwordx2 v[{reg+2*mt}:{reg+2*mt+1}], v21, s[8:11], s30 offen offset:{(mt%2)*2048} sc1"); vm.issue("x")
            return (lambda: state["done"] >= 4, fn)
        for mt in range(5): self.vq.append(xl(X1, XRr, mt))
        if not last:
            for mt in range(5): self.vq.append(xl(Y, Yr, mt))
        f = [f"s_mul_i32 s32, s44, {TB}", "s_mul_i32 s33, s45, 10240", "s_add_u32 s32, s32, s33", "s_lshr_b32 s33, s3, 1", "s_lshl_b32 s33, s33, 8",
             "s_and_b32 s34, s3, 1", "s_lshl_b32 s34, s34, 3", "s_add_u32 s33, s33, s34",
             "s_add_u32 s32, s32, s33"]
        for n in range(4):
            f += [f"s_add_u32 s34, s3, {n}", "s_and_b32 s34, s34, 3", "s_mul_i32 s34, s34, 5120", f"s_add_u32 s34, s34, {RB}", f"v_add_u32 v{104+n}, s34, v2"]
        if last:
            f += ["v_mul_u32_u24 v23, 2560, v19", "v_lshl_add_u32 v23, v20, 3, v23", f"s_mul_i32 s26, s44, {64*1280}", "s_mul_i32 s27, s33, 160",
                  "s_add_u32 s26, s26, s27", "s_mul_i32 s27, s45, 160", "s_add_u32 s26, s26, s27"]
        else:
            f += ["s_lshl_b32 s22, s44, 12", "s_lshl_b32 s26, s3, 10", "s_add_u32 s26, s26, s22", f"s_add_u32 s26, s26, {ST2}",
                  "s_lshr_b32 s27, s45, 1", "s_lshl_b32 s27, s27, 8", "s_and_b32 s28, s45, 1", "s_lshl_b32 s28, s28, 3", "s_add_u32 s27, s27, s28",
                  "s_add_u32 s27, s27, s26",
                  "s_lshl_b32 s28, s45, 9", "s_add_u32 s22, s22, s28", "s_add_u32 s22, s22, s33", f"s_add_u32 s22, s22, {ST3}",
                  f"s_add_u32 s23, s32, {X3}", "s_add_u32 s25, s23, 4096", "s_add_u32 s28, s23, 8192"]
        def mf(j, n, mt):
            acc = ACC2 + (n * 5 + mt) * 4
            accs = f"v[{acc}:{acc+3}]"
            i = j * 5 + mt
            r = hslot(j) + n * 4
            a(f"v_mfma_f32_16x16x32_bf16 {accs}, a[{4*i}:{4*i+3}], v[{r}:{r+3}], {'0' if j == 0 else accs}")
        def need(j):
            self.ensure(f"K{j}", 4)
            if not last and 5 * j >= PRE_D: self.ensure(f"D{j}", 5)
            vm.wait(f"D{j}")
            vm.wait(f"K{j}")
        NK = 9
        for j in range(NK):
            if j == 1:
                self.poll_check("s36", 18, 0xff00); state["parts"] = 2
            need(j)
            if j in (0, 4, 8): st(f"K{j}")
            k = 0
            for n in range(4):
                for mt in range(5):
                    mf(j, n, mt)
                    k += 1
                    if k == 20: state["done"] = j
                    if j == 1 and k == 8:
                        vm.wait("h2"); self.flag_store("s29", 64); state["free"] = True
                        self.fq.extend(f)
                    elif j == 3 and k == 6: self.poll_issue("s36", 18)
                    elif j == 4 and k == 4:
                        self.flush_fill()
                        self.poll_check("s36", 18, 0xff0000); state["parts"] = 3
                    elif k % 4 == 1: self.vslot(1)
                    else: self.fill(4)
        for j in range(NK, 12): self.ensure(f"K{j}", 4)
        io = deque()
        T1, T2, T3 = hslot(5), 44, 64
        T1 = 240
        land = {1: 44 - 0, 2: 64, 3: 84}
        A = lambda i: f"v[{ACC2+2*i}:{ACC2+2*i+1}]"
        def wr(n): return [f"ds_write_b128 v{104+n}, v[{ACC2+(n*5+mt)*4}:{ACC2+(n*5+mt)*4+3}] offset:{mt*1024 + (20480 if n == 2 else 0)}" for mt in range(5)]
        def rd(n): return [f"ds_read_b128 v[{land[n]+4*mt}:{land[n]+4*mt+3}], v104 offset:{mt*1024 + (20480 if n == 2 else 0)}" for mt in range(5)]
        NS = 5 * (12 - NK)
        for n in (1, 2, 3, 0):
            k = 0
            for j in range(NK, 12):
                if n == 1: need(j)
                for mt in range(5):
                    mf(j, n, mt)
                    k += 1
                    if io and k >= 3: a(io.popleft())
                    elif k % 2 == 1: self.vslot(1)
                    else: self.fill(4)
            while io: a(io.popleft())
            if n != 1: a("s_waitcnt lgkmcnt(0)\ns_barrier")
            if n == 0: break
            w, r = wr(n), (rd(n - 1) if n > 1 else [])
            for x in range(5):
                if r: io.append(r[x])
                io.append(w[x])
            if n == 2:
                self.vslot(100)
                assert not self.vq
                self.fq.append(lambda: vm.wait("x"))
                for i in range(10): self.fq.extend([f"v_lshlrev_b32 v{U+2*i}, 16, v{XRr+i}", f"v_and_b32 v{U+2*i+1}, s39, v{XRr+i}"])
        st("kloop")
        for x in rd(3): a(x)
        self.flush_fill()
        for i in range(10): a(f"v_pk_add_f32 {A(i)}, {A(i)}, v[{U+2*i}:{U+2*i+1}]")
        for n in range(1, 4):
            if n == 3: a("s_waitcnt lgkmcnt(0)")
            for i in range(10): a(f"v_pk_add_f32 {A(i)}, {A(i)}, v[{land[n]+2*i}:{land[n]+2*i+1}]")
        lg.q = []
        st("reduced")
        Pk, T = 44, 56
        if last:
            for i in range(10): a(f"v_cvt_pk_bf16_f32 v{Pk+i}, v{ACC2+2*i}, v{ACC2+2*i+1}")
            for mt in range(5):
                a(f"buffer_store_dwordx2 v[{Pk+2*mt}:{Pk+2*mt+1}], v23, s[12:15], s26 offen offset:{32*mt}")
            return
        def xsum(v0, v1, t0, t1):
            a(f"""
    v_mov_b32 v{t0}, v{v0}
    v_mov_b32 v{t1}, v{v1}
    v_permlane16_swap_b32 v{v0}, v{t0}
    v_permlane16_swap_b32 v{v1}, v{t1}
    v_pk_add_f32 v[{v0}:{v1}], v[{v0}:{v1}], v[{t0}:{t1}]
    v_mov_b32 v{t0}, v{v0}
    v_mov_b32 v{t1}, v{v1}
    v_permlane32_swap_b32 v{v0}, v{t0}
    v_permlane32_swap_b32 v{v1}, v{t1}
    v_pk_add_f32 v[{v0}:{v1}], v[{v0}:{v1}], v[{t0}:{t1}]
    """)
        def stats_partial(sreg):
            a(f"v_pk_add_f32 v[12:13], {A(0)}, {A(1)}")
            a(f"v_pk_mul_f32 v[14:15], {A(0)}, {A(0)}")
            for i in range(1, 10):
                if i >= 2: a(f"v_pk_add_f32 v[12:13], v[12:13], {A(i)}")
                a(f"v_pk_fma_f32 v[14:15], {A(i)}, {A(i)}, v[14:15]")
            a("v_add_f32 v12, v12, v13\nv_add_f32 v13, v14, v15")
            xsum(12, 13, 14, 15)
            a("s_mov_b64 exec, 0xffff")
            self.dstore([f"buffer_store_dwordx2 v[12:13], v2, s[8:11], {sreg} offen"])
            a("s_mov_b64 exec, -1")
        stats_partial("s27")
        a(f"buffer_load_dwordx4 v[76:79], v2, s[8:11], s26 offen sc1")
        for i in range(10): a(f"v_cvt_pk_bf16_f32 v{Pk+i}, v{ACC2+2*i}, v{ACC2+2*i+1}")
        for i in range(10):
            a(f"v_lshlrev_b32 v{UY+2*i}, 16, v{Yr+i}")
            a(f"v_and_b32 v{UY+2*i+1}, s39, v{Yr+i}")
        for i in range(10):
            a(f"v_lshlrev_b32 v{ACC2+2*i}, 16, v{Pk+i}")
            a(f"v_and_b32 v{ACC2+2*i+1}, s39, v{Pk+i}")
        for i in range(10): a(f"v_pk_mul_f32 v[{T+2*i}:{T+2*i+1}], {A(i)}, v[{UY+2*i}:{UY+2*i+1}]")
        a(f"""
    s_lshl_b32 s29, s44, 7
    s_add_u32 s29, s29, {F3}
    s_lshl_b32 s34, s45, 4
    s_lshl_b32 s35, s3, 2
    s_add_u32 s34, s34, s35
    v_mov_b32 v8, s34
    s_lshl_b32 s36, s24, 7
    s_add_u32 s36, s36, {F3}
    s_mov_b32 s35, {SPIN}
    """)
        L0 = a.label("g2poll"); L1 = a.label("g2ok")
        a(f"""
{L0}:
    s_waitcnt vmcnt(0)
    v_max_u32 v17, v77, v79
    v_cmp_eq_u32 vcc, -1, v17
    s_cbranch_vccz {L1}
    buffer_load_dwordx4 v[76:79], v2, s[8:11], s26 offen sc1
    s_sub_u32 s35, s35, 1
    s_cbranch_scc0 {L0}
    s_waitcnt vmcnt(0)
{L1}:
    v_pk_add_f32 v[12:13], v[76:77], v[78:79]
    """)
        vm.q = []
        st("polled")
        xsum(12, 13, 14, 15)
        ln_stats(a, 12, 13, 14, 15)
        a("v_mul_f32 v14, v14, v15")
        for i in range(10):
            a(f"v_pk_fma_f32 {A(i)}, v[{T+2*i}:{T+2*i+1}], v[14:15], {A(i)} op_sel:[0,1,0] op_sel_hi:[1,1,1]")
        for i in range(10):
            a(f"v_pk_fma_f32 {A(i)}, v[{UY+2*i}:{UY+2*i+1}], v[14:15], {A(i)} op_sel_hi:[1,0,1] neg_lo:[0,1,0] neg_hi:[0,1,0]")
        for i in range(10):
            a(f"v_cvt_pk_bf16_f32 v{Pk+i}, v{ACC2+2*i}, v{ACC2+2*i+1}")
        l = []
        for mt in range(5):
            l.append(f"buffer_store_dwordx2 v[{Pk+2*mt}:{Pk+2*mt+1}], v21, s[8:11], {('s23', 's25', 's28')[mt//2]} offen offset:{(mt%2)*2048}"); vm.issue("x3")
        self.dstore(l)
        stats_partial("s22"); vm.issue("sts")
        vm.wait("x3")
        st("x3drained")
        self.flag_store("s29", 0)
        self.poll_issue("s36", 18)
        self.poll_check("s36", 18, 0xffffffff)
        st("x3ok")

def mega_kernel(kidx=2):
    a = Asm()
    a.uid = 1000
    st = Stamps(a, kidx)
    m = Mega(st)
    m.vm.maxn = 63
    a("s_cmp_ge_u32 s2, 256\ns_cbranch_scc1 L_mega_end")
    st("start")
    m.front()
    sts = [st]
    for layer in range(2):
        if DIAG_ON(): sts[-1].stash(253 + layer)
        sts.append(Stamps(a, kidx + 1 + layer))
        m.st = sts[-1]
        m.st("lstart")
        m.gemm1(layer)
        m.gemm2(layer)
    m.st("end")
    if DIAG_ON():
        a("s_waitcnt vmcnt(0)"); m.st("drained"); sts[0].unstash(253); sts[1].unstash(254); m.st.flush()
    a("L_mega_end:\ns_endpgm")
    for b in m.tail_blocks: a(b)
    a("L_mega_last:\ns_endpgm")
    return a
```

```python
import sys
from asm import *
from common import *
import k_mega as M

NAME = "interleave_layers__ssm_conv_h3__glu_gated_geglu__prompt"
ref = open(f"cdna_kernels/{NAME}.s.ref").read()
head = "".join(l + "\n" for l in ref.splitlines() if l.startswith(";") and "@launch" not in l and "Override" not in l and "grid=ceil" not in l)

def build(mode="m1"):
    ks = []
    ks.append((NAME + "_kernel", M.mega_kernel(), 512, 256, 256, 256, M.GEMM_LDS))
    out = head
    for n, a, v, acc, gr, bl, lds in ks:
        out += f"; @launch grid=({gr},1,1) block=({bl},1,1) lds={lds}\n"
    out += '.amdgcn_target "amdgcn-amd-amdhsa--gfx950"\n.text\n'
    for n, a, *_ in ks:
        out += kernel_text(n, a)
    out += '.section .rodata,"a"\n'
    for n, a, v, acc, *_ in ks:
        out += descriptor(n, v, 102, acc)
    return out

if __name__ == "__main__":
    dst = sys.argv[1] if len(sys.argv) > 1 else f"cdna_kernels/{NAME}.s"
    import common, json
    if len(sys.argv) > 2 and sys.argv[2].startswith("diag"): common.DIAG = True
    if len(sys.argv) > 2 and sys.argv[2] == "diagc": common.STAMP_OP = "s_memtime"
    open(dst, "w").write(build())
    if common.DIAG: json.dump(common.STAMP_NAMES, open(dst + ".json", "w"))
    print("wrote", dst)
```

```python
from common import *
from collections import deque
import struct, math, os

def f2u(x): return struct.unpack("<I", struct.pack("<f", x))[0]
GC0 = -2.0 * math.sqrt(2.0 / math.pi) * math.log2(math.e)
GC1 = GC0 * 0.044715

GA, UA = 0, 61440
RB = 122880
RY = RB + 20480
GEMM_LDS = 163840
RING = 12
NMAIN = 40 - RING
ACC1 = 48
TMP = 144
RING0 = 160
ACC2 = 24
F1 = FL
F3 = FL + 32768
XID = FL + 40960
SH = FL + 57344
GO = FL + 58368
SPIN = 0x40000
PF = FL + 59392
RF = FL + 63488
CA = 110592
CWS = 8704
CH = CA + 4 * CWS
KT, VT, OUT, QS = CA, CA + 12288, 86784, 98304
NON = "s96"
CONV_W = 21
NROT = 7
PRE_W = 3
CONV_D = 0
PRE_D = 10
WBL2 = int(os.environ.get('WBL2', '3'))
OUTF = os.environ.get('OUTF', '')
IDLE_W = 0
WG, WL = 's0', 's1'
EPI_LD = [6, 9]
XSKIP = 2

def cost(s):
    op = s.split()[0]
    if op.startswith(("v_exp", "v_rcp", "v_sqrt", "v_swap", "v_permlane")): return 8
    return 4

def hslot(j): return (RING0 + (j % 9) * 16) if (j % 9) < 6 else (112 + ((j % 9) - 6) * 16)

import os
DETAIL = os.environ.get('DETAIL', '')
class Mega:
    def __init__(self, st):
        self.a = st.a
        self.st = st
        self.vm = Cnt(self.a, "vmcnt", 63)
        self.lg = Cnt(self.a, "lgkmcnt", 15)
        self.tail_blocks = []
        self.vq = deque()
        self.fq = deque()

    def vslot(self, n=1):
        done = 0
        i = 0
        while done < n and i < len(self.vq):
            ok, fn = self.vq[i]
            if ok():
                del self.vq[i]; fn(); done += 1
            else:
                i += 1
        return done
    def ensure(self, tag, n):
        while self.vm.count.get(tag, 0) < n:
            assert self.vslot(1) == 1, tag
    def fill(self, budget):
        while self.fq:
            x = self.fq[0]
            c = 4 if callable(x) else cost(x)
            if c > budget: break
            self.fq.popleft()
            if callable(x): x()
            else: self.a(x)
            budget -= c
    def flush_fill(self):
        self.fill(1 << 30)

    def late_ids(self):
        self.a(f"""
    s_lshl_b32 s24, s20, 2
    s_add_u32 s24, s24, s3                  ; tb1 = 4G + w
    v_lshlrev_b32 v6, 4, v4
    v_lshl_add_u32 v5, v3, 10, v6
    v_lshl_add_u32 v6, v3, 11, v6
    v_bfe_u32 v10, v1, 2, 2
    v_lshl_add_u32 v10, v3, 3, v10
    v_mul_u32_u24 v10, 96, v10
    v_and_b32 v11, 3, v1
    v_lshl_add_u32 v10, v11, 3, v10
    v_bfe_u32 v11, v1, 4, 1
    v_mul_u32_u24 v11, {UA}, v11
    v_add_u32 v10, v10, v11
    v_lshlrev_b32 v11, 2, v4                ; (lane&31)*4
    s_lshr_b32 s38, s21, 1
    s_xor_b32 s38, s38, s21
    s_and_b32 s38, s38, 1
    """)

    def wread(self, ks, mt, dst, tag):
        if ks == 40: return
        for h in range(2):
            self.a(f"ds_read_b64_tr_b16 v[{dst+2*h}:{dst+2*h+1}], v10 offset:{ks*1536 + mt*32 + h*384}"); self.lg.issue(tag)

    def epi_ops(self, mt, par, packed):
        acc = ACC1 + (mt * 2 + par) * 16
        T = TMP + 8 * par
        o = []
        if packed:
            P = lambda i: f"v[{acc+2*i}:{acc+2*i+1}]"
            Tm = lambda i: f"v[{T+2*i}:{T+2*i+1}]"
            p = par
            for i in range(4): o.append(f"v_pk_mul_f32 {Tm(i)}, {P(i)}, {P(i)}")
            for i in range(4): o.append(f"v_pk_fma_f32 {Tm(i)}, {Tm(i)}, v[14:15], v[12:13] op_sel:[0,{p},{p}] op_sel_hi:[1,{p},{p}]")
            for i in range(4): o.append(f"v_pk_mul_f32 {Tm(i)}, {Tm(i)}, {P(i)}")
            for i in range(8): o.append(f"v_exp_f32 v{T+i}, v{T+i}")
            for i in range(4): o.append(f"v_pk_mul_f32 {P(i)}, {P(i)}, {P(i+4)}")
            for i in range(4): o.append(f"v_pk_fma_f32 {Tm(i)}, {Tm(i)}, v[16:17], v[16:17] op_sel:[0,{p},{p}] op_sel_hi:[1,{p},{p}]")
            for i in range(8): o.append(f"v_rcp_f32 v{T+i}, v{T+i}")
            for i in range(4): o.append(f"v_pk_mul_f32 {P(i)}, {P(i)}, {Tm(i)}")
        else:
            for i in range(8): o.append(f"v_mul_f32 v{T+i}, v{acc+i}, v{acc+i}")
            for i in range(8): o.append(f"v_fma_f32 v{T+i}, v{T+i}, v{14+par}, v{12+par}")
            for i in range(8): o.append(f"v_mul_f32 v{T+i}, v{T+i}, v{acc+i}")
            for i in range(8):
                o.append(f"v_exp_f32 v{T+i}, v{T+i}")
                o.append(f"v_mul_f32 v{acc+i}, v{acc+i}, v{acc+8+i}")
            for i in range(8): o.append(f"v_fma_f32 v{T+i}, v{T+i}, v{16+par}, v{16+par}")
            for i in range(8): o.append(f"v_rcp_f32 v{T+i}, v{T+i}")
            for i in range(8): o.append(f"v_mul_f32 v{acc+i}, v{acc+i}, v{T+i}")
        for i in range(4): o.append(f"v_cvt_pk_bf16_f32 v{acc+8+i}, v{acc+2*i}, v{acc+2*i+1}")
        def store():
            ins = f"buffer_store_dwordx4 v[{acc+8}:{acc+11}], v2, s[8:11], s{27+par} offen offset:{mt*1024}"
            if self.layer == 0: self.a(ins + " sc1")
            else: self.dstore([ins])
            self.vm.issue(f"h{mt}")
        o.append(store)
        return o

    def dstore(self, instrs):
        a = self.a
        Ls, Lb = a.label("wt"), a.label("wb")
        a(f"s_cmp_eq_u32 s38, 0\ns_cbranch_scc1 {Ls}")
        for i in instrs: a(i)
        a(f"{Lb}:")
        self.tail_blocks.append(f"{Ls}:\n" + "\n".join(i + (" sc1" if i.startswith("buffer_store") else "") for i in instrs) + f"\ns_nop 1\ns_branch {Lb}\n")

    def flag_store(self, sreg, off):
        self.a("s_mov_b64 exec, 1")
        self.dstore([f"buffer_store_dword v9, v8, s[8:11], {sreg} offen offset:{off}"])
        self.a("s_mov_b64 exec, -1")
        self.vm.issue("flag")

    def writeback(self):
        a = self.a
        Lq, Lr = a.label("wb"), a.label("wbd")
        a(f"s_or_b32 s23, s21, s3\ns_cmp_eq_u32 s23, 0\ns_cbranch_scc1 {Lq}\nbuffer_load_dword a255, v11, s[8:11], s36 offen\n{Lr}:")
        self.tail_blocks.append(f"{Lq}:\nbuffer_wbl2 sc1\ns_branch {Lr}\n")
        self.vm.issue("wb")

    def poll_issue(self, sreg, dst):
        self.a(f"buffer_load_dword v{dst}, v11, s[8:11], {sreg} offen sc1"); self.vm.issue("poll")
    def poll_check(self, sreg, dst, mask):
        a = self.a
        self.vm.wait("poll")
        Lr, Lb = a.label("spin"), a.label("back")
        a(f"""
    v_cmp_eq_u32 vcc, {NON}, v{dst}
    s_and_b32 s34, vcc_lo, {hex(mask)}
    s_cmp_lg_u32 s34, {hex(mask)}
    s_cbranch_scc1 {Lr}
{Lb}:
    """)
        self.tail_blocks.append(f"""
{Lr}:
    s_mov_b32 s35, {SPIN}
{Lr}_l:
    buffer_load_dword v{dst}, v11, s[8:11], {sreg} offen sc1
    s_waitcnt vmcnt(0)
    v_cmp_eq_u32 vcc, {NON}, v{dst}
    s_nop 1
    s_and_b32 s34, vcc_lo, {hex(mask)}
    s_cmp_eq_u32 s34, {hex(mask)}
    s_cbranch_scc1 {Lb}
    s_sub_u32 s35, s35, 1
    s_cbranch_scc0 {Lr}_l
    s_branch {Lb}
""")

    def w1dma(self, i):
        a = self.a
        r, u = i // 3, i % 3
        if r < NROT:
            if u == 0:
                if r == 0: a(f"s_mul_i32 s47, s38, {NROT-1}")
                else: a(f"s_sub_u32 s47, {r}, s38")
                a(f"s_mul_i32 s33, s47, {64*3072}\ns_add_u32 s33, s33, {WG}\ns_mul_i32 s47, s47, 6144\ns_add_u32 s47, s47, {WL}")
            a(f"s_add_u32 m0, s47, {u*1024}\ns_nop 0")
        else:
            a(f"s_add_u32 m0, {WL}, {r*6144 + u*1024}")
            a(f"s_add_u32 s33, {WG}, {r*64*3072}" if u == 0 else "s_nop 0")
        a(f"buffer_load_dwordx4 v{12+u}, s[16:19], s33 offen lds"); self.vm.issue("W")
    def wvoff(self):
        for u in range(3):
            self.a(f"v_add_u32 v15, {64*u}, v1\nv_mul_u32_u24 v16, 10923, v15\nv_lshrrev_b32 v16, 16, v16\nv_mul_u32_u24 v16, 2976, v16\nv_lshl_add_u32 v{12+u}, v15, 4, v16")
    def wdl(self, j, mt):
        a = self.a
        i = j * 5 + mt
        if mt == 0:
            a(f"s_add_u32 s47, s46, s{97 + j%4}")
            if j >= 4: a(f"s_add_u32 s47, s47, {(j//4)*20480}")
        if mt < 4: a(f"buffer_load_dwordx4 a[{4*i}:{4*i+3}], v2, s[8:11], s47 offen offset:{mt*1024} sc1")
        else: a(f"buffer_load_dwordx4 a[{4*i}:{4*i+3}], v0, s[8:11], s47 offen sc1")
        self.vm.issue(f"D{j}")

    def checkflags(self, regs, mask_hi, reload):
        a = self.a
        Lr, Lb = a.label("cf"), a.label("cb")
        def test():
            t = ""
            for k, r in enumerate(regs):
                t += f"v_cmp_ne_u32 vcc, {NON}, v{r}\n"
                if k == len(regs) - 1 and mask_hi: t += "s_or_b32 s34, s34, vcc_lo\n"
                else: t += ("s_mov_b64 s[34:35], vcc\n" if k == 0 else "s_or_b64 s[34:35], s[34:35], vcc\n")
            return t + "s_cmp_eq_u64 s[34:35], 0\n"
        a(test() + f"s_cbranch_scc0 {Lr}\n{Lb}:")
        self.tail_blocks.append(f"{Lr}:\ns_mov_b32 s36, {SPIN}\n{Lr}_l:\n" + "\n".join(reload) + "\ns_waitcnt vmcnt(0)\n" + test() +
                                f"s_cbranch_scc1 {Lb}\ns_sub_u32 s36, s36, 1\ns_cbranch_scc0 {Lr}_l\ns_branch {Lb}\n")

    def front(self):
        a, vm, lg, st = self.a, self.vm, self.lg, self.st
        a(f"""
    s_load_dwordx4 s[44:47], s[0:1], 88
    s_load_dwordx2 s[24:25], s[0:1], 0      ; q
    s_load_dwordx2 s[28:29], s[0:1], 8      ; k
    s_load_dwordx2 s[32:33], s[0:1], 16     ; v
    s_load_dwordx2 s[20:21], s[0:1], 24     ; shift_k
    s_load_dwordx4 s[4:7], s[0:1], 32
    s_load_dwordx4 s[40:43], s[0:1], 56
    s_load_dwordx2 s[36:37], s[0:1], 72     ; w_down
    s_load_dwordx2 s[12:13], s[0:1], 80     ; out
    s_memrealtime s[98:99]
    v_lshrrev_b32 v2, 6, v0
    v_and_b32 v1, 63, v0
    v_readfirstlane_b32 s3, v2
    v_lshlrev_b32 v2, 4, v1                 ; lane*16
    v_lshrrev_b32 v3, 5, v1                 ; hf
    v_and_b32 v4, 31, v1                    ; c
    s_lshl_b32 s100, s2, 3
    s_lshl_b32 s101, s3, 1
    s_add_u32 s100, s100, s101
    v_add_u32 v16, s100, v3                 ; token
    v_mul_u32_u24 v17, 1280, v16
    v_lshl_add_u32 v17, v4, 3, v17          ; q offset
    s_lshr_b32 s100, s2, 6
    s_lshl_b32 s100, s100, 3
    s_and_b32 s101, s2, 7
    s_add_u32 s100, s100, s101
    s_bfe_u32 s101, s2, 0x30003
    s_mul_i32 s38, s100, {64*1280}
    s_mul_i32 s39, s101, 160
    s_add_u32 s38, s38, s39
    v_mov_b32 v31, 0x80000000
    """)
        for r in range(3):
            a(f"""
    v_add_u32 v24, {256*r}, v0
    v_mul_u32_u24 v25, 6554, v24
    v_lshrrev_b32 v25, 16, v25
    v_mul_u32_u24 v25, 1120, v25
    v_lshl_add_u32 v{18+r}, v24, 4, v25
    v_add_u32 v{18+r}, s38, v{18+r}
    v_subrev_u32 v{21+r}, {3*1280}, v{18+r}
    """)
        a(f"""
    v_cmp_gt_u32 vcc, 128, v0
    s_lshl_b32 s38, s3, 10
    s_mov_b32 s26, {ACT_BYTES}
    v_cndmask_b32 v20, v31, v20, vcc
    v_cmp_gt_u32 vcc, 158, v0
    s_mov_b32 s27, 0x20000
    s_mov_b32 s30, {ACT_BYTES}
    v_cndmask_b32 v23, v31, v23, vcc
    s_mov_b32 s31, 0x20000
    s_mov_b32 s34, {ACT_BYTES}
    s_mov_b32 s35, 0x20000
    s_add_u32 m0, s38, {KT}
    s_waitcnt lgkmcnt(0)
    v_mov_b32 v24, 0
    s_or_b32 s97, s2, s3
    s_cmp_lg_u32 s97, 0
    s_cbranch_scc1 L_nonce
    s_or_b32 s98, s98, 1
    v_mov_b32 v25, s98
    s_mov_b64 exec, 1
    global_store_dword v24, v25, s[44:45] sc1
    s_mov_b64 exec, -1
L_nonce:
    s_and_b32 s25, s25, 0xffff
    s_and_b32 s29, s29, 0xffff
    s_and_b32 s33, s33, 0xffff
    """)
        st("kernarg")
        for i in range(5): a(f"buffer_load_dwordx2 v[{32+2*i}:{33+2*i}], v17, s[24:27], 0 offen offset:{256*i}"); vm.issue("q")
        for r in range(3):
            if r: a(f"s_add_u32 m0, s38, {KT + 4096*r}\ns_nop 0")
            a(f"buffer_load_dwordx4 v{21+r}, s[28:31], 0 offen lds"); vm.issue("kv")
            a(f"s_add_u32 m0, s38, {VT + 4096*r}\ns_nop 0")
            a(f"buffer_load_dwordx4 v{18+r}, s[32:35], 0 offen lds"); vm.issue("kv")
        a(f"""
    ; tile thread: lanes 0..39 = (time block 2w + l/20, channel quad l%20)
    v_cmp_lt_u32 vcc, 19, v1
    v_subrev_u32 v26, 20, v1
    s_lshl_b32 s25, s3, 1
    v_cndmask_b32 v26, v1, v26, vcc         ; quad
    v_cndmask_b32 v27, 0, 1, vcc
    v_add_u32 v27, s25, v27
    s_mul_i32 s25, s101, 640
    v_lshl_add_u32 v28, v26, 5, s25
    s_and_b32 s21, s21, 0xffff
    s_mov_b32 s22, {D*8}
    s_mov_b32 s23, 0x20000
    buffer_load_dwordx4 v[44:47], v28, s[20:23], 0 offen
    buffer_load_dwordx4 v[48:51], v28, s[20:23], 0 offen offset:16
    s_mov_b32 s8, s46
    s_and_b32 s9, s47, 0xffff
    s_mov_b32 s10, {WS_USED}
    s_mov_b32 s11, 0x20000
    s_bitcmp1_b32 s3, 0
    s_cselect_b32 s16, s42, s40
    s_cselect_b32 s17, s43, s41
    s_and_b32 s17, s17, 0xffff
    s_mov_b32 s18, {D*F*2}
    s_mov_b32 s19, 0x20000
    s_and_b32 s13, s13, 0xffff
    s_mov_b32 s14, {ACT_BYTES}
    s_mov_b32 s15, 0x20000
    s_and_b32 s20, s2, 7
    s_lshr_b32 s21, s2, 3                   ; m
    s_lshr_b32 s27, s3, 1
    s_mul_i32 s30, s27, {32*3072}
    s_mul_i32 s31, s21, 96
    s_add_u32 {WG}, s30, s31
    s_mul_i32 s31, s27, 3072
    s_and_b32 s27, s3, 1
    s_mul_i32 s27, s27, {UA}
    s_add_u32 {WL}, s31, s27
    s_mov_b32 s39, 0xffff0000
    """)
        vm.issue("kv"); vm.issue("kv")
        a("v_mov_b32 v29, v16")
        vm.wait("q")
        st("q")
        a(f"v_lshlrev_b32 v15, 6, v4\nv_lshl_add_u32 v15, v3, 3, v15\ns_lshl_b32 s25, s3, 4\ns_add_u32 s25, s25, {QS}\nv_add_u32 v15, s25, v15")
        for i in range(5): a(f"ds_write_b64 v15, v[{32+2*i}:{33+2*i}] offset:{2048*i}")
        for i in range(10):
            a(f"v_lshlrev_b32 v{64+2*i}, 16, v{32+i}")
            a(f"v_and_b32 v{65+2*i}, s39, v{32+i}")
        X = lambda i: f"v[{64+2*i}:{65+2*i}]"
        a(f"v_pk_add_f32 v[84:85], {X(0)}, {X(1)}")
        a(f"v_pk_mul_f32 v[86:87], {X(0)}, {X(0)}")
        for i in range(1, 10):
            if i >= 2: a(f"v_pk_add_f32 v[84:85], v[84:85], {X(i)}")
            a(f"v_pk_fma_f32 v[86:87], {X(i)}, {X(i)}, v[86:87]")
        a("v_add_f32 v84, v84, v85\nv_add_f32 v85, v86, v87")
        for r in (8, 4, 2, 1):
            a(f"v_add_f32_dpp v84, v84, v84 row_ror:{r} row_mask:0xf bank_mask:0xf")
            a(f"v_add_f32_dpp v85, v85, v85 row_ror:{r} row_mask:0xf bank_mask:0xf")
        a("v_mov_b32 v86, v84\nv_mov_b32 v87, v85\nv_permlane16_swap_b32 v84, v86\nv_permlane16_swap_b32 v85, v87\nv_pk_add_f32 v[84:85], v[84:85], v[86:87]")
        ln_stats(a, 84, 85, 86, 87)
        a(f"""
    v_lshlrev_b32 v29, 3, v29
    s_mov_b32 s25, {MR}
    s_mov_b32 exec_lo, 1
    s_mov_b32 exec_hi, 1
    buffer_store_dwordx2 v[86:87], v29, s[8:11], s25 offen sc1
    s_mov_b64 exec, -1
    s_mul_i32 s25, s2, 1536
    s_add_u32 s25, s25, {ST1}
    v_lshl_add_u32 v15, v0, 4, s25
    v_cmp_gt_u32 vcc, 96, v0
    s_lshl_b32 s25, s101, 7
    s_add_u32 s25, s25, {SH}
    s_cmp_eq_u32 s100, 0
    s_cselect_b32 s25, s25, 0x80000000
    v_cndmask_b32 v15, v31, v15, vcc
    v_cndmask_b32 v52, 0, -1, vcc
    v_mov_b32 v16, s25
    v_cmp_eq_u32 vcc, 96, v0
    v_mov_b32 v53, v52
    v_mov_b32 v54, v52
    v_mov_b32 v55, v52
    v_cndmask_b32 v15, v15, v16, vcc
    buffer_store_dwordx4 v[52:55], v15, s[8:11], 0 offen sc1
    v_mul_u32_u24 v16, 1280, v27
    v_lshl_add_u32 v16, v26, 3, v16
    v_add_u32 v16, {KT}, v16
    v_mul_u32_u24 v17, 576, v26
    v_lshlrev_b32 v27, 4, v27
    v_sub_u32 v17, v17, v27
    v_add_u32 v17, {OUT + 112}, v17
    v_lshrrev_b32 v26, 3, v0
    v_and_b32 v27, 7, v0
    v_mul_u32_u24 v18, 144, v26
    v_lshl_add_u32 v18, v27, 4, v18
    v_add_u32 v18, {OUT}, v18
    v_lshlrev_b32 v19, 12, v26
    v_lshl_add_u32 v19, v27, 4, v19
    v_lshlrev_b32 v20, 4, v0
    v_add_u32 v20, {QS}, v20
    v_lshrrev_b32 v21, 2, v0
    v_lshlrev_b32 v21, 9, v21
    v_and_b32 v27, 3, v0
    v_lshl_add_u32 v21, v27, 4, v21
    v_cmp_gt_u32 vcc, 128, v0
    s_mul_i32 s22, s101, {80*XT_CH}
    s_lshl_b32 s23, s100, 7
    s_sub_u32 s22, s22, s23
    v_cndmask_b32 v22, v31, v19, vcc
    v_cndmask_b32 v23, v31, v21, vcc
    s_add_u32 s22, s22, {XT + 3968}
    s_mul_i32 s23, s21, {TB}
    s_lshl_b32 s25, s20, 6
    s_add_u32 s23, s23, s25
    s_add_u32 s23, s23, {X1}
    s_lshl_b32 s25, s20, 2
    s_sub_u32 s97, s21, s25
    s_and_b32 s97, s97, 31
    s_mul_i32 s40, s20, 20
    s_add_u32 s40, s40, s97
    s_sub_u32 s40, s40, 12                  ; g
    s_lshl_b32 s41, s40, 2
    s_add_u32 s41, s41, s3                  ; d
    s_mul_i32 s26, s3, 4608
    s_add_u32 s26, s26, {CH}
    s_add_u32 s27, s26, 512
    s_mov_b32 s32, s4
    s_and_b32 s33, s5, 0xffff
    s_mov_b32 s34, {D*S*2}
    s_lshl_b32 s25, s41, 12
    s_mov_b32 m0, s27
    s_cmp_lt_u32 s97, 12
    s_cbranch_scc1 L_touch
    buffer_load_dwordx4 v2, s[32:35], s25 offen lds
    buffer_load_dwordx4 v2, s[32:35], s25 offen offset:1024 lds
    buffer_load_dwordx4 v2, s[32:35], s25 offen offset:2048 lds
    buffer_load_dwordx4 v2, s[32:35], s25 offen offset:3072 lds
    s_waitcnt vmcnt(6)
    s_branch L_touched
L_touch:
    s_waitcnt vmcnt(2)
L_touched:
    """)
        vm.q = ["?"] * 6
        a("s_waitcnt lgkmcnt(0)\ns_barrier")
        st("loaded")
        a("global_load_dword v30, v24, s[44:45] sc1"); vm.issue("non")
        for r in range(3): a(f"ds_read_b128 v[{52+4*r}:{55+4*r}], v20 offset:{4096*r}")
        for r in range(11): a(f"ds_read_b64 v[{64+2*r}:{65+2*r}], v16 offset:{160*r}")
        side = deque()
        for r in range(3):
            side.append(lambda r=r: (a(f"buffer_store_dwordx4 v[{52+4*r}:{55+4*r}], v{21 if r < 2 else 23}, s[8:11], s23 offen sc1" + ("\ns_add_u32 s23, s23, 32768" if r < 2 else "")), vm.issue("o")))
        for h in range(2):
            b = 44 + 4 * h
            for j in range(4):
                for c in range(2):
                    src = b + 2 * c + j // 2
                    a((f"v_lshlrev_b32 v{160+4*j+2*h+c}, 16, v{src}" if j % 2 == 0 else f"v_and_b32 v{160+4*j+2*h+c}, s39, v{src}"))
        a("s_waitcnt lgkmcnt(4)")
        for r in range(8): a(f"ds_read_b64 v[{96+2*r}:{97+2*r}], v16 offset:{VT - KT + 160*r}")
        for r in range(11):
            if r == 7: a("s_waitcnt lgkmcnt(8)")
            for h in range(2):
                a(f"v_lshlrev_b32 v{112+4*r+2*h}, 16, v{64+2*r+h}")
                a(f"v_and_b32 v{113+4*r+2*h}, s39, v{64+2*r+h}")
        K = lambda r, h: f"v[{112+4*r+2*h}:{113+4*r+2*h}]"
        W = lambda j, h: f"v[{160+4*j+2*h}:{161+4*j+2*h}]"
        KV = lambda m, h: f"v[{176+4*m+2*h}:{177+4*m+2*h}]"
        V = lambda m, h: f"v[{208+4*m+2*h}:{209+4*m+2*h}]"
        for j in (3, 2, 1, 0):
            for m in range(8):
                for h in range(2):
                    if j == 3: a(f"v_pk_mul_f32 {KV(m,h)}, {K(m,h)}, {W(3,h)}")
                    else: a(f"v_pk_fma_f32 {KV(m,h)}, {K(m+3-j,h)}, {W(j,h)}, {KV(m,h)}")
                if m == 0 and side: side.popleft()()
        assert not side
        a("s_waitcnt lgkmcnt(0)")
        for m in range(8):
            for h in range(2):
                a(f"v_lshlrev_b32 v{208+4*m+2*h}, 16, v{96+2*m+h}")
                a(f"v_and_b32 v{209+4*m+2*h}, s39, v{96+2*m+h}")
                a(f"v_pk_mul_f32 {KV(m,h)}, {KV(m,h)}, {V(m,h)}")
        a("s_mov_b32 exec_hi, 0xff")
        for c in range(4):
            for i in range(4):
                m = 7 - 2 * i
                a(f"v_cvt_pk_bf16_f32 v{64+4*c+i}, v{176+4*m+c}, v{176+4*(m-1)+c}")
            a(f"ds_write_b128 v17, v[{64+4*c}:{67+4*c}] offset:{144*c}")
        a("s_mov_b64 exec, -1\ns_waitcnt lgkmcnt(0)\ns_barrier")
        st("tile")
        for r in range(3): a(f"ds_read_b128 v[{80+4*r}:{83+4*r}], v18 offset:{4608*r}")
        for r in range(3):
            a(f"s_waitcnt lgkmcnt({2-r})")
            a(f"buffer_store_dwordx4 v[{80+4*r}:{83+4*r}], v{19 if r < 2 else 22}, s[8:11], s22 offen sc1"); vm.issue("o")
            if r < 2: a("s_add_u32 s22, s22, 131072")
        Ln = a.label("non")
        vm.wait("non")
        a(f"""
    v_readfirstlane_b32 {NON}, v30
    s_cmp_lg_u32 {NON}, 0
    s_cbranch_scc1 {Ln}
    s_mov_b32 s22, {SPIN}
{Ln}_l:
    global_load_dword v30, v24, s[44:45] sc1
    s_waitcnt vmcnt(0)
    v_readfirstlane_b32 {NON}, v30
    s_cmp_lg_u32 {NON}, 0
    s_cbranch_scc1 {Ln}
    s_sub_u32 s22, s22, 1
    s_cbranch_scc0 {Ln}_l
{Ln}:
    s_lshl_b32 s22, s101, 5
    s_add_u32 s22, s22, s100
    s_lshl_b32 s22, s22, 4
    s_add_u32 s22, s22, {PF}
    v_mov_b32 v9, {NON}
    s_lshr_b32 s44, s21, 3
    s_lshl_b32 s45, s20, 2
    s_add_u32 s44, s44, s45                 ; tb2
    s_and_b32 s45, s21, 7                   ; cb2
    s_mul_i32 s46, s45, 245760
    s_mul_i32 s47, s3, 61440
    s_add_u32 s46, s46, s47
    s_add_u32 s46, s46, {WDL}
    v_add_u32 v0, 4096, v2
    s_mov_b32 s101, s97
    """)
        for jj in range(4):
            a(f"s_lshr_b32 s23, s21, 3\ns_add_u32 s23, s23, {jj}\ns_and_b32 s23, s23, 3\ns_mul_i32 s{97+jj}, s23, 5120")
        self.late_ids()
        self.wvoff()
        a(f"""
    s_lshl_b32 s23, s20, 9
    s_add_u32 s23, s23, {PF}
    v_lshlrev_b32 v15, 4, v4
    """)
        a(f"""
    s_waitcnt vmcnt(0)
    s_barrier
    s_cmp_lg_u32 s3, 0
    s_cbranch_scc1 L_noflag
    s_mov_b64 exec, 1
    buffer_store_dword v9, v24, s[8:11], s22 offen sc1
    s_mov_b64 exec, -1
L_noflag:
    """)
        st("pflag")
        vm.q = ["?"] * 4
        a(f"""
    buffer_load_dword v16, v15, s[8:11], s23 offen sc1
    """)
        vm.issue("pf")
        a(f"""
    s_getreg_b32 s30, hwreg(HW_REG_XCC_ID)
    s_lshl_b32 s22, s20, 11
    s_and_b32 s30, s30, 15
    s_add_u32 s22, s22, {XID}
    s_add_u32 s30, s30, {NON}
    s_lshl_b32 s31, s21, 6
    s_lshl_b32 s28, s3, 2
    s_add_u32 s31, s31, s28
    v_mov_b32 v8, s31
    v_mov_b32 v17, s30
    s_cmp_lt_u32 s101, 12
    s_cbranch_scc1 L_idle
    s_mov_b32 s37, s30
    s_lshl_b32 s42, s41, 12
    s_add_u32 s42, s42, {XT}
    s_add_u32 s4, s4, s25
    s_addc_u32 s5, s5, 0
    s_load_dword s28, s[4:5], 0
    s_lshr_b32 s29, s41, 1
    s_lshl_b32 s29, s29, 2
    s_add_u32 s6, s6, s29
    s_addc_u32 s7, s7, 0
    s_load_dword s29, s[6:7], 0
    s_mov_b32 s30, s26
    s_mul_i32 s26, s3, {CWS}
    s_add_u32 s26, s26, {CA}
    """)
        FB, GB, AC, QR = 64, 128, 32, 192
        a(f"""
    v_and_b32 v28, 15, v1                   ; b / a
    v_lshrrev_b32 v29, 4, v1                ; q
    v_mov_b32 v24, 0
    v_mov_b32 v25, 0
    v_mov_b32 v26, 0
    v_mov_b32 v27, 0
    v_lshl_add_u32 v31, v1, 3, s30
    ds_write_b64 v31, v[24:25]
    v_lshrrev_b32 v31, 1, v1
    v_mul_u32_u24 v31, 4288, v31
    v_and_b32 v56, 1, v1
    v_lshl_add_u32 v31, v56, 4, v31
    v_add_u32 v31, s26, v31
    s_mov_b64 exec, 15
    ds_write_b128 v31, v[24:27] offset:4096
    s_mov_b64 exec, -1
    ; F bases: 28 + 16 q - 4 (b&7) + (b>=8 ? 4288 : 0) + 1024 (3 - i)
    v_and_b32 v31, 7, v28
    v_lshlrev_b32 v31, 2, v31
    v_lshlrev_b32 v56, 4, v29
    v_sub_u32 v31, v56, v31
    v_lshrrev_b32 v57, 3, v28
    v_mul_u32_u24 v57, 4288, v57
    v_add3_u32 v31, v31, v57, s26
    v_add_u32 v59, 28, v31
    v_add_u32 v58, {28+1024}, v31
    v_add_u32 v57, {28+2048}, v31
    v_add_u32 v56, {28+3072}, v31
    v_lshlrev_b32 v20, 5, v28
    v_lshl_add_u32 v20, v29, 4, v20
    v_add_u32 v20, s30, v20
    s_lshl_b32 s43, s3, 6
    s_add_u32 s43, s43, s26
    v_lshlrev_b32 v21, 11, v3
    v_lshl_add_u32 v21, v28, 4, v21
    v_and_b32 v22, 1, v29
    v_lshl_add_u32 v21, v22, 3, v21
    v_add_u32 v21, s43, v21
    v_lshrrev_b32 v22, 2, v28
    v_mul_u32_u24 v22, {CWS+64}, v22
    v_and_b32 v23, 3, v28
    v_lshl_add_u32 v22, v23, 3, v22
    v_lshl_add_u32 v22, v29, 5, v22
    s_lshl_b32 s43, s3, 7
    s_add_u32 s43, s43, {CA}
    v_add_u32 v22, s43, v22
    v_mul_u32_u24 v23, {TB}, v3
    v_lshl_add_u32 v23, v4, 4, v23
    s_mul_i32 s43, s3, {2*TB}
    s_lshl_b32 s25, s40, 9
    s_add_u32 s43, s43, s25
    s_waitcnt lgkmcnt(0)
    ; h'[0] = bf16(h[0] + D[d])
    s_lshl_b32 s28, s28, 16
    s_and_b32 s25, s29, 0xffff0000
    s_lshl_b32 s29, s29, 16
    s_bitcmp1_b32 s41, 0
    s_cselect_b32 s29, s25, s29
    v_mov_b32 v24, s28
    v_add_f32 v24, s29, v24
    v_cvt_pk_bf16_f32 v24, v24, v24
    v_mov_b32 v25, s27
    """)
        vm.wait("pf")
        self.checkflags([16], False, ["buffer_load_dword v16, v15, s[8:11], s23 offen sc1"])
        st("pok")
        for i in range(4):
            a(f"buffer_load_dwordx4 v[{64+8*i}:{67+8*i}], v2, s[8:11], s42 offen offset:{1024*i} sc1"); vm.issue("x")
            a(f"buffer_load_dword v{68+8*i}, v2, s[8:11], s42 offen offset:{1024*i+16} sc1"); vm.issue("x")
        a("s_mov_b64 exec, 1\nbuffer_store_dword v17, v8, s[8:11], s22 offen sc1\ns_mov_b64 exec, -1"); vm.issue("xid")
        for i in range(PRE_W): self.w1dma(i)
        a(f"s_lshl_b32 s42, s3, 10\ns_add_u32 s42, s42, {MR}\nv_mov_b32 v16, v56\nv_mov_b32 v17, v57\nv_mov_b32 v18, v58\nv_mov_b32 v19, v59")
        vm.wait("x")
        a("v_writelane_b32 v92, 0, 63\nv_add_u32 v30, s26, v2")
        for i in range(4):
            b = 64 + 8 * i
            a(f"ds_write_b128 v30, v[{b}:{b+3}] offset:{4288 + 1024*i}")
            for k in range(4): a(f"v_alignbit_b32 v{96+4*i+k}, v{b+k+1}, v{b+k}, 16")
            a(f"ds_write_b128 v30, v[{96+4*i}:{99+4*i}] offset:{1024*i}")
        st("landed")
        a("s_mov_b64 exec, 1\nds_write_b16 v25, v24\ns_mov_b64 exec, -1")
        def reads(rho):
            l = []
            fb, gb = FB + (rho & 1) * 32, GB + (rho & 1) * 32
            for k in range(8):
                sg = k
                o = (512 * (1 - (sg & 1)) + 448 - 64 * rho) // 4
                for h in range(2):
                    l.append(f"ds_read2_b32 v[{fb+4*sg+2*h}:{fb+4*sg+2*h+1}], v{16 + sg//2} offset0:{o+2*h} offset1:{o+2*h+1}")
                l.append(f"ds_read_b128 v[{gb+4*k}:{gb+4*k+3}], v20 offset:{480 - 64*(rho - 8*k)}")
            return l
        for k, x in enumerate(reads(0)):
            if k in (10, 20): a("s_waitcnt lgkmcnt(3)")
            a(x)
        vq = deque()
        def qn(j, k):
            r = QR + 16 * k + 4 * j
            if k == 0:
                a(f"s_add_u32 s25, s43, {X1 + j*8*TB}")
                a(f"buffer_load_dwordx4 v[{r}:{r+3}], v23, s[8:11], s25 offen sc1")
            else:
                a(f"s_add_u32 s25, s42, {j*4096}")
                a(f"buffer_load_dwordx4 v[{r}:{r+3}], v2, s[8:11], s25 offen sc1")
            vm.issue("qn")
        allpf = [f"buffer_load_dword v{224+r}, v2, s[8:11], s23 offen offset:{1024*r} sc1" for r in range(4)]
        allrf = [f"buffer_load_dword v{228+r}, v2, s[8:11], s31 offen offset:{1024*r} sc1" for r in range(2)]
        a(f"s_mov_b32 s23, {PF}\ns_mov_b32 s31, {RF}")
        ld = lambda x, t: (lambda: (a(x), vm.issue(t)))
        Wq = [lambda i=i: self.w1dma(i) for i in range(PRE_W, CONV_W)]
        Dq = [lambda j=j, mt=mt: self.wdl(j, mt) for j in range(12) for mt in range(5)]
        Q = [lambda j=j, k=k: qn(j, k) for k in range(2) for j in range(4)]
        plan = [Wq[0:2], [ld(x, "apf") for x in allpf] + Wq[2:4],
                Wq[4:6] + [lambda: (vm.wait("apf"), self.checkflags([224, 225, 226, 227], False, allpf))] + Q[0:2],
                Q[2:5] + Wq[6:8], Q[5:8] + Wq[8:10], Wq[10:13], Wq[13:16], Wq[16:18]]
        assert len(Wq) == 18
        first = [True] * 8
        for rho in range(8):
            a("s_waitcnt lgkmcnt(0)")
            if rho == 4: st("class4")
            rd = deque(reads(rho + 1)) if rho < 7 else deque()
            vq = deque(plan[rho]); nper = len(vq)
            slots = [int((36 if rho < 7 else 16) * (k + 0.5) / nper) for k in range(nper)]
            n = 0
            for sg in range(8):
                for k in range(0, 8 - sg):
                    T = sg + k
                    acc = f"v[{AC+4*T}:{AC+4*T+3}]"
                    fr, gr = FB + (rho & 1) * 32 + 4 * sg, GB + (rho & 1) * 32 + 4 * k
                    a(f"v_mfma_f32_16x16x32_bf16 {acc}, v[{fr}:{fr+3}], v[{gr}:{gr+3}], {'0' if first[T] else acc}")
                    first[T] = False
                    if n in slots and vq: vq.popleft()()
                    elif rd and n < 32: a(rd.popleft())
                    n += 1
            while rd: a(rd.popleft())
            assert not vq
        st("mfma")
        for T in range(8):
            a(f"v_cvt_pk_bf16_f32 v{FB+2*T}, v{AC+4*T}, v{AC+4*T+1}")
            a(f"v_cvt_pk_bf16_f32 v{FB+2*T+1}, v{AC+4*T+2}, v{AC+4*T+3}")
            a(f"ds_write_b64 v21, v[{FB+2*T}:{FB+2*T+1}] offset:{256*T}")
        a("s_waitcnt lgkmcnt(0)\ns_barrier")
        for j in range(4):
            for par in range(2):
                r = AC + 4 * j + 2 * par
                a(f"ds_read_b64_tr_b16 v[{r}:{r+1}], v22 offset:{512*j + 2048*par}")
        vm.wait("qn")
        for j in range(4):
            a(f"s_waitcnt lgkmcnt({6-2*j})")
            o = AC + 16 + 4 * j
            for par in range(2):
                r = QR + 4 * j + 2 * par
                mr = f"v[{QR+16+4*j+2*par}:{QR+17+4*j+2*par}]"
                y = AC + 4 * j + 2 * par
                for h in range(2):
                    t = FB + 8 * h
                    a(f"v_lshlrev_b32 v{t}, 16, v{r+h}")
                    a(f"v_and_b32 v{t+1}, s39, v{r+h}")
                    a(f"v_lshlrev_b32 v{t+4}, 16, v{y+h}")
                    a(f"v_and_b32 v{t+5}, s39, v{y+h}")
                    a(f"v_pk_add_f32 v[{t+2}:{t+3}], v[{t}:{t+1}], {mr} op_sel_hi:[1,0] neg_lo:[0,1] neg_hi:[0,1]")
                    a(f"v_pk_mul_f32 v[{t+4}:{t+5}], v[{t+4}:{t+5}], {mr} op_sel:[0,1] op_sel_hi:[1,1]")
                    a(f"v_pk_fma_f32 v[{t}:{t+1}], v[{t+2}:{t+3}], v[{t+4}:{t+5}], v[{t}:{t+1}]")
                    a(f"v_cvt_pk_bf16_f32 v{o+2*par+h}, v{t}, v{t+1}")
            a(f"s_add_u32 s25, s43, {X1 + j*8*TB}")
            a(f"buffer_store_dwordx4 v[{o}:{o+3}], v23, s[8:11], s25 offen sc1"); vm.issue("o")
        for j in range(4):
            a(f"s_add_u32 s25, s43, {Y + j*8*TB}")
            a(f"buffer_store_dwordx4 v[{AC+4*j}:{AC+4*j+3}], v23, s[8:11], s25 offen sc1"); vm.issue("o")
        st("stored")
        vm.wait("o")
        a("s_barrier")
        st("drained")
        a("s_branch L_arrive")
        a(f"""
L_idle:
    s_mov_b64 exec, 1
    buffer_store_dword v17, v8, s[8:11], s22 offen sc1
    s_mov_b64 exec, -1
    s_mov_b32 s32, s36
    s_and_b32 s33, s37, 0xffff
    s_mov_b32 s37, s30
    s_mov_b32 s34, {D*F*2}
    s_mul_i32 s30, s20, 12
    s_add_u32 s30, s30, s101
    s_lshl_b32 s40, s30, 2
    s_add_u32 s40, s40, s3
    s_lshl_b32 s26, s3, 12
    s_add_u32 s26, s26, {CA}
    v_lshrrev_b32 v21, 2, v4
    v_lshlrev_b32 v21, 9, v21
    v_lshl_add_u32 v21, v3, 8, v21
    v_and_b32 v17, 3, v4
    v_lshl_add_u32 v21, v17, 6, v21
    v_add_u32 v21, s26, v21
    v_add_u32 v17, s26, v2
    s_mov_b32 s28, 0x05040100
    s_mov_b32 s29, 0x07060302
    s_getpc_b64 s[4:5]
L_pc:
    s_lshl_b32 s6, s101, 2
    s_add_u32 s6, s6, s3
    s_lshl_b32 s6, s6, 10
    v_lshl_add_u32 v22, v1, 7, s6
    v_cmp_gt_u32 vcc, L_mega_last-L_pc, v22
    s_and_b32 exec_lo, vcc_lo, 0xff
    s_mov_b32 exec_hi, 0
    s_cbranch_execz L_nocode
    global_load_dword a252, v22, s[4:5]
L_nocode:
    s_mov_b64 exec, -1
    s_mov_b32 s36, s33
    """)
        for i in range(IDLE_W): self.w1dma(i)
        a(f"""
    s_mov_b32 s33, s36
L_relay:
    s_mul_i32 s41, s40, 13108
    s_lshr_b32 s41, s41, 16
    s_mul_i32 s42, s41, 5
    s_sub_u32 s42, s40, s42                 ; strip
    s_mul_i32 s4, s41, {16*1280}
    s_lshl_b32 s5, s42, 8
    s_add_u32 s4, s4, s5
    s_add_u32 s5, s4, {8*1280}
    v_mul_u32_u24 v18, {4*1280}, v3
    v_lshl_add_u32 v18, v4, 3, v18
    """)
        for e in range(8):
            a(f"buffer_load_dwordx2 v[{32+2*e}:{33+2*e}], v18, s[32:35], s{4 + e//4} offen offset:{1280*(e%4)}")
        a(f"""
    s_lshr_b32 s27, s40, 1
    s_mul_i32 s27, s27, 10240
    v_lshlrev_b32 v22, 7, v1
    s_cmp_ge_u32 s40, 384
    s_cbranch_scc1 L_notouch
    buffer_load_dword a250, v22, s[16:19], s27 offen
    s_add_u32 s27, s27, 8192
    s_mov_b64 exec, 0xffff
    buffer_load_dword a251, v22, s[16:19], s27 offen
    s_mov_b64 exec, -1
L_notouch:
    ; cb = fb/3 ; P = fb%3 ; dest = (12 (cb>>3) + 4 P + ((cb&7)>>1))*5120 + (cb&1)*512
    s_mul_i32 s43, s41, 43
    s_lshr_b32 s43, s43, 7
    s_mul_i32 s6, s43, 3
    s_sub_u32 s6, s41, s6
    s_lshl_b32 s6, s6, 2
    s_lshr_b32 s7, s43, 3
    s_mul_i32 s7, s7, 12
    s_add_u32 s6, s6, s7
    s_bfe_u32 s7, s43, 0x20001
    s_add_u32 s6, s6, s7
    s_mul_i32 s6, s6, 5120
    s_and_b32 s7, s43, 1
    s_lshl_b32 s7, s7, 9
    s_add_u32 s6, s6, s7
    s_add_u32 s6, s6, {WDL}
    s_lshl_b32 s42, s42, 3
    """)
        for i in range(4):
            a(f"""
    v_add_u32 v19, s42, v3
    v_add_u32 v19, {2*i}, v19
    v_mul_u32_u24 v20, 26, v19
    v_lshrrev_b32 v20, 7, v20               ; cb2 = x/5
    v_mul_u32_u24 v20, {245760 - 5*1024}, v20
    v_lshl_add_u32 v20, v19, 10, v20
    v_lshl_add_u32 v{24+i}, v4, 4, v20
    """)
        a("s_waitcnt vmcnt(0)")
        if DIAG_ON(): a("s_memrealtime s[60:61]")
        for c in range(4):
            o = 48 + c * 4
            for j in range(4):
                lo = 32 + 4 * j + c // 2
                a(f"v_perm_b32 v{o+j}, v{lo+2}, v{lo}, {'s28' if c % 2 == 0 else 's29'}")
            a(f"ds_write_b128 v21, v[{o}:{o+3}] offset:{16*c}")
        for i in range(4): a(f"ds_read_b128 v[{64+4*i}:{67+4*i}], v17 offset:{1024*i}")
        for i in range(4):
            a(f"s_waitcnt lgkmcnt({3-i})")
            a(f"buffer_store_dwordx4 v[{64+4*i}:{67+4*i}], v{24+i}, s[8:11], s6 offen sc1")
        a("""
    s_add_u32 s40, s40, 384
    s_cmp_lt_u32 s40, 480
    s_cbranch_scc1 L_relay
    """)
        if DIAG_ON(): a("s_memrealtime s[62:63]")
        for i in range(IDLE_W, IDLE_W + 3): self.w1dma(i)
        a(f"""
    s_waitcnt vmcnt(3)
    s_barrier
    s_cmp_lg_u32 s3, 0
    s_cbranch_scc1 L_norf
    s_lshl_b32 s30, s30, 4
    s_add_u32 s30, s30, {RF}
    v_mov_b32 v24, 0
    s_mov_b64 exec, 1
    buffer_store_dword v9, v24, s[8:11], s30 offen sc1
    s_mov_b64 exec, -1
L_norf:
    """)
        self.checkflags([16], False, ["buffer_load_dword v16, v15, s[8:11], s23 offen sc1"])
        for i in range(IDLE_W + 3, CONV_W): self.w1dma(i)
        a(f"""
L_arrive:
    s_cmp_lg_u32 s3, 0
    s_cbranch_scc1 L_arrived
    s_lshl_b32 s25, s20, 7
    s_add_u32 s25, s25, {SH}
    v_mov_b32 v24, 1
    v_mov_b32 v25, 0
    s_mov_b64 exec, 1
    buffer_atomic_add v24, v25, s[8:11], s25 offen sc0 sc1
    s_mov_b64 exec, -1
    s_waitcnt vmcnt(0)
    v_readfirstlane_b32 s25, v24
    s_cmp_lg_u32 s25, 31
    s_cbranch_scc1 L_arrived
    s_lshl_b32 s25, s20, 2
    s_add_u32 s25, s25, {GO}
    v_lshlrev_b32 v25, 7, v1
    s_mov_b64 exec, 0xff
    buffer_store_dword v9, v25, s[8:11], s25 offen sc1
    s_mov_b64 exec, -1
L_arrived:
    """)
        vm.q = ["?"] * 13
        a(f"s_mov_b32 s31, {RF}")
        for x in allrf: a(x); vm.issue("arf")
        for i in range(CONV_W, 30): self.w1dma(i)
        a("v_lshlrev_b32 v25, 4, v11\nbuffer_load_dword v25, v25, s[8:11], s22 offen sc1"); vm.issue("W")
        vm.wait("arf")
        self.checkflags([228, 229], True, allrf)
        a(f"""
    s_lshl_b32 s22, s44, 2
    s_add_u32 s22, s22, s3
    s_lshl_b32 s23, s22, 10
    s_add_u32 s23, s23, {ST2 - 8*128}
    v_lshl_add_u32 v23, v1, 7, s23
    s_lshl_b32 s22, s22, 7
    s_add_u32 s22, s22, {F1}
    v_writelane_b32 v23, s22, 2
    s_add_u32 s22, s22, 16384
    v_writelane_b32 v23, s22, 3
    s_lshl_b32 s22, s24, 7
    s_add_u32 s22, s22, {F3}
    v_writelane_b32 v23, s22, 4
    s_lshl_b32 s22, s24, 5
    s_add_u32 s22, s22, s21
    s_lshl_b32 s22, s22, 7
    s_add_u32 s22, s22, {ST1}
    v_writelane_b32 v23, s22, 0
    s_add_u32 s22, s22, {ST3 - ST1}
    v_writelane_b32 v23, s22, 1
    s_mov_b64 exec, 0xff1f
    buffer_load_dword a255, v23, s[8:11], 0 offen
    s_mov_b64 exec, -1
    """)
        for jj in range(4):
            a(f"s_lshr_b32 s22, s21, 3\ns_add_u32 s22, s22, {jj}\ns_and_b32 s22, s22, 3\ns_mul_i32 s{4+jj}, s22, 6144")
        Lw = a.label("go")
        nyoung = 1
        for x in self.g2_setup(0): a(x)
        a(f"""
    s_waitcnt vmcnt({nyoung})
    v_cmp_ne_u32 vcc, s37, v25
    s_cmp_eq_u32 vcc_lo, 0
    s_cselect_b32 s38, 1, 0
    s_barrier
    s_cmp_lg_u32 s3, 0
    s_cbranch_scc1 L_cs_early
    """)
        q0 = list(vm.q)
        for x in Dq[:PRE_D]: x()
        vm.q = q0
        a(f"""
    s_lshl_b32 s36, s20, 7
    s_add_u32 s36, s36, {GO}
    s_mov_b32 s35, {SPIN}
{Lw}_l:
    buffer_load_dword v18, v11, s[8:11], s36 offen sc1
    s_waitcnt vmcnt(0)
    v_cmp_eq_u32 vcc, {NON}, v18
    s_and_b32 s34, vcc_lo, 0xff
    s_cmp_eq_u32 s34, 0xff
    s_cbranch_scc1 {Lw}
    s_sleep 2
    s_sub_u32 s35, s35, 1
    s_cbranch_scc0 {Lw}_l
    s_branch {Lw}
L_cs_early:
    """)
        self.colsum(0, 40, deque(Dq[:PRE_D]))
        a(f"""
    s_lshl_b32 s22, s3, 9
    s_add_u32 s22, s22, {RB - 512}
    v_lshl_add_u32 v23, v1, 3, s22
    v_cmp_gt_u32 vcc, 32, v1
    v_mov_b32 v30, 0
    v_accvgpr_read_b32 v24, a240
    v_accvgpr_read_b32 v25, a241
    v_permlane16_swap_b32 v24, v25
    v_cndmask_b32 v24, 0, v24, vcc
    v_cvt_pk_bf16_f32 v28, v24, v24
    v_lshlrev_b32 v25, 16, v28
    v_sub_f32 v25, v24, v25
    v_cvt_pk_bf16_f32 v28, v24, v25
    v_and_b32 v26, s39, v28
    v_sub_f32 v25, v25, v26
    v_cvt_pk_bf16_f32 v29, v25, v30
    ds_write_b64 v23, v[28:29]
    s_waitcnt lgkmcnt(0)
{Lw}:
    v_lshlrev_b32 v23, 3, v1
    v_add_u32 v23, {RB}, v23
    """)
        a(f"""
    s_mul_i32 s22, s44, {TB}
    s_lshl_b32 s29, s45, 6
    s_add_u32 s22, s22, s29
    s_mul_i32 s29, s3, {40*512}
    s_add_u32 s22, s22, s29
    s_add_u32 s22, s22, {X1}
    v_and_b32 v7, 7, v1
    v_lshlrev_b32 v7, 3, v7
    v_lshrrev_b32 v8, 3, v1
    v_lshl_add_u32 v8, v8, 9, v7
    """)
        st("ready")
        a("s_barrier")
        vm.q = ["?"] * (PRE_D + 1)
        lg.q = []
        st("go")
        for mt in range(3): a(f"ds_read_b64 a[{240+4*mt}:{241+4*mt}], v23 offset:{512*mt}"); lg.issue("cs")
        for r in (242, 243, 246, 247): a(f"v_accvgpr_write_b32 a{r}, 0")

    def colsum(self, k0, k1, side):
        a = self.a
        a("""
    s_lshl_b32 s22, s3, 5
    s_sub_u32 s22, s22, 32
    v_add_u32 v23, s22, v10
    v_and_b32 v48, 15, v1
    v_bfe_u32 v49, v1, 4, 1
    v_cmp_eq_u32 vcc, v48, v49
    v_mov_b32 v49, 0x3f803f80
    """)
        def rd(k):
            b = 24 + 4 * (k % 6)
            for h in range(2): a(f"ds_read_b64_tr_b16 v[{b+2*h}:{b+2*h+1}], v23 offset:{k*1536 + h*384}")
        for k in range(k0, k0 + 5): rd(k)
        a("v_cndmask_b32 v48, 0, v49, vcc\nv_mov_b32 v49, v48\nv_mov_b32 v50, v48\nv_mov_b32 v51, v48")
        for k in range(k0, k1):
            a(f"s_waitcnt lgkmcnt({2*min(4, k1-1-k)})")
            b = 24 + 4 * (k % 6)
            a(f"v_mfma_f32_16x16x32_bf16 a[240:243], v[48:51], v[{b}:{b+3}], {'0' if k == 0 else 'a[240:243]'}")
            if k + 5 < k1: rd(k + 5)
            if side and k % 2 == 0: side.popleft()()
        assert not side

    def gemm1(self, layer):
        a, vm, lg, st = self.a, self.vm, self.lg, self.st
        first = layer == 0
        self.layer = layer
        vm.count = {}
        if DETAIL:
            DET = list(range(int(DETAIL), int(DETAIL) + 7)); st0 = st
            if first: self.st = st = lambda n: None
        XS, HD, ST = (X1, H1, ST1) if first else (X3, H2, ST3)
        sc = "sc1"
        a(f"""
    s_mul_i32 s25, s24, {TB}
    s_add_u32 s25, s25, {XS}
    """)
        state = dict(tnext=0, done=-1)
        def thalf(ks, h):
            r = RING0 + (ks % RING) * 8 + 4 * h
            o = (ks % 2) * 2048 + 512 * h
            def fn():
                a(f"buffer_load_dwordx4 v[{r}:{r+3}], v5, s[8:11], s25 offen offset:{o} {sc}"); vm.issue(f"T{ks}")
                if ks % 2 == 1 and h == 1: a("s_add_u32 s25, s25, 4096")
            return (lambda: state["done"] >= ks - RING, fn)
        def tload():
            ks = state["tnext"]; state["tnext"] += 1
            thalf(ks, 0)[1](); thalf(ks, 1)[1]()
        def stl(i):
            def fn():
                rr = TMP + i * 4
                a(f"buffer_load_dwordx4 v[{rr}:{rr+3}], v6, s[8:11], s26 offen offset:{i*512} sc1"); vm.issue("stl")
            return (lambda: state["done"] >= 20, fn)

        for _ in range(3): tload()
        if first:
            for i in range(5):
                a(f"buffer_load_dwordx2 v[{TMP+2*i}:{TMP+2*i+1}], v8, s[8:11], s22 offen sc1"); vm.issue("st")
                if i < 4: a("s_add_u32 s22, s22, 4096")
        for _ in range(3): tload()
        st("issued")
        self.fq.extend([f"s_lshl_b32 s26, s24, 12", f"s_add_u32 s26, s26, {ST}"])
        if True:
            self.post = []
            self.fq.extend([f"s_mul_i32 s27, s24, {2*96*1024}", "s_mul_i32 s28, s21, 3072", "s_add_u32 s27, s27, s28", f"s_add_u32 s27, s27, {HD}",
                            f"s_add_u32 s28, s27, {96*1024}"])
        if first:
            S, Q, t, u = TMP + 10, TMP + 11, TMP + 12, TMP + 13
            f = [lambda: vm.wait("st")]
            for i in range(10):
                f += [f"v_lshlrev_b32 v{t}, 16, v{TMP+i}", f"v_and_b32 v{u}, s39, v{TMP+i}"]
                if i == 0: f += [f"v_add_f32 v{S}, v{t}, v{u}", f"v_mul_f32 v{Q}, v{t}, v{t}"]
                else: f += [f"v_add_f32 v{S}, v{S}, v{t}", f"v_fmac_f32 v{Q}, v{t}, v{t}", f"v_add_f32 v{S}, v{S}, v{u}"]
                f.append(f"v_fmac_f32 v{Q}, v{u}, v{u}")
            def sts():
                a("s_mov_b32 exec_lo, 0xff\ns_mov_b32 exec_hi, 0xff")
                self.dstore([f"buffer_store_dwordx2 v[{S}:{Q}], v7, s[8:11], s22 offen"])
                a("s_mov_b64 exec, -1"); vm.issue("sts")
            f += ["s_lshl_b32 s22, s44, 12", "s_lshl_b32 s23, s3, 10",
                  f"v_add_f32_dpp v{S}, v{S}, v{S} row_ror:8 row_mask:0xf bank_mask:0xf",
                  f"v_add_f32_dpp v{Q}, v{Q}, v{Q} row_ror:8 row_mask:0xf bank_mask:0xf",
                  "s_add_u32 s22, s22, s23", f"v_mov_b32 v{t}, v{S}", f"v_mov_b32 v{u}, v{Q}", "s_lshl_b32 s23, s45, 6", "s_add_u32 s22, s22, s23",
                  f"v_permlane16_swap_b32 v{S}, v{t}", f"v_permlane16_swap_b32 v{Q}, v{u}",
                  f"s_add_u32 s22, s22, {ST}", "v_lshl_add_u32 v7, v3, 9, v7",
                  f"v_add_f32 v{S}, v{S}, v{t}", f"v_add_f32 v{Q}, v{Q}, v{u}", sts]
            self.fq.extend(f)
        self.fq.extend(self.post)
        tq = [thalf(ks, h) for ks in range(state["tnext"], 40) for h in range(2)]
        k = 2 * (35 - state["tnext"])
        tq = tq[:k] + [stl(i) for i in range(4)] + tq[k:]
        xq = []
        if first: xq += [(lambda: True, lambda j=j, mt=mt: self.wdl(j, mt)) for j in range(12) for mt in range(5)][PRE_D:]
        order = []
        n = 0
        while tq:
            order += tq[:2]; tq = tq[2:]
            n += 1
            pass
        tq = order + xq
        if not first and WBL2 & 2: tq.append((lambda: len(self.vq) == 1, self.writeback))
        self.vq = deque(tq)
        def swaps(ks):
            r = RING0 + (ks % RING) * 8
            self.ensure(f"T{ks}", 2)
            if DETAIL and first and ks in DET: st0(f"bT{ks}")
            vm.wait(f"T{ks}")
            if DETAIL and first and ks in DET: st0(f"aT{ks}")
            a(f"v_swap_b32 v{r+2}, v{r+4}")
            a(f"v_swap_b32 v{r+3}, v{r+5}")
        def mfma(mt, par, A, B, zero=False):
            acc = ACC1 + (mt * 2 + par) * 16
            accs = f"v[{acc}:{acc+15}]"
            Ar = A if isinstance(A, str) else f"v[{A}:{A+3}]"
            a(f"v_mfma_f32_32x32x16_bf16 {accs}, {Ar}, v[{B}:{B+3}], {'0' if zero else accs}")
        for mt in range(3): self.wread(0, mt, 24 + 4 * mt, "A0")
        swaps(0)
        st("T0")
        for ks in range(NMAIN):
            if ks in (8, 16, 24): st(f"ks{ks}")
            r = RING0 + (ks % RING) * 8
            b = 24 + (ks & 1) * 12
            nb = 24 + ((ks + 1) & 1) * 12
            if ks == 20: self.flush_fill()
            lg.wait(f"A{ks}")
            n = 0
            for mt in range(3):
                for par in range(2):
                    mfma(mt, par, b + 4 * mt, r + 4 * par, ks == 0)
                    n += 1
                    if n == 1:
                        if ks + 1 < NMAIN:
                            for m2 in range(3): self.wread(ks + 1, m2, nb + 4 * m2, f"A{ks+1}")
                        if ks + 1 >= NMAIN: self.fill(20)
                    if n == 6: state["done"] = ks
                    if n in (2, 4, 6):
                        did = self.vslot(1)
                        self.fill((8 if did else 20) - (4 if n == 6 else 0))
                    if n == 3: swaps(ks + 1)
                    if n == 5: self.fill(24)
        self.flush_fill()
        st("main")
        NB = 4
        seq = [(mt, ks) for mt in range(3) for ks in list(range(NMAIN, 40)) + [40]]
        def aread(i):
            mt, ks = seq[i]
            self.wread(ks, mt, 24 + (i % NB) * 4, f"B{i}")
        if first: a("s_barrier")
        for i in range(NB - 1): aread(i)
        self.ensure("stl", 4)
        R = TMP
        Ls, Lb = a.label("stspin"), a.label("stback")
        f = [lambda: vm.wait("stl"), f"v_max_u32 v18, v{R+1}, v{R+3}"]
        for i in range(1, 4): f.append(f"v_max3_u32 v18, v18, v{R+4*i+1}, v{R+4*i+3}")
        f += [lambda: a(f"v_cmp_eq_u32 vcc, -1, v18\ns_cbranch_vccnz {Ls}\n{Lb}:")]
        rl = "\n".join(f"    buffer_load_dwordx4 v[{TMP+i*4}:{TMP+i*4+3}], v6, s[8:11], s26 offen offset:{i*512} sc1" for i in range(4))
        mx = "\n".join(f"    v_max3_u32 v18, v18, v{R+4*i+1}, v{R+4*i+3}" for i in range(1, 4))
        self.tail_blocks.append(f"""
{Ls}:
    s_mov_b32 s35, {SPIN}
{Ls}_l:
{rl}
    s_waitcnt vmcnt(0)
    v_max_u32 v18, v{R+1}, v{R+3}
{mx}
    v_cmp_eq_u32 vcc, -1, v18
    s_cbranch_vccz {Lb}
    s_sub_u32 s35, s35, 1
    s_cbranch_scc0 {Ls}_l
    s_branch {Lb}
""")
        for k in range(4): f += [f"v_add_f32 v{R+k}, v{R+k}, v{R+4+k}", f"v_add_f32 v{R+8+k}, v{R+8+k}, v{R+12+k}"]
        for k in range(4): f.append(f"v_add_f32 v{R+k}, v{R+k}, v{R+8+k}")
        for k in range(4): f.append(f"v_mov_b32 v{R+4+k}, v{R+k}")
        for k in range(4): f.append(f"v_permlane32_swap_b32 v{R+k}, v{R+4+k}")
        for k in range(4): f.append(f"v_add_f32 v{R+k}, v{R+k}, v{R+4+k}")
        recs = []
        for t in range(2):
            l = []; rr = l.append
            b = R + 2 * t
            vmn, vr = R + 4 + 2 * t, R + 5 + 2 * t
            rr(f"v_mul_f32 v{vmn}, 0x3acccccd, v{b}")
            rr(f"v_mul_f32 v{vr}, 0x3acccccd, v{b+1}")
            rr(f"v_fma_f32 v{vr}, -v{vmn}, v{vmn}, v{vr}")
            rr(f"v_max_f32 v{vr}, 0, v{vr}")
            rr(f"v_cvt_pk_bf16_f32 v{40+4*t}, -v{vmn}, -v{vmn}")
            rnd_bf16(rr, vr)
            rr(f"v_and_b32 v{41+4*t}, 0xffff, v{40+4*t}")
            rr(f"v_add_f32 v{vr}, 0x3727c5ac, v{vr}")
            rnd_bf16(rr, vr)
            rr(f"v_sqrt_f32 v{vr}, v{vr}")
            rr(f"v_mov_b32 v{42+4*t}, v{40+4*t}")
            rnd_bf16(rr, vr)
            rr(f"v_mul_f32 v{16+t}, v{vr}, v{vr}")
            rr(f"v_rcp_f32 v{vr}, v{vr}")
            rr(f"v_mov_b32 v{43+4*t}, v{41+4*t}")
            rr(f"v_mul_f32 v{12+t}, {hex(f2u(GC0))}, v{vr}")
            rr(f"v_mul_f32 v{14+t}, v{vr}, v{vr}")
            rr(f"v_mul_f32 v{vr}, {hex(f2u(GC1))}, v{vr}")
            rr(f"v_mul_f32 v{14+t}, v{14+t}, v{vr}")
            recs.append(l)
        for x, y in zip(*recs): f += [x, y]
        f += [f"s_lshl_b32 s29, s24, 2", "s_lshr_b32 s34, s21, 3", "s_add_u32 s29, s29, s34", "s_lshl_b32 s29, s29, 7",
              f"s_add_u32 s29, s29, {F1 + layer*16384}", "s_lshl_b32 s34, s45, 2", "v_mov_b32 v8, s34", f"v_mov_b32 v9, {NON}",
              "s_lshl_b32 s36, s44, 2", "s_add_u32 s36, s36, s3", "s_lshl_b32 s36, s36, 7", f"s_add_u32 s36, s36, {F1 + layer*16384}"]
        self.fq.extend(f)
        for i, (mt, ks) in enumerate(seq):
            if ks == 40 and mt == 0: self.flush_fill()
            lg.wait(f"B{i}")
            A = 24 + (i % NB) * 4 if ks < 40 else ("a[240:243]", "a[244:247]", "a[246:249]")[mt]
            for par in range(2):
                B = RING0 + (ks % RING) * 8 + 4 * par if ks < 40 else 40 + 4 * par
                mfma(mt, par, A, B)
                if par == 0:
                    if i + NB - 1 < len(seq): aread(i + NB - 1)
                    if mt == 0 and ks + 1 < 40: swaps(ks + 1)
                    else:
                        did = self.vslot(1) if ks % 4 else 0
                        self.fill(20 - 8 * did)
                else:
                    did = self.vslot(1)
                    self.fill(20 - 8 * did)
            if ks == 40:
                self.flush_fill()
                st(f"pass{mt}")
                if mt == 2: break
                pre = ["s_nop 3"]
                e = self.epi_ops(mt, 0, False) + self.epi_ops(mt, 1, False)
                k = min(len(pre), 10)
                self.fq.extend(pre[:k] + e + pre[k:])
                if mt == 1:
                    self.fq.insert(len(self.fq) // 4, lambda: (vm.wait("h0"), self.flag_store("s29", 0)))
                    self.fq.insert(len(self.fq) - 24, lambda: self.poll_issue("s36", 18))

    def g2_setup(self, layer):
        HS = H1 if layer == 0 else H2
        f = ["v_and_b32 v19, 15, v1", "v_lshrrev_b32 v20, 4, v1", "v_lshlrev_b32 v21, 4, v19",
             "v_lshl_add_u32 v21, v20, 9, v21",
             "v_lshl_add_u32 v22, v3, 11, v21",
             f"s_mul_i32 s26, s44, {2*96*1024}", f"s_mul_i32 s34, s3, {24*1024}", "s_add_u32 s26, s26, s34", f"s_add_u32 s26, s26, {HS}"]
        for n in range(4):
            f += [f"s_add_u32 s34, s3, {n}", "s_and_b32 s35, s34, 1", f"s_mul_i32 s35, s35, {96*1024}", "s_lshl_b32 s34, s34, 7",
                  "s_and_b32 s34, s34, 256", f"s_add_u32 s{40+n}, s26, s35", f"s_add_u32 s{40+n}, s{40+n}, s34"]
        return f

    def gemm2(self, layer):
        a, vm, lg, st = self.a, self.vm, self.lg, self.st
        last = layer == 1
        state = dict(done=-1, parts=1, free=False)
        def hl(j, n):
            P, jj = j // 4, j % 4
            r = hslot(j) + n * 4
            def fn():
                a(f"s_add_u32 s31, s{40+n}, s{4+jj}")
                a(f"buffer_load_dwordx4 v[{r}:{r+3}], v22, s[8:11], s31 offen offset:{P*1024} sc1")
                vm.issue(f"K{j}")
            return (lambda: state["done"] >= j - 9 and j // 4 < state["parts"] and (j % 9 < 6 or state["free"]), fn)
        rest = list(self.vq)
        hq = [hl(j, n) for j in range(12) for n in range(4)]
        self.poll_check("s36", 18, 0xff)
        st("p0ok")
        self.vq = deque(hq[:12] + rest + hq[12:])
        e = self.epi_ops(2, 0, True) + [lambda: (vm.wait("h1"), self.flag_store("s29", 32))] + self.epi_ops(2, 1, True)
        for k, x in enumerate(e):
            x() if callable(x) else a(x)
            if k % (EPI_LD[layer]) == 0: self.vslot(1)
        self.poll_issue("s36", 18)
        st("epi2")
        XRr, Yr = hslot(3), hslot(4)
        U, UY = hslot(6), hslot(6) + 20
        def xl(base, reg, mt):
            def fn():
                if mt % 2 == 0: a(f"s_add_u32 s30, s32, {base + (mt//2)*4096}")
                a(f"buffer_load_dwordx2 v[{reg+2*mt}:{reg+2*mt+1}], v21, s[8:11], s30 offen offset:{(mt%2)*2048} sc1"); vm.issue("x")
            return (lambda: state["done"] >= 4, fn)
        for mt in range(5): self.vq.append(xl(X1, XRr, mt))
        if not last:
            for mt in range(5): self.vq.append(xl(Y, Yr, mt))
        f = [f"s_mul_i32 s32, s44, {TB}", "s_mul_i32 s33, s45, 10240", "s_add_u32 s32, s32, s33", "s_lshr_b32 s33, s3, 1", "s_lshl_b32 s33, s33, 8",
             "s_and_b32 s34, s3, 1", "s_lshl_b32 s34, s34, 3", "s_add_u32 s33, s33, s34",
             "s_add_u32 s32, s32, s33"]
        for n in range(4):
            f += [f"s_add_u32 s34, s3, {n}", "s_and_b32 s34, s34, 3", "s_mul_i32 s34, s34, 5120", f"s_add_u32 s34, s34, {RB}", f"v_add_u32 v{104+n}, s34, v2"]
        if last:
            f += ["v_mul_u32_u24 v23, 2560, v19", "v_lshl_add_u32 v23, v20, 3, v23", f"s_mul_i32 s26, s44, {64*1280}", "s_mul_i32 s27, s33, 160",
                  "s_add_u32 s26, s26, s27", "s_mul_i32 s27, s45, 160", "s_add_u32 s26, s26, s27"]
        else:
            f += ["s_lshl_b32 s22, s44, 12", "s_lshl_b32 s26, s3, 10", "s_add_u32 s26, s26, s22", f"s_add_u32 s26, s26, {ST2}",
                  "s_lshr_b32 s27, s45, 1", "s_lshl_b32 s27, s27, 8", "s_and_b32 s28, s45, 1", "s_lshl_b32 s28, s28, 3", "s_add_u32 s27, s27, s28",
                  "s_add_u32 s27, s27, s26",
                  "s_lshl_b32 s28, s45, 9", "s_add_u32 s22, s22, s28", "s_add_u32 s22, s22, s33", f"s_add_u32 s22, s22, {ST3}",
                  f"s_add_u32 s23, s32, {X3}", "s_add_u32 s25, s23, 4096", "s_add_u32 s28, s23, 8192"]
        def mf(j, n, mt):
            acc = ACC2 + (n * 5 + mt) * 4
            accs = f"v[{acc}:{acc+3}]"
            i = j * 5 + mt
            r = hslot(j) + n * 4
            a(f"v_mfma_f32_16x16x32_bf16 {accs}, a[{4*i}:{4*i+3}], v[{r}:{r+3}], {'0' if j == 0 else accs}")
        def need(j):
            self.ensure(f"K{j}", 4)
            if not last and 5 * j >= PRE_D: self.ensure(f"D{j}", 5)
            vm.wait(f"D{j}")
            vm.wait(f"K{j}")
        NK = 9
        for j in range(NK):
            if j == 1:
                self.poll_check("s36", 18, 0xff00); state["parts"] = 2
            need(j)
            if j in (0, 4, 8): st(f"K{j}")
            k = 0
            for n in range(4):
                for mt in range(5):
                    mf(j, n, mt)
                    k += 1
                    if k == 20: state["done"] = j
                    if j == 1 and k == 8:
                        vm.wait("h2"); self.flag_store("s29", 64); state["free"] = True
                        self.fq.extend(f)
                    elif j == 3 and k == 6: self.poll_issue("s36", 18)
                    elif j == 4 and k == 4:
                        self.flush_fill()
                        self.poll_check("s36", 18, 0xff0000); state["parts"] = 3
                    elif k % 4 == 1: self.vslot(1)
                    else: self.fill(4)
        for j in range(NK, 12): self.ensure(f"K{j}", 4)
        io = deque()
        T1, T2, T3 = hslot(5), 44, 64
        T1 = 240
        land = {1: 44 - 0, 2: 64, 3: 84}
        A = lambda i: f"v[{ACC2+2*i}:{ACC2+2*i+1}]"
        def wr(n): return [f"ds_write_b128 v{104+n}, v[{ACC2+(n*5+mt)*4}:{ACC2+(n*5+mt)*4+3}] offset:{mt*1024 + (20480 if n == 2 else 0)}" for mt in range(5)]
        def rd(n): return [f"ds_read_b128 v[{land[n]+4*mt}:{land[n]+4*mt+3}], v104 offset:{mt*1024 + (20480 if n == 2 else 0)}" for mt in range(5)]
        NS = 5 * (12 - NK)
        for n in (1, 2, 3, 0):
            k = 0
            for j in range(NK, 12):
                if n == 1: need(j)
                for mt in range(5):
                    mf(j, n, mt)
                    k += 1
                    if io and k >= 3: a(io.popleft())
                    elif k % 2 == 1: self.vslot(1)
                    else: self.fill(4)
            while io: a(io.popleft())
            if n != 1: a("s_waitcnt lgkmcnt(0)\ns_barrier")
            if n == 0: break
            w, r = wr(n), (rd(n - 1) if n > 1 else [])
            for x in range(5):
                if r: io.append(r[x])
                io.append(w[x])
            if n == 2:
                self.vslot(100)
                assert not self.vq
                self.fq.append(lambda: vm.wait("x"))
                if last and WBL2 & 1:
                    Lq = a.label("wb")
                    self.fq.append(lambda: a(f"s_or_b32 s34, s21, s3\ns_cmp_lg_u32 s34, 0\ns_cbranch_scc1 {Lq}\nbuffer_wbl2 sc1\n{Lq}:"))
                for i in range(10): self.fq.extend([f"v_lshlrev_b32 v{U+2*i}, 16, v{XRr+i}", f"v_and_b32 v{U+2*i+1}, s39, v{XRr+i}"])
        st("kloop")
        for x in rd(3): a(x)
        if last and WBL2 & 4:
            Lq = a.label("wb")
            a(f"s_or_b32 s34, s21, s3\ns_cmp_lg_u32 s34, 0\ns_cbranch_scc1 {Lq}\nbuffer_wbl2 sc1\n{Lq}:")
        self.flush_fill()
        for i in range(10): a(f"v_pk_add_f32 {A(i)}, {A(i)}, v[{U+2*i}:{U+2*i+1}]")
        for n in range(1, 4):
            if n == 3: a("s_waitcnt lgkmcnt(0)")
            for i in range(10): a(f"v_pk_add_f32 {A(i)}, {A(i)}, v[{land[n]+2*i}:{land[n]+2*i+1}]")
        lg.q = []
        st("reduced")
        Pk, T = 44, 56
        if last:
            for i in range(10): a(f"v_cvt_pk_bf16_f32 v{Pk+i}, v{ACC2+2*i}, v{ACC2+2*i+1}")
            for mt in range(5):
                a(f"buffer_store_dwordx2 v[{Pk+2*mt}:{Pk+2*mt+1}], v23, s[12:15], s26 offen offset:{32*mt} {OUTF}")
            return
        def xsum(v0, v1, t0, t1):
            a(f"""
    v_mov_b32 v{t0}, v{v0}
    v_mov_b32 v{t1}, v{v1}
    v_permlane16_swap_b32 v{v0}, v{t0}
    v_permlane16_swap_b32 v{v1}, v{t1}
    v_pk_add_f32 v[{v0}:{v1}], v[{v0}:{v1}], v[{t0}:{t1}]
    v_mov_b32 v{t0}, v{v0}
    v_mov_b32 v{t1}, v{v1}
    v_permlane32_swap_b32 v{v0}, v{t0}
    v_permlane32_swap_b32 v{v1}, v{t1}
    v_pk_add_f32 v[{v0}:{v1}], v[{v0}:{v1}], v[{t0}:{t1}]
    """)
        def stats_partial(sreg):
            a(f"v_pk_add_f32 v[12:13], {A(0)}, {A(1)}")
            a(f"v_pk_mul_f32 v[14:15], {A(0)}, {A(0)}")
            for i in range(1, 10):
                if i >= 2: a(f"v_pk_add_f32 v[12:13], v[12:13], {A(i)}")
                a(f"v_pk_fma_f32 v[14:15], {A(i)}, {A(i)}, v[14:15]")
            a("v_add_f32 v12, v12, v13\nv_add_f32 v13, v14, v15")
            xsum(12, 13, 14, 15)
            a("s_mov_b64 exec, 0xffff")
            self.dstore([f"buffer_store_dwordx2 v[12:13], v2, s[8:11], {sreg} offen"])
            a("s_mov_b64 exec, -1")
        stats_partial("s27")
        a(f"buffer_load_dwordx4 v[76:79], v2, s[8:11], s26 offen sc1")
        for i in range(10): a(f"v_cvt_pk_bf16_f32 v{Pk+i}, v{ACC2+2*i}, v{ACC2+2*i+1}")
        for i in range(10):
            a(f"v_lshlrev_b32 v{UY+2*i}, 16, v{Yr+i}")
            a(f"v_and_b32 v{UY+2*i+1}, s39, v{Yr+i}")
        for i in range(10):
            a(f"v_lshlrev_b32 v{ACC2+2*i}, 16, v{Pk+i}")
            a(f"v_and_b32 v{ACC2+2*i+1}, s39, v{Pk+i}")
        for i in range(10): a(f"v_pk_mul_f32 v[{T+2*i}:{T+2*i+1}], {A(i)}, v[{UY+2*i}:{UY+2*i+1}]")
        a(f"""
    s_lshl_b32 s29, s44, 7
    s_add_u32 s29, s29, {F3}
    s_lshl_b32 s34, s45, 4
    s_lshl_b32 s35, s3, 2
    s_add_u32 s34, s34, s35
    v_mov_b32 v8, s34
    s_lshl_b32 s36, s24, 7
    s_add_u32 s36, s36, {F3}
    s_mov_b32 s35, {SPIN}
    """)
        L0 = a.label("g2poll"); L1 = a.label("g2ok")
        a(f"""
{L0}:
    s_waitcnt vmcnt(0)
    v_max_u32 v17, v77, v79
    v_cmp_eq_u32 vcc, -1, v17
    s_cbranch_vccz {L1}
    buffer_load_dwordx4 v[76:79], v2, s[8:11], s26 offen sc1
    s_sub_u32 s35, s35, 1
    s_cbranch_scc0 {L0}
    s_waitcnt vmcnt(0)
{L1}:
    v_pk_add_f32 v[12:13], v[76:77], v[78:79]
    """)
        vm.q = []
        st("polled")
        xsum(12, 13, 14, 15)
        ln_stats(a, 12, 13, 14, 15)
        a("v_mul_f32 v14, v14, v15")
        for i in range(10):
            a(f"v_pk_fma_f32 {A(i)}, v[{T+2*i}:{T+2*i+1}], v[14:15], {A(i)} op_sel:[0,1,0] op_sel_hi:[1,1,1]")
        for i in range(10):
            a(f"v_pk_fma_f32 {A(i)}, v[{UY+2*i}:{UY+2*i+1}], v[14:15], {A(i)} op_sel_hi:[1,0,1] neg_lo:[0,1,0] neg_hi:[0,1,0]")
        for i in range(10):
            a(f"v_cvt_pk_bf16_f32 v{Pk+i}, v{ACC2+2*i}, v{ACC2+2*i+1}")
        l = []
        for mt in range(5):
            l.append(f"buffer_store_dwordx2 v[{Pk+2*mt}:{Pk+2*mt+1}], v21, s[8:11], {('s23', 's25', 's28')[mt//2]} offen offset:{(mt%2)*2048}"); vm.issue("x3")
        self.dstore(l)
        stats_partial("s22"); vm.issue("sts")
        vm.wait("x3")
        st("x3drained")
        self.flag_store("s29", 0)
        self.poll_issue("s36", 18)
        self.poll_check("s36", 18, 0xffffffff)
        st("x3ok")

def mega_kernel(kidx=2):
    a = Asm()
    a.uid = 1000
    st = Stamps(a, kidx)
    m = Mega(st)
    m.vm.maxn = 63
    a("s_cmp_ge_u32 s2, 256\ns_cbranch_scc1 L_mega_end")
    st("start")
    m.front()
    sts = [st]
    for layer in range(2):
        if DIAG_ON(): sts[-1].stash(253 + layer)
        sts.append(Stamps(a, kidx + 1 + layer))
        m.st = sts[-1]
        m.st("lstart")
        m.gemm1(layer)
        m.gemm2(layer)
    m.st("end")
    if DIAG_ON():
        a("s_waitcnt vmcnt(0)"); m.st("drained"); sts[0].unstash(253); sts[1].unstash(254); m.st.flush()
    a("L_mega_end:\ns_endpgm")
    for b in m.tail_blocks: a(b)
    a("L_mega_last:\ns_endpgm")
    return a
```
